```python
import torch

def _softmax(x, axis=-1):
    return torch.softmax(x, dim=axis)

def _gelu(x):
    return torch.nn.functional.gelu(x, approximate='tanh')

def _silu(x):
    return torch.nn.functional.silu(x)

def _sigmoid(x):
    return torch.sigmoid(x)

def _layernorm(x, axis=-1, eps=1e-05):
    m = x.mean(dim=axis, keepdim=True)
    v = x.var(dim=axis, keepdim=True, unbiased=False)
    return (x - m) / torch.sqrt(v + eps)

def _scatter_add(tgt, idx, src, axis=0):
    return tgt.clone().index_add_(axis, idx, src)

def _segment_sum(src, seg, n):
    out = torch.zeros((n,) + src.shape[1:], dtype=src.dtype)
    return out.index_add_(0, seg, src)

def _pad(x, pw):
    flat = tuple((v for pair in reversed(pw) for v in pair))
    return torch.nn.functional.pad(x, flat)
kernel_name = 'adaLN_cond__grouped_kv_mqa__glu_gated_reglu__prompt'

def setup_inputs():

    _w = lambda a: (lambda t: t.to(torch.bfloat16) if t.is_floating_point() else t)(torch.as_tensor(a))

    def _A_setup():
        B, S, D, H = (1, 2048, 512, 32)
        Dh = D // H
        return {'x': _w((lambda *s: torch.randn(*s, dtype=torch.bfloat16) * 0.05)(B, S, D)), 'wq': _w((lambda *s: torch.randn(*s, dtype=torch.bfloat16) * 0.05)(D, H * Dh)), 'wk': _w((lambda *s: torch.randn(*s, dtype=torch.bfloat16) * 0.05)(D, Dh)), 'wv': _w((lambda *s: torch.randn(*s, dtype=torch.bfloat16) * 0.05)(D, Dh)), 'wo': _w((lambda *s: torch.randn(*s, dtype=torch.bfloat16) * 0.05)(H * Dh, D))}
    _A_in = _A_setup()

    def _B_setup():
        B, S, D, F = (1, 2048, 512, 1376)
        return {'x': _w((lambda *s: torch.randn(*s, dtype=torch.bfloat16) * 0.05)(B, S, D)), 'W_gate': _w((lambda *s: torch.randn(*s, dtype=torch.bfloat16) * 0.8)(D, F) * (2.0 / D) ** 0.5), 'W_up': _w((lambda *s: torch.randn(*s, dtype=torch.bfloat16) * 0.8)(D, F) * (2.0 / D) ** 0.5), 'W_down': _w((lambda *s: torch.randn(*s, dtype=torch.bfloat16) * 0.8)(F, D) * (1.0 / F) ** 0.5)}
    _B_in = _B_setup()
    return {'A_x': _A_in['x'], 'A_wq': _A_in['wq'], 'A_wk': _A_in['wk'], 'A_wv': _A_in['wv'], 'A_wo': _A_in['wo'], 'B_x': _B_in['x'], 'B_W_gate': _B_in['W_gate'], 'B_W_up': _B_in['W_up'], 'B_W_down': _B_in['W_down'], 'c': _w((lambda *s: torch.randn(*s, dtype=torch.bfloat16) * 0.2)(1, 512) * 8.0), 'w_mod': _w((lambda *s: torch.randn(*s, dtype=torch.bfloat16) * 0.2)(512, 6 * 512) * 512 ** (-0.5) * 8.0)}

def reference(A_x, A_wq, A_wk, A_wv, A_wo, B_x, B_W_gate, B_W_up, B_W_down, c, w_mod):

    def _A_ref(x, wq, wk, wv, wo):
        B, S, D = x.shape
        H = 32
        Dh = D // H
        q = (lambda x, *d: x.permute(*d))((x @ wq).reshape(B, S, H, Dh), 0, 2, 1, 3)
        k = x @ wk
        v = x @ wv
        scores = torch.einsum('bhqd,bkd->bhqk', q, k) * Dh ** (-0.5)
        p = _softmax(scores, axis=-1)
        o = torch.einsum('bhqk,bkd->bhqd', p, v)
        return (lambda x, *d: x.permute(*d))(o, 0, 2, 1, 3).reshape(B, S, H * Dh) @ wo

    def _B_ref(x, W_gate, W_up, W_down):
        gate = torch.einsum('bsd,df->bsf', x, W_gate)
        up = torch.einsum('bsd,df->bsf', x, W_up)
        gate = gate * (lambda x, dt: x.to(dt))(gate > 0, gate.dtype)
        h = gate * up
        return torch.einsum('bsf,fd->bsd', h, W_down)
    x = A_x
    mod = (_silu(c) @ w_mod).reshape(c.shape[0], 6, 1, -1)
    sa, ca, ga, sb, cb, gb = (mod[:, 0].clone(), mod[:, 1].clone(), mod[:, 2].clone(), mod[:, 3].clone(), mod[:, 4].clone(), mod[:, 5].clone())
    h = _layernorm(x, axis=-1) * (1 + ca) + sa
    x = x + ga * _A_ref(h, A_wq, A_wk, A_wv, A_wo)
    h = _layernorm(x, axis=-1) * (1 + cb) + sb
    x = x + gb * _B_ref(h, B_W_gate, B_W_up, B_W_down)
    return x
```

```python
import re

TRANS = ('v_exp_f32', 'v_log_f32', 'v_rcp_f32', 'v_rsq_f32', 'v_sqrt_f32', 'v_sin_f32', 'v_cos_f32')


def v(n, cnt=1):
    return f'v{n}' if cnt == 1 else f'v[{n}:{n+cnt-1}]'


def s(n, cnt=1):
    return f's{n}' if cnt == 1 else f's[{n}:{n+cnt-1}]'


_reg_re = re.compile(r'^-?\|?(?:abs\()?([vs])(?:(\d+)|\[(\d+):(\d+)\])\)?\|?$')


def regs_of(tok):
    tok = tok.strip()
    if tok == 'vcc':
        return {('s', 106), ('s', 107)}
    if tok == 'exec':
        return {('s', 126), ('s', 127)}
    if tok == 'm0':
        return {('s', 124)}
    m = _reg_re.match(tok)
    if not m:
        return set()
    k = m.group(1)
    if m.group(2) is not None:
        return {(k, int(m.group(2)))}
    return {(k, i) for i in range(int(m.group(3)), int(m.group(4)) + 1)}


def mfma_passes(mn):
    if '32x32' in mn:
        return 8
    if '16x16' in mn:
        return 4
    raise ValueError(mn)


class Ins:
    __slots__ = ('text', 'mn', 'cls', 'w', 'r', 'ab', 'c', 'passes', 'states', 'dpp', 'wide_data', 'lds_dma')

    def __init__(self, text):
        self.text = text
        t = text.split(';')[0].strip()
        parts = t.split(None, 1)
        mn = parts[0]
        self.mn = mn
        rest = parts[1] if len(parts) > 1 else ''
        ops = [o.strip() for o in rest.split(',')] if rest else []
        mods = ''
        if ops:
            lp = ops[-1].split(None, 1)
            ops[-1] = lp[0]
            mods = lp[1] if len(lp) > 1 else ''
        self.w = set(); self.r = set(); self.ab = set(); self.c = set()
        self.passes = 0; self.states = 1; self.dpp = False; self.wide_data = set(); self.lds_dma = False
        R = [regs_of(o) for o in ops]
        allr = lambda lst: set().union(*lst) if lst else set()
        if mn == 's_nop':
            self.cls = 'salu'; self.states = int(ops[0]) + 1
        elif mn.startswith('v_mfma'):
            self.cls = 'mfma'; self.passes = mfma_passes(mn)
            self.w = R[0]; self.ab = R[1] | R[2]; self.c = R[3]; self.r = self.ab | self.c
        elif mn.startswith('v_smfmac'):
            self.cls = 'mfma'; self.passes = mfma_passes(mn)
            self.w = R[0]; self.ab = R[1] | R[2] | R[3]; self.c = R[0]; self.r = self.ab | self.c
        elif mn.startswith('v_'):
            self.cls = 'trans' if mn.replace('_e32', '').replace('_e64', '') in TRANS else 'valu'
            self.dpp = ('_dpp' in mn) or ('row_' in mods) or ('quad_perm' in rest)
            if mn.startswith('v_permlane'):
                self.w = R[0] | R[1]; self.r = R[0] | R[1]
            elif mn.startswith('v_add_co') or mn.startswith('v_addc_co') or mn.startswith('v_sub_co'):
                self.w = R[0] | R[1]; self.r = allr(R[2:])
            else:
                self.w = R[0]; self.r = allr(R[1:])
                if mn.startswith(('v_fmac', 'v_dot2c', 'v_writelane')) or self.dpp:
                    self.r |= R[0]
        elif mn.startswith('ds_'):
            self.cls = 'ds'
            if mn.startswith(('ds_read', 'ds_bpermute', 'ds_permute', 'ds_swizzle')) or '_rtn' in mn:
                self.w = R[0]; self.r = allr(R[1:])
            else:
                self.r = allr(R)
        elif mn.startswith(('buffer_', 'global_')):
            self.cls = 'vmem'
            toks = mods.split()
            if 'lds' in toks or '_lds_' in mn:
                self.lds_dma = True; self.r = allr(R) | {('s', 124)}
            elif '_load_' in mn:
                self.w = R[0]; self.r = allr(R[1:])
            else:
                self.r = allr(R)
                if mn.endswith(('x3', 'x4')):
                    self.wide_data = R[0] if mn.startswith('buffer_') else R[1]
        else:
            self.cls = 'salu'
            if mn.startswith(('s_cmp', 's_cbranch', 's_branch', 's_waitcnt', 's_barrier', 's_setprio', 's_sleep', 's_endpgm', 's_bitcmp')):
                self.r = allr(R)
            elif R:
                self.w = R[0]; self.r = allr(R[1:])


def need(p, c):
    n = 0
    isv = lambda x: x.cls in ('valu', 'trans')
    pw_v = {r for r in p.w if r[0] == 'v'}
    pw_s = {r for r in p.w if r[0] == 's'}
    if isv(p):
        if c.cls == 'mfma' and (pw_v & c.r):
            n = max(n, 2)
        if isv(c):
            if p.cls == 'trans' and c.cls != 'trans' and (pw_v & c.r):
                n = max(n, 1)
            if (c.dpp or c.mn.startswith('v_permlane')) and (pw_v & c.r):
                n = max(n, 2)
            if c.mn.startswith(('v_readlane', 'v_readfirstlane')) and (pw_v & c.r):
                n = max(n, 1)
            if pw_s & c.r:
                n = max(n, 4 if c.mn.startswith(('v_readlane', 'v_writelane')) else 2)
            if ('sdwa' in p.mn or 'op_sel' in p.text) and not p.mn.startswith('v_pk') and (pw_v & (c.r | c.w)):
                n = max(n, 1)
        if c.cls == 'vmem' and (pw_s & c.r):
            n = max(n, 5)
        if p.cls == 'trans' and c.cls in ('ds', 'vmem') and (pw_v & c.r):
            n = max(n, 1)
    if p.cls == 'mfma':
        big = {4: 8, 8: 12}[p.passes]
        if c.cls == 'mfma':
            if p.w & c.ab:
                n = max(n, big)
            if p.w & c.c:
                if not (p.w == c.c and p.passes == c.passes):
                    n = max(n, {4: 6, 8: 10}[p.passes])
            elif p.w & c.w and not (p.passes == c.passes):
                n = max(n, big)
        elif isv(c):
            if p.w & (c.r | c.w):
                n = max(n, big)
            if p.c & c.w:
                n = max(n, {4: 3, 8: 7}[p.passes])
        elif c.cls in ('ds', 'vmem'):
            if p.w & (c.r | c.w):
                n = max(n, big)
    if p.cls == 'salu' and ('s', 124) in p.w and c.lds_dma:
        n = max(n, 1)
    if p.wide_data and (p.wide_data & c.w):
        n = max(n, 2 if isv(c) or c.cls == 'mfma' else 1)
    return n


class Emitter:
    def __init__(self):
        self.out = []
        self.hist = []
        self.vm = []
        self.lg = []
        self.nops = 0
        self.nop_log = []
        self.uid = 0

    def raw(self, text):
        self.out.append(text)

    def comment(self, text):
        self.out.append('    ; ' + text)

    def label(self, name):
        self.out.append(name + ':')

    def newlabel(self, base):
        self.uid += 1
        return f'L_{base}_{self.uid}'

    def flush_hist(self):
        self.hist = []

    def __call__(self, text, tag=None, count=True):
        for line in text.split('\n'):
            line = line.strip()
            if not line:
                continue
            if line.startswith(';'):
                self.out.append('    ' + line); continue
            if line.endswith(':'):
                self.out.append(line); continue
            ins = Ins(line)
            dist = 0; req = 0
            for p in reversed(self.hist):
                nd = need(p, ins)
                if nd - dist > req:
                    req = nd - dist
                dist += p.states
                if dist >= 20:
                    break
            if req > 0:
                self.nops += req
                self.nop_log.append((req, line))
                nop = Ins(f's_nop {req-1}')
                self.out.append(f'    s_nop {req-1}')
                self.hist.append(nop)
            self.out.append('    ' + line)
            self.hist.append(ins)
            if len(self.hist) > 40:
                self.hist = self.hist[-30:]
            if count:
                if ins.cls == 'vmem':
                    self.vm.append(tag)
                elif ins.cls == 'ds':
                    self.lg.append(tag)
            if ins.mn == 's_waitcnt':
                m = re.search(r'vmcnt\((\d+)\)', line)
                if m:
                    n = int(m.group(1)); self.vm = self.vm[len(self.vm) - n:] if n and n < len(self.vm) else ([] if n == 0 else self.vm)
                m = re.search(r'lgkmcnt\((\d+)\)', line)
                if m:
                    n = int(m.group(1)); self.lg = self.lg[len(self.lg) - n:] if n and n < len(self.lg) else ([] if n == 0 else self.lg)

    def _after(self, q, tag):
        idx = [i for i, t in enumerate(q) if t == tag]
        if not idx:
            return None
        return len(q) - 1 - idx[-1]

    def wait_vm(self, tag):
        n = self._after(self.vm, tag)
        if n is None:
            return
        assert n <= 63
        self(f's_waitcnt vmcnt({n})')

    def wait_lg(self, tag):
        n = self._after(self.lg, tag)
        if n is None:
            return
        self(f's_waitcnt lgkmcnt({min(n, 15)})')

    def wait(self, vmtag=None, lgtag=None):
        a = self._after(self.vm, vmtag) if vmtag is not None else None
        b = self._after(self.lg, lgtag) if lgtag is not None else None
        t = []
        if a is not None:
            assert a <= 63
            t.append(f'vmcnt({a})')
        if b is not None:
            t.append(f'lgkmcnt({min(b, 15)})')
        if t:
            self('s_waitcnt ' + ' '.join(t))

    def text(self):
        return '\n'.join(self.out) + '\n'
```

```python
import sys, struct, math
from emit import Emitter, v, s

NAME = 'adaLN_cond__grouped_kv_mqa__glu_gated_reglu__prompt_kernel'


def fbits(x):
    return '0x%08x' % struct.unpack('<I', struct.pack('<f', x))[0]


DEFAULTS = dict(prof=0, stop=99, D=6, nchk=10, force_slow=0,
                dly_moda=0, dly_kv=0, dly_o=0, dly_y=0, dly_hh=0, codepf=1, out_flags='', budget=60000)

WS_EPOCH = 0
WS_MODA = 0x1000
WS_MODB = 0x8000
WS_STATS = 0x10000
WS_KV = 0x40000
WS_PROF = 0x80000
WS_O = 0x200000
WS_Y = 0x400000
WS_HH = 0x600000
WS_DBG = 0x1000000
WS_SIZE = 0x10000000
OOB = 0x40000000

L_WQ = 0
L_H = 131072
L_WKV = L_H
L_MW = L_H + 16384
L_SB = L_H + 20480
L_STGA = 7 * 16384
L_QX = 0
L_WGU = 0
L_WOB = 98304
L_WOA = 131072
L_MBW = 8192
L_SB2 = 16384
L_EX = 131072
L_STGB = 149504
L_STG16 = 157696
L_AX = 159744
L_ST = 161280
L_WD1 = 98304
L_WD2 = 0
L_WD3 = 98304

SX, SWQ, SWKV, SWO, SWG, SWU, SWD, SC, SWM, SOUT, SWS = (4, 8, 12, 16, 20, 24, 28, 32, 36, 40, 44)
s_x, s_c, s_w, s_tb, s_cb, s_oct, s_nb, s_m, s_kh = ('s48', 's49', 's50', 's51', 's52', 's53', 's54', 's55', 's56')
s_nonce = 's57'
S_NB = 58
s_budget = 's62'
s_one = 's63'
S_RET = 64
S_VM = 66
T0, T1, T2, T3, T4, T5, T6, T7 = ('s68', 's69', 's70', 's71', 's72', 's73', 's74', 's75')
s_kvb = 's76'
s_dl = 's77'
s_ds = 's78'
s_act = 's79'
S_MU = 80
S_STAMP = 84


def srd(n):
    return s(n, 4)


class Gen:
    def __init__(self, **kw):
        self.o = dict(DEFAULTS); self.o.update(kw)
        self.e = Emitter()
        self.stubs = []
        self.nstamp = 0

    def stamp(self, name):
        if not self.o['prof']:
            return
        e = self.e
        i = self.nstamp; self.nstamp += 1
        assert i < 16
        self.stamp_names = getattr(self, 'stamp_names', []) + [name]
        e('s_memtime s[100:101]')
        e('s_waitcnt lgkmcnt(0)')
        e(f's_mov_b32 s{S_STAMP+i}, s100')

    def dma(self, rs, voff, soff_base, soff_imm, lds_base, lds_imm, tag=None, count=True, flags=''):
        e = self.e
        if lds_base is None:
            e(f's_mov_b32 m0, {lds_imm}')
        else:
            e(f's_add_u32 m0, {lds_base}, {lds_imm}')
        if soff_base is None:
            e(f's_mov_b32 {T7}, {soff_imm}'); so = T7
        elif soff_imm:
            e(f's_add_u32 {T7}, {soff_base}, {soff_imm}'); so = T7
        else:
            so = soff_base
        e(f'buffer_load_dwordx4 {v(voff)}, {srd(rs)}, {so} offen lds {flags}'.rstrip(), tag=tag, count=count)

    def sleep(self, n):
        if n:
            self.e(f's_sleep {n}')

    def silu(self, r, t):
        e = self.e
        e(f'v_mul_f32 {v(t)}, {fbits(-1.4426950408889634)}, {v(r)}')
        e(f'v_exp_f32 {v(t)}, {v(t)}')
        e(f'v_add_f32 {v(t)}, 1.0, {v(t)}')
        e(f'v_rcp_f32 {v(t)}, {v(t)}')
        e(f'v_mul_f32 {v(r)}, {v(r)}, {v(t)}')

    def unpack(self, src, lo, hi):
        e = self.e
        if hi == src:
            e(f'v_lshlrev_b32 {v(lo)}, 16, {v(src)}')
            e(f'v_and_b32 {v(hi)}, 0xffff0000, {v(src)}')
        else:
            e(f'v_and_b32 {v(hi)}, 0xffff0000, {v(src)}')
            e(f'v_lshlrev_b32 {v(lo)}, 16, {v(src)}')

    def red4(self, a, b, c, d):
        e = self.e
        e(f'v_permlane32_swap_b32 {v(a)}, {v(b)}')
        e(f'v_permlane32_swap_b32 {v(c)}, {v(d)}')
        e(f'v_add_f32 {v(a)}, {v(a)}, {v(b)}')
        e(f'v_add_f32 {v(c)}, {v(c)}, {v(d)}')
        e(f'v_permlane16_swap_b32 {v(a)}, {v(c)}')
        e(f'v_add_f32 {v(a)}, {v(a)}, {v(c)}')
        for r in (8, 4, 2, 1):
            e(f'v_add_f32_dpp {v(a)}, {v(a)}, {v(a)} row_ror:{r} row_mask:0xf bank_mask:0xf')

    def tag_and_store(self, val, tmp, addr, soff):
        e = self.e
        e(f'v_and_b32 {v(tmp)}, 3, v0')
        e(f'v_lshlrev_b32 {v(tmp)}, 3, {v(tmp)}')
        e(f'v_lshrrev_b32 {v(tmp)}, {v(tmp)}, {s_nonce}')
        e(f'v_and_b32 {v(tmp)}, 0xff, {v(tmp)}')
        e(f'v_and_b32 {v(val)}, 0xffffff00, {v(val)}')
        e(f'v_or_b32 {v(val)}, {v(val)}, {v(tmp)}')
        e(f'v_lshlrev_b32 {v(addr)}, 2, v0')
        e('s_mov_b64 exec, 0xffff')
        e(f'buffer_store_dword {v(val)}, {v(addr)}, {srd(SWS)}, {soff} offen sc1', count=False)
        e('s_mov_b64 exec, -1')

    def gather_check(self, base, npart, tmp, loads, name):
        e = self.e
        chk = e.newlabel(name + '_chk'); ok = e.newlabel(name + '_ok'); stub = e.newlabel(name + '_stub')
        e.label(chk)
        for p in range(npart):
            for j in range(4):
                e(f'v_xor_b32 {v(base+4*p+j)}, s{S_NB+j}, {v(base+4*p+j)}')
        regs = list(range(base, base + 4 * npart))
        e(f'v_or3_b32 {v(tmp)}, {v(regs[0])}, {v(regs[1])}, {v(regs[2])}')
        i = 3
        while i < len(regs):
            if i + 1 < len(regs):
                e(f'v_or3_b32 {v(tmp)}, {v(tmp)}, {v(regs[i])}, {v(regs[i+1])}'); i += 2
            else:
                e(f'v_or_b32 {v(tmp)}, {v(tmp)}, {v(regs[i])}'); i += 1
        e(f'v_and_b32 {v(tmp)}, 0xff, {v(tmp)}')
        e(f'v_cmp_ne_u32 vcc, 0, {v(tmp)}')
        e(f's_cbranch_vccnz {stub}')
        e.label(ok)
        self.stubs.append(('reload', stub, chk, ok, loads))
        for j in range(4):
            if npart == 4:
                e(f'v_add_f32 {v(base+j)}, {v(base+j)}, {v(base+4+j)}')
                e(f'v_add_f32 {v(base+8+j)}, {v(base+8+j)}, {v(base+12+j)}')
            else:
                e(f'v_add_f32 {v(base+j)}, {v(base+j)}, {v(base+4+j)}')
        if npart == 4:
            for j in range(4):
                e(f'v_add_f32 {v(base+j)}, {v(base+j)}, {v(base+8+j)}')

    def round_mod(self, base, p0):
        e = self.e
        for rep in range(2):
            e(f'v_cvt_pk_bf16_f32 {v(p0)}, {v(base)}, {v(base+1)}')
            e(f'v_cvt_pk_bf16_f32 {v(p0+1)}, {v(base+2)}, {v(base+3)}')
            self.unpack(p0, base, base + 1)
            self.unpack(p0 + 1, base + 2, base + 3)
            if rep == 0:
                for j in range(4):
                    e(f'v_add_f32 {v(base+j)}, {s_one}, {v(base+j)}')

    def frag_check(self, regs, tmp, reissue, name):
        e = self.e
        chk = e.newlabel(name + '_chk'); ok = e.newlabel(name + '_ok'); stub = e.newlabel(name + '_stub')
        e.label(chk)
        if len(regs) == 1:
            e(f'v_cmp_eq_u32 vcc, -1, {v(regs[0])}')
        else:
            if len(regs) == 2:
                e(f'v_max_u32 {v(tmp)}, {v(regs[0])}, {v(regs[1])}')
            else:
                e(f'v_max3_u32 {v(tmp)}, {v(regs[0])}, {v(regs[1])}, {v(regs[2])}')
                for r in regs[3:]:
                    e(f'v_max_u32 {v(tmp)}, {v(tmp)}, {v(r)}')
            e(f'v_cmp_eq_u32 vcc, -1, {v(tmp)}')
        e(f's_cbranch_vccnz {stub}')
        e.label(ok)
        if isinstance(reissue, str):
            self.stubs.append(('call', stub, chk, ok, reissue))
        else:
            self.stubs.append(('reload', stub, chk, ok, reissue))

    def emit_stubs(self):
        e = self.e
        for st in self.stubs:
            kind = st[0]
            e.flush_hist()
            if kind in ('reload', 'call'):
                _, stub, chk, ok, arg = st
                e.label(stub)
                e(f's_cmp_eq_u32 {s_budget}, 0')
                e(f's_cbranch_scc1 {ok}')
                e(f's_sub_u32 {s_budget}, {s_budget}, 1')
                if kind == 'reload':
                    e('s_waitcnt vmcnt(0)')
                    e('s_sleep 2')
                    for l in arg:
                        e(l, count=False)
                    e('s_waitcnt vmcnt(0)')
                else:
                    e('s_waitcnt vmcnt(0)')
                    e('s_sleep 2')
                    e(f's_call_b64 {s(S_RET,2)}, {arg}')
                e(f's_branch {chk}')
            elif kind == 'seq':
                _, entries = st
                for lab, lines in entries:
                    e.label(lab)
                    for l in lines:
                        e(l, count=False)
                e('s_waitcnt vmcnt(0)')
                e(f's_setpc_b64 {s(S_RET,2)}')
            elif kind == 'code':
                st[1]()

    def dump(self, regs, slot, stride_regs):
        e = self.e
        e('s_nop 7'); e('s_nop 7')
        e(f's_lshl_b32 {T6}, s2, 3')
        e(f's_add_u32 {T6}, {T6}, {s_w}')
        e(f's_mul_i32 {T6}, {T6}, {stride_regs*256}')
        e(f's_add_u32 {T6}, {T6}, {WS_DBG + slot*0x1000000}')
        e('v_lshlrev_b32 v0, 2, v0')
        for i, r in enumerate(regs):
            e(f'buffer_store_dword {v(r)}, v0, {srd(SWS)}, {T6} offen', count=False)
            e(f's_add_u32 {T6}, {T6}, 256')
        e('s_waitcnt vmcnt(0)')
        e('v_lshrrev_b32 v0, 2, v0')

    def prologue(self):
        e = self.e
        e('s_cmp_ge_u32 s2, 256')
        e('s_cbranch_scc1 L_end')
        e(f's_lshr_b32 {s_c}, s2, 3')
        e(f's_and_b32 {T0}, {s_c}, 1')
        e(f's_lshl_b32 {T0}, {T0}, 3')
        e(f's_add_u32 {T0}, {T0}, 16')
        for r, off in ((SWS, 104), (SC, 72), (SWM, 80), (SX, 0), (SWQ, 8), (SWO, 32), (SWG, 48), (SWU, 56), (SWD, 64), (SOUT, 88)):
            e(f's_load_dwordx2 {s(r,2)}, s[0:1], {off}')
        e(f's_load_dwordx2 {s(SWKV,2)}, s[0:1], {T0}')
        if self.o['prof']:
            e('s_memrealtime s[98:99]')
        e('v_lshrrev_b32 v1, 6, v0')
        e('v_and_b32 v0, 63, v0')
        e(f'v_readfirstlane_b32 {s_w}, v1')
        e(f's_and_b32 {s_x}, s2, 7')
        e(f's_lshr_b32 {s_tb}, {s_c}, 2')
        e(f's_and_b32 {s_cb}, {s_c}, 3')
        e(f's_lshr_b32 {s_oct}, {s_c}, 3')
        e(f's_and_b32 {s_nb}, {s_c}, 7')
        e(f's_and_b32 {s_m}, {s_w}, 3')
        e(f's_lshr_b32 {s_kh}, {s_w}, 2')
        if self.o['codepf']:
            lab = e.newlabel('nopf')
            e(f's_cmp_lg_u32 {s_w}, 7')
            e(f's_cbranch_scc1 {lab}')
            e(f's_cmp_ge_u32 {s_c}, (L_code_end-L_pc0)/1024')
            e(f's_cbranch_scc1 {lab}')
            e('s_getpc_b64 s[74:75]')
            e.label('L_pc0')
            e(f's_lshl_b32 {T0}, {s_c}, 10')
            e(f'v_lshl_add_u32 v2, v0, 4, {T0}')
            e('global_load_dword v255, v2, s[74:75]', count=False)
            e.label(lab)
        for r, n in ((SX, 2097152), (SWQ, 524288), (SWKV, 16384), (SWO, 524288), (SWG, 1409024), (SWU, 1409024),
                     (SWD, 1409024), (SC, 1024), (SWM, 3145728), (SOUT, 2097152), (SWS, WS_SIZE)):
            e(f's_mov_b32 s{r+2}, {n}')
            e(f's_mov_b32 s{r+3}, 0x20000')
        e(f's_mov_b32 {s_budget}, {self.o["budget"]}')
        e(f's_mov_b32 s{S_VM}, 0xffff')
        e(f's_mov_b32 s{S_VM+1}, 0xffff')

    def front(self):
        e = self.e; o = self.o
        vL16, vWQ, vW32, vT, vT2, vEP, vC, vHW = 1, 2, 4, 5, 6, 7, 8, 9
        XR, N, SA, CA, G = 16, 32, 64, 72, 80
        e(f'v_lshlrev_b32 {v(vL16)}, 4, v0')
        e(f'v_lshrrev_b32 {v(vT)}, 4, v0')
        e(f'v_lshlrev_b32 {v(vT2)}, 2, {v(vT)}')
        e(f'v_xor_b32 {v(vT2)}, {v(vT2)}, v0')
        e(f'v_and_b32 {v(vT2)}, 15, {v(vT2)}')
        e(f'v_lshlrev_b32 {v(vT2)}, 4, {v(vT2)}')
        e(f'v_lshl_add_u32 {v(vWQ)}, {v(vT)}, 10, {v(vT2)}')
        e(f's_lshl_b32 {T0}, {s_cb}, 8')
        e(f'v_add_u32 {v(vWQ)}, {T0}, {v(vWQ)}')
        e(f'v_lshrrev_b32 {v(vT)}, 1, v0')
        e(f'v_mul_u32_u24 {v(vT)}, 6144, {v(vT)}')
        e(f'v_and_b32 {v(vT2)}, 1, v0')
        e(f'v_lshl_add_u32 {v(vW32)}, {v(vT2)}, 4, {v(vT)}')
        e(f's_lshl_b32 {T0}, {s_x}, 8')
        e(f's_lshl_b32 {T1}, {s_tb}, 5')
        e(f's_add_u32 {T0}, {T0}, {T1}')
        e(f's_lshl_b32 {T1}, {s_w}, 2')
        e(f's_add_u32 {T0}, {T0}, {T1}')
        for i in range(4):
            e(f's_add_u32 {T1}, {s_cb}, {i}')
            e(f's_and_b32 {T1}, {T1}, 3')
            e(f's_add_u32 {T1}, {T1}, {T0}')
            e(f's_lshl_b32 s{S_MU+i}, {T1}, 10')
        e(f's_lshl_b32 {T0}, {s_x}, 3')
        e(f's_add_u32 {T3}, {T0}, {s_tb}')
        e(f's_lshl_b32 {T0}, {T3}, 11')
        e(f's_and_b32 {T1}, {s_cb}, 1')
        e(f's_lshl_b32 {T1}, {T1}, 10')
        e(f's_add_u32 {T0}, {T0}, {T1}')
        e(f's_lshr_b32 {T1}, {s_cb}, 1')
        e(f's_lshl_b32 {T1}, {T1}, 9')
        e(f's_add_u32 {T0}, {T0}, {T1}')
        e(f's_add_u32 {s_act}, {T0}, {WS_KV}')
        e(f's_lshl_b32 {T0}, {s_w}, 10')
        e(f'v_add_u32 v3, {T0}, {v(vL16)}')
        e(f's_lshl_b32 {s_dl}, {s_m}, 12')
        e(f's_lshl_b32 {s_ds}, {s_m}, 14')

        def xload(i):
            e(f'buffer_load_dwordx4 {v(XR+4*i,4)}, {v(vL16)}, {srd(SX)}, s{S_MU+i} offen', tag=f'x{i}')

        def wq_eighth(i, count=True):
            e(f's_add_u32 {T6}, {s_tb}, {i}')
            e(f's_and_b32 {T6}, {T6}, 7')
            e(f's_lshl_b32 {T6}, {T6}, 16')
            e(f's_add_u32 {T6}, {T6}, {s_ds}')
            for j in range(4):
                self.dma(SWQ, vWQ, T6, j * 4096, s_dl, L_WQ + i * 16384 + j * 1024, tag=f'wq{i}', count=count)

        def nonce():
            e(f'v_readfirstlane_b32 {s_nonce}, {v(vEP)}')
            e(f's_mul_i32 {s_nonce}, {s_nonce}, 0x9e3779b1')
            e(f's_add_u32 {s_nonce}, {s_nonce}, 0x7f4a7c15')
            for j in range(4):
                e(f's_bfe_u32 s{S_NB+j}, {s_nonce}, {hex((8<<16)|(8*j))}')

        e('s_waitcnt lgkmcnt(0)')
        self.stamp('kernarg')
        e(f'buffer_load_dword {v(vEP)}, off, {srd(SWS)}, 0 sc1', tag='ep')
        e(f's_cmp_eq_u32 {s_w}, 0')
        e('s_cbranch_scc1 L_w0')
        xload(0)
        e(f's_cmp_lt_u32 {s_w}, 4')
        e('s_cbranch_scc1 L_w123')
        wq_eighth(0, count=False)
        e.label('L_w123')
        for i in (1, 2, 3):
            xload(i)
        e(f's_cmp_lg_u32 {s_w}, 4')
        e('s_cbranch_scc1 L_not4a')
        e(f's_lshl_b32 {T5}, {s_tb}, 11')
        for j in range(16):
            self.dma(SWKV, vL16, T5, 0, None, L_WKV + j * 1024, count=False)
            e(f's_add_u32 {T5}, {T5}, 1024')
            e(f's_and_b32 {T5}, {T5}, 16383')
        e.label('L_not4a')
        e(f's_cmp_lg_u32 {s_w}, 5')
        e('s_cbranch_scc1 L_not5a')
        e(f's_and_b32 {T5}, {T3}, 1')
        e(f's_lshl_b32 {T5}, {T5}, 9')
        e(f'v_lshlrev_b32 {v(vT)}, 3, v0')
        e(f'buffer_load_dwordx2 v[14:15], {v(vT)}, {srd(SC)}, {T5} offen', count=False)
        e.label('L_not5a')
        e('s_branch L_b1')
        e.label('L_w0')
        e.flush_hist()
        e.vm = ['ep']
        e(f's_and_b32 {T4}, {T3}, 3')
        e(f's_lshl_b32 {T5}, {T4}, 8')
        e(f'v_lshlrev_b32 {v(vT)}, 2, v0')
        e(f'buffer_load_dword {v(vC)}, {v(vT)}, {srd(SC)}, {T5} offen', tag='c')
        e(f's_lshr_b32 {T2}, {T3}, 2')
        e(f's_lshl_b32 {T2}, {T2}, 2')
        e(f's_add_u32 {T2}, {T2}, {s_cb}')
        e(f's_mul_i32 {T5}, {T4}, {128*6144}')
        e(f's_lshl_b32 {T1}, {T2}, 5')
        e(f's_add_u32 {T5}, {T5}, {T1}')
        for j in range(4):
            self.dma(SWM, vW32, T5, j * 32 * 6144, None, L_MW + j * 1024, tag='mw')
        e('v_mov_b32 v10, -1')
        e('v_mov_b32 v11, -1')
        e(f'v_lshlrev_b32 {v(vT2)}, 3, v0')
        e(f'buffer_store_dwordx2 v[10:11], {v(vT2)}, {srd(SWS)}, {s_act} offen sc1', tag='clr')
        xload(0)
        e(f's_lshl_b32 {T4}, {T4}, 12')
        e(f's_lshl_b32 {T2}, {T2}, 6')
        e(f's_add_u32 {T4}, {T4}, {T2}')
        e(f's_add_u32 {T4}, {T4}, {WS_MODA}')
        e(f'v_lshrrev_b32 v12, 4, v0')
        e(f'v_and_b32 v13, 15, v0')
        e(f'v_lshlrev_b32 v13, 3, v13')
        e(f'v_lshl_add_u32 v13, v12, 8, v13')
        e(f'v_add_u32 v13, {L_MW}, v13')
        e(f'v_lshlrev_b32 v12, 4, v12')
        e(f'v_add_u32 v12, {L_SB}, v12')
        e(f'v_add_u32 {v(vT)}, {L_SB}, {v(vT)}')
        e.wait_vm('c')
        nonce()
        self.unpack(vC, 10, 11)
        self.silu(10, 14); self.silu(11, 15)
        e('v_cvt_pk_bf16_f32 v10, v10, v11')
        e(f'ds_write_b32 {v(vT)}, v10')
        for ks in range(4):
            e(f'ds_read_b128 {v(96+4*ks,4)}, v12 offset:{ks*64}')
        e.wait_vm('clr')
        for ks in range(4):
            e(f'ds_read_b64_tr_b16 {v(112+4*ks,2)}, v13 offset:{ks*1024}')
            e(f'ds_read_b64_tr_b16 {v(114+4*ks,2)}, v13 offset:{ks*1024+128}', tag=f'mw{ks}')
        for ks in range(4):
            e.wait_lg(f'mw{ks}')
            e(f'v_mfma_f32_16x16x32_bf16 v[128:131], {v(96+4*ks,4)}, {v(112+4*ks,4)}, ' + ('0' if ks == 0 else 'v[128:131]'))
        self.tag_and_store(128, 10, 11, T4)
        for i in (1, 2, 3):
            xload(i)
        e('s_waitcnt vmcnt(3)')
        self.sleep(o['dly_moda'])
        e.label('L_b1')
        e.flush_hist()
        e.vm = ['x0', 'x1', 'x2', 'x3']
        e('s_barrier')
        self.stamp('B1')
        gl = [f'buffer_load_dwordx4 {v(G+4*p,4)}, v3, {srd(SWS)}, {T4} offen sc1' for p in range(4)]
        gloads = []
        for p in range(4):
            gloads += [f's_mov_b32 {T4}, {WS_MODA + p*4096}', gl[p]]
        e(f's_cmp_ge_u32 {s_w}, 4')
        e('s_cbranch_scc1 L_nog')
        for l in gloads:
            e(l, count=False)
        e('s_waitcnt vmcnt(4)')
        e('s_branch L_g1')
        e.label('L_nog')
        e('s_waitcnt vmcnt(0)')
        e.label('L_g1')
        e.vm = []
        nonce()
        for i in range(4):
            for j in range(4):
                self.unpack(XR + 4 * i + j, N + 8 * i + 2 * j, N + 8 * i + 2 * j + 1)
        for i in range(4):
            e(f'v_add_f32 {v(XR+i)}, {v(N+8*i)}, {v(N+8*i+1)}')
        for j in range(2, 8):
            for i in range(4):
                e(f'v_add_f32 {v(XR+i)}, {v(XR+i)}, {v(N+8*i+j)}')
        e(f's_cmp_lt_u32 {s_w}, 4')
        e('s_cbranch_scc1 L_nl1')
        wq_eighth(1, count=False)
        wq_eighth(2, count=False)
        e.label('L_nl1')
        self.red4(XR, XR + 1, XR + 2, XR + 3)
        e(f'v_mul_f32 {v(XR)}, {fbits(1.0/512)}, {v(XR)}')
        for i, ln in enumerate((0, 32, 16, 48)):
            e(f'v_readlane_b32 s{S_MU+i}, {v(XR)}, {ln}')
        for i in range(4):
            for j in range(8):
                e(f'v_subrev_f32 {v(N+8*i+j)}, s{S_MU+i}, {v(N+8*i+j)}')
        for i in range(4):
            e(f'v_mul_f32 {v(XR+i)}, {v(N+8*i)}, {v(N+8*i)}')
        for j in range(1, 8):
            for i in range(4):
                e(f'v_fmac_f32 {v(XR+i)}, {v(N+8*i+j)}, {v(N+8*i+j)}')
        self.red4(XR, XR + 1, XR + 2, XR + 3)
        e(f'v_mov_b32 {v(XR+1)}, {fbits(1e-5)}')
        e(f'v_fmac_f32 {v(XR+1)}, {fbits(1.0/512)}, {v(XR)}')
        e(f'v_rsq_f32 {v(XR)}, {v(XR+1)}')
        for i, ln in enumerate((0, 32, 16, 48)):
            e(f'v_readlane_b32 s{S_MU+i}, {v(XR)}, {ln}')
        for i in range(4):
            for j in range(8):
                e(f'v_mul_f32 {v(N+8*i+j)}, s{S_MU+i}, {v(N+8*i+j)}')
        e(f's_lshl_b32 {T0}, {s_tb}, 3')
        e(f'v_subrev_u32 {v(vHW)}, {T0}, v0')
        e(f'v_and_b32 {v(vHW)}, 63, {v(vHW)}')
        e(f'v_lshlrev_b32 {v(vHW)}, 9, {v(vHW)}')
        e(f'v_add_u32 {v(vHW)}, {L_H}, {v(vHW)}')
        e(f'v_and_b32 {v(vT)}, 7, v0')
        e(f's_lshl_b32 {T0}, {s_w}, 2')
        for i in range(4):
            e(f's_add_u32 {T1}, {s_cb}, {i}')
            e(f's_and_b32 {T1}, {T1}, 3')
            e(f's_add_u32 {T1}, {T1}, {T0}')
            e(f'v_xor_b32 {v(vT2)}, {T1}, {v(vT)}')
            e(f'v_lshl_add_u32 {v(XR+i)}, {v(vT2)}, 4, {v(vHW)}')
        e(f'v_lshlrev_b32 {v(vT)}, 5, v0')
        e(f'v_add_u32 {v(vT)}, {L_STGA}, {v(vT)}')
        e(f's_cmp_ge_u32 {s_w}, 4')
        e('s_cbranch_scc1 L_ld2')
        e(f's_cmp_ge_u32 {s_w}, 2')
        e(f's_cselect_b32 {s_one}, 1.0, 0')
        e('s_waitcnt vmcnt(0)')
        self.gather_check(G, 4, vT2, gloads, 'ga')
        self.round_mod(G, G + 4)
        e(f'v_add_u32 v3, {L_STGA}, v3')
        e(f'ds_write_b128 v3, {v(G,4)}')
        e('s_branch L_b2')
        e.label('L_ld2')
        e.flush_hist()
        e(f's_cmp_lg_u32 {s_w}, 4')
        e('s_cbranch_scc1 L_not4b')
        e(f'v_lshrrev_b32 v12, 4, v0')
        e(f'v_and_b32 v13, 15, v0')
        e(f'v_lshlrev_b32 v13, 3, v13')
        e(f'v_lshl_add_u32 v13, v12, 8, v13')
        e(f'v_add_u32 v13, {L_WKV}, v13')
        for ks in range(16):
            e(f'ds_read_b64_tr_b16 {v(176+4*ks,2)}, v13 offset:{ks*1024}')
            e(f'ds_read_b64_tr_b16 {v(178+4*ks,2)}, v13 offset:{ks*1024+128}')
        e('s_branch L_b2')
        e.label('L_not4b')
        e(f's_cmp_lg_u32 {s_w}, 5')
        e('s_cbranch_scc1 L_b2')
        self.unpack(14, 10, 11); self.unpack(15, 12, 13)
        for r in (10, 11, 12, 13):
            self.silu(r, 14)
        e('v_cvt_pk_bf16_f32 v14, v10, v11')
        e('v_cvt_pk_bf16_f32 v15, v12, v13')
        e.label('L_b2')
        e.flush_hist()
        e('s_waitcnt lgkmcnt(0)')
        e('s_barrier')
        self.stamp('B2')
        e(f'ds_read_b128 {v(SA,4)}, {v(vT)}')
        e(f'ds_read_b128 {v(CA,4)}, {v(vT)} offset:2048', tag='m0')
        e(f'ds_read_b128 {v(SA+4,4)}, {v(vT)} offset:16')
        e(f'ds_read_b128 {v(CA+4,4)}, {v(vT)} offset:2064', tag='m1')
        e(f's_cmp_lt_u32 {s_w}, 4')
        e('s_cbranch_scc1 L_nl2')
        wq_eighth(3, count=False)
        wq_eighth(4, count=False)
        e.label('L_nl2')
        e.wait_lg('m1')
        for i in range(4):
            for j in range(0, 8, 2):
                e(f'v_pk_fma_f32 {v(N+8*i+j,2)}, {v(N+8*i+j,2)}, {v(CA+j,2)}, {v(SA+j,2)}')
            for j in range(4):
                e(f'v_cvt_pk_bf16_f32 {v(N+8*i+j)}, {v(N+8*i+2*j)}, {v(N+8*i+2*j+1)}')
            e(f'ds_write_b128 {v(XR+i)}, {v(N+8*i,4)}')
        e('s_waitcnt vmcnt(8) lgkmcnt(0)')
        e('s_barrier')
        self.stamp('B3')
        e(f's_cmp_lt_u32 {s_w}, 4')
        e('s_cbranch_scc1 L_qw')
        e(f's_cmp_lg_u32 {s_w}, 4')
        e('s_cbranch_scc1 L_not4c')
        e('s_setprio 3')
        e(f's_lshr_b32 {T0}, {s_cb}, 1')
        e(f's_lshl_b32 {T0}, {T0}, 4')
        e(f'v_and_b32 v10, 15, v0')
        e(f'v_add_u32 v10, {T0}, v10')
        e(f'v_lshrrev_b32 v12, 4, v0')
        e(f'v_xor_b32 v10, v10, v12')
        e(f'v_lshlrev_b32 v10, 4, v10')
        e(f'v_lshl_add_u32 v10, v12, 9, v10')
        e(f'v_add_u32 v10, {L_H}, v10')
        e(f'v_xor_b32 v11, 64, v10')
        for ks in range(16):
            e(f'ds_read_b128 {v(104+4*ks,4)}, v{10+ks%2} offset:{ks*2048}', tag=f'h{ks}')
        e(f'v_and_b32 v13, 15, v0')
        e(f'v_lshlrev_b32 v13, 4, v13')
        e(f'v_and_b32 v10, 1, v12')
        e(f'v_lshrrev_b32 v11, 1, v12')
        e(f's_bitcmp1_b32 {s_cb}, 0')
        e('s_cbranch_scc1 L_isv')
        lgsave = list(e.lg)
        for isv in (0, 1):
            if isv:
                e.label('L_isv'); e.flush_hist(); e.lg = list(lgsave)
            a, b = (11, 10) if isv else (10, 11)
            e(f'v_lshl_add_u32 v13, v{a}, 8, v13')
            e(f'v_lshl_add_u32 v13, v{b}, 3, v13')
            for ks in range(16):
                e.wait_lg(f'h{ks}')
                acc = 240 + 4 * (ks % 2)
                W, H = v(176 + 4 * ks, 4), v(104 + 4 * ks, 4)
                A, B = (H, W) if isv else (W, H)
                e(f'v_mfma_f32_16x16x32_bf16 {v(acc,4)}, {A}, {B}, ' + ('0' if ks < 2 else v(acc, 4)))
            e(f'v_pk_add_f32 v[240:241], v[240:241], v[244:245]')
            e(f'v_pk_add_f32 v[242:243], v[242:243], v[246:247]')
            if not isv:
                for j in range(4):
                    e(f'v_mul_f32 {v(240+j)}, {fbits(0.25*1.4426950408889634)}, {v(240+j)}')
                e('s_branch L_kvst')
        e.label('L_kvst')
        e('v_cvt_pk_bf16_f32 v240, v240, v241')
        e('v_cvt_pk_bf16_f32 v241, v242, v243')
        e(f'buffer_store_dwordx2 v[240:241], v13, {srd(SWS)}, {s_act} offen sc1', count=False)
        e('s_setprio 0')
        e.label('L_not4c')
        e.flush_hist()
        for i in (5, 6, 7):
            wq_eighth(i, count=False)
        self.att_setup()
        e('s_waitcnt vmcnt(0)')
        self.sleep(o['dly_kv'])
        e('s_barrier')
        self.stamp('Bw2')
        self.kv_prologue()
        vmsave = list(e.vm)
        e('s_barrier')
        e(f's_lshl_b32 {T0}, {s_m}, 11')
        e(f'v_lshl_add_u32 v40, v0, 4, {T0}')
        e(f'ds_read_b128 v[16:19], v40 offset:{L_QX+1024}')
        e(f'ds_read_b128 v[20:23], v40 offset:{L_QX}')
        e('s_waitcnt lgkmcnt(0)')
        e('s_branch L_att')
        e.label('L_qw')
        e.flush_hist(); e.vm = []; e.lg = []
        self.nstamp -= 1 if o['prof'] else 0
        if o['prof']:
            self.stamp_names.pop()
        vA, vA2, vH = 240, 241, 242
        e('v_bfe_u32 v10, v0, 2, 2')
        e('v_lshrrev_b32 v11, 5, v0')
        e('v_lshl_add_u32 v11, v11, 3, v10')
        e(f'v_lshlrev_b32 {v(vA)}, 8, v11')
        e(f'v_xor_b32 v10, {s_m}, v10')
        e(f'v_lshl_add_u32 {v(vA)}, v10, 6, {v(vA)}')
        e('v_bfe_u32 v10, v0, 4, 1')
        e(f'v_lshl_add_u32 {v(vA)}, v10, 5, {v(vA)}')
        e('v_and_b32 v10, 3, v0')
        e(f'v_lshl_add_u32 {v(vA)}, v10, 3, {v(vA)}')
        e(f'v_add_u32 {v(vA2)}, 65536, {v(vA)}')
        e('v_and_b32 v10, 31, v0')
        e('v_lshrrev_b32 v11, 5, v0')
        e('v_xor_b32 v10, v10, v11')
        e('v_lshlrev_b32 v10, 4, v10')
        e('v_lshl_add_u32 v10, v11, 9, v10')
        e(f'v_add_u32 {v(vH)}, {L_H}, v10')
        for j in (1, 2, 3):
            e(f'v_xor_b32 {v(vH+j)}, {32*j}, {v(vH)}')
        RING = 4

        def qreads(ks):
            r = 176 + 8 * (ks % RING)
            base = vA if ks < 16 else vA2
            off = (ks % 16) * 4096
            e(f'ds_read_b64_tr_b16 {v(r,2)}, {v(base)} offset:{off}')
            e(f'ds_read_b64_tr_b16 {v(r+2,2)}, {v(base)} offset:{off+1024}')
            e(f'ds_read_b128 {v(r+4,4)}, {v(vH+ks%4)} offset:{ks*1024}', tag=f'q{ks}')

        def qseg(k0, k1):
            for ks in range(k0, min(k0 + RING - 1, k1)):
                qreads(ks)
            for ks in range(k0, k1):
                if ks + RING - 1 < k1:
                    qreads(ks + RING - 1)
                e.wait_lg(f'q{ks}')
                r = 176 + 8 * (ks % RING)
                e(f'v_mfma_f32_32x32x16_bf16 v[40:55], {v(r,4)}, {v(r+4,4)}, ' + ('0' if ks == 0 else 'v[40:55]'))
        qseg(0, 12)
        self.att_setup()
        e('s_barrier')
        self.stamp('Bw2')
        self.kv_prologue()
        assert e.vm == vmsave
        qseg(12, 32)
        for j in range(8):
            e(f'v_cvt_pk_bf16_f32 {v(16+j)}, {v(40+2*j)}, {v(41+2*j)}')
        e(f's_lshl_b32 {T0}, {s_m}, 11')
        e(f'v_lshl_add_u32 v40, v0, 4, {T0}')
        e(f'ds_write_b128 v40, v[16:19] offset:{L_QX}')
        e(f'ds_write_b128 v40, v[20:23] offset:{L_QX+1024}')
        e('s_waitcnt lgkmcnt(0)')
        e('s_barrier')
        e.label('L_att')
        e.flush_hist()

    vKV, vIDX, vOA, vW32, vYA, vHA, vSTA, vWO, vWG, vWU = 1, 2, 3, 4, 5, 6, 7, 8, 9, 10
    vTR = 11
    vTMP = 12
    vTMP2 = 13
    Q0, Q1 = 16, 20
    GB, XRES = 24, 32
    S0, S1, O0, O1, KVB, WOA = 40, 56, 72, 88, 104, 176

    def att_setup(self):
        e = self.e; D = self.o['D']
        t, t2, t3 = 24, 25, 26
        e(f'v_and_b32 {v(t)}, 15, v0')
        e(f'v_lshlrev_b32 {v(t)}, 4, {v(t)}')
        e(f'v_lshrrev_b32 {v(t2)}, 5, v0')
        e(f'v_lshl_add_u32 {v(t2)}, {v(t2)}, 8, {v(t)}')
        e(f'v_bfe_u32 {v(t3)}, v0, 4, 1')
        e(f'v_lshl_add_u32 {v(self.vKV)}, {v(t3)}, 9, {v(t2)}')
        e(f's_lshl_b32 {s_kvb}, {s_kh}, 16')
        e(f's_add_u32 {s_kvb}, {s_kvb}, {WS_KV}')
        e(f'v_mov_b32 {v(self.vIDX)}, 0xdddddddd')
        e(f's_lshl_b32 {T0}, {s_x}, 3')
        e(f's_add_u32 {T0}, {T0}, {s_tb}')
        e(f's_lshl_b32 {T0}, {T0}, 15')
        e(f's_lshl_b32 {T1}, {s_cb}, 2')
        e(f's_add_u32 {T1}, {T1}, {s_m}')
        e(f's_lshl_b32 {T1}, {T1}, 1')
        e(f's_add_u32 {T1}, {T1}, {s_kh}')
        e(f's_lshl_b32 {T1}, {T1}, 9')
        e(f's_add_u32 {T0}, {T0}, {T1}')
        e(f's_add_u32 {T0}, {T0}, {WS_O}')
        e(f'v_lshl_add_u32 {v(self.vOA)}, {v(t3)}, 14, {v(t2)}')
        e(f'v_add_u32 {v(self.vOA)}, {T0}, {v(self.vOA)}')
        e(f's_lshl_b32 {T0}, {s_x}, 3')
        e(f's_add_u32 {T0}, {T0}, {s_w}')
        e(f's_mul_i32 {T0}, {T0}, {2*44032}')
        e(f's_mul_i32 {T1}, {s_c}, 1536')
        e(f's_add_u32 {T0}, {T0}, {T1}')
        e(f's_add_u32 {T0}, {T0}, {WS_HH}')
        e(f's_cmp_ge_u32 {s_c}, 29')
        e(f's_cselect_b32 {T0}, {OOB}, {T0}')
        e(f'v_mul_u32_u24 {v(self.vHA)}, 44032, {v(t3)}')
        e(f'v_add3_u32 {v(self.vHA)}, {v(self.vHA)}, {v(t2)}, {T0}')
        e(f's_lshl_b32 {T0}, {s_x}, 2')
        e(f's_add_u32 {T0}, {T0}, {s_oct}')
        e(f's_lshl_b32 {T0}, {T0}, 1')
        e(f's_lshr_b32 {T1}, {s_m}, 1')
        e(f's_add_u32 {T1}, {T1}, {T0}')
        e(f's_lshl_b32 {T1}, {T1}, 15')
        e(f's_lshl_b32 {T2}, {s_nb}, 1')
        e(f's_add_u32 {T2}, {T2}, {s_kh}')
        e(f's_lshl_b32 {T2}, {T2}, 11')
        e(f's_add_u32 {T1}, {T1}, {T2}')
        e(f's_and_b32 {T2}, {s_m}, 1')
        e(f's_lshl_b32 {T2}, {T2}, 8')
        e(f's_add_u32 {T1}, {T1}, {T2}')
        e(f's_add_u32 {T1}, {T1}, {WS_Y}')
        e(f'v_lshrrev_b32 {v(t3)}, 4, v0')
        e(f'v_lshl_add_u32 {v(self.vYA)}, {v(t3)}, 9, {v(t)}')
        e(f'v_add_u32 {v(self.vYA)}, {T1}, {v(self.vYA)}')
        e(f's_lshl_b32 {T0}, {T0}, 11')
        e(f's_lshl_b32 {T1}, {s_nb}, 8')
        e(f's_add_u32 {T0}, {T0}, {T1}')
        e(f's_add_u32 {T0}, {T0}, {WS_STATS}')
        e(f's_cmp_eq_u32 {s_w}, 7')
        e(f's_cselect_b32 {T0}, {T0}, {OOB}')
        e(f'v_and_b32 {v(t)}, 31, v0')
        e(f'v_lshlrev_b32 {v(t)}, 3, {v(t)}')
        e(f'v_lshrrev_b32 {v(t2)}, 5, v0')
        e(f'v_lshl_add_u32 {v(t)}, {v(t2)}, 11, {v(t)}')
        e(f'v_add_u32 {v(self.vSTA)}, {T0}, {v(t)}')
        e(f'v_bfe_u32 {v(t)}, v0, 1, 2')
        e(f'v_xor_b32 {v(t)}, {v(t)}, {v(t3)}')
        e(f'v_lshlrev_b32 {v(t)}, 5, {v(t)}')
        e(f'v_lshrrev_b32 {v(t2)}, 3, v0')
        e(f'v_lshl_add_u32 {v(t)}, {v(t2)}, 10, {v(t)}')
        e(f'v_and_b32 {v(t2)}, 1, v0')
        e(f'v_lshl_add_u32 {v(t)}, {v(t2)}, 4, {v(t)}')
        e(f's_lshl_b32 {T0}, {s_nb}, 7')
        e(f'v_add_u32 {v(self.vWO)}, {T0}, {v(t)}')
        e(f's_mul_i32 {T0}, {s_c}, 96')
        e(f'v_lshl_add_u32 {v(t2)}, {v(t2)}, 4, {T0}')
        e(f'v_lshrrev_b32 {v(t)}, 1, v0')
        e(f'v_mul_u32_u24 {v(self.vWG)}, 2752, {v(t)}')
        e(f'v_add_u32 {v(self.vWG)}, {v(self.vWG)}, {v(t2)}')
        e(f'v_xor_b32 {v(t)}, 4, {v(t)}')
        e(f'v_mul_u32_u24 {v(self.vWU)}, 2752, {v(t)}')
        e(f'v_add_u32 {v(self.vWU)}, {v(self.vWU)}, {v(t2)}')
        e(f'v_bfe_u32 {v(t)}, v0, 2, 3')
        e(f'v_lshrrev_b32 {v(t2)}, 5, v0')
        e(f'v_lshl_add_u32 {v(t2)}, {v(t2)}, 4, {v(t)}')
        e(f'v_lshlrev_b32 {v(t2)}, 7, {v(t2)}')
        e(f'v_lshrrev_b32 {v(t)}, 1, {v(t)}')
        e(f's_lshl_b32 {T0}, {s_kh}, 1')
        e(f'v_xor_b32 {v(t)}, {T0}, {v(t)}')
        e(f'v_lshl_add_u32 {v(t2)}, {v(t)}, 5, {v(t2)}')
        e(f'v_and_b32 {v(t)}, 3, v0')
        e(f'v_lshl_add_u32 {v(t2)}, {v(t)}, 3, {v(t2)}')
        e(f's_lshl_b32 {T0}, {s_kh}, 12')
        e(f'v_add_u32 {v(self.vTR)}, {T0}, {v(t2)}')
        e(f'v_and_b32 {v(t)}, 27, v0')
        e(f'v_cmp_eq_u32 vcc, 16, {v(t)}')
        e(f'v_mov_b32 {v(t2)}, 0x3f803f80')
        e(f'v_cndmask_b32 {v(t)}, 0, {v(t2)}, vcc')
        for b in range(D):
            for j in range(8):
                e(f'v_mov_b32 {v(self.KVB+12*b+4+j)}, {v(t)}')
        for j in range(32):
            e(f'v_mov_b32 {v(self.O0+j)}, 0')
        for j in range(4):
            e(f'v_mov_b32 {v(self.GB+j)}, -1')

    def kv_lines(self, t, buf=None, soff=None):
        b = self.KVB + 12 * ((t % self.o['D']) if buf is None else buf)
        L = []
        if soff is None:
            L.append(f's_add_u32 {T7}, {s_kvb}, {t*2048}'); soff = T7
        L.append(f'buffer_load_dwordx4 {v(b,4)}, {v(self.vKV)}, {srd(SWS)}, {soff} offen sc1')
        L.append(f's_mov_b64 exec, {s(S_VM,2)}')
        L.append(f'buffer_load_dwordx4 {v(b+4,4)}, {v(self.vKV)}, {srd(SWS)}, {soff} offen offset:1024 sc1')
        L.append(f'buffer_load_dwordx4 {v(b+8,4)}, {v(self.vKV)}, {srd(SWS)}, {soff} offen offset:1536 sc1')
        L.append('s_mov_b64 exec, -1')
        return L

    def kv_load(self, t):
        for l in self.kv_lines(t):
            self.e(l, tag=f'kv{t}')

    def kv_prologue(self):
        self.e.vm = []
        for t in range(self.o['D']):
            self.kv_load(t)

    def kv_ready(self, t):
        e = self.e
        e.wait_vm(f'kv{t}')
        if t < self.o['nchk']:
            b = self.KVB + 12 * (t % self.o['D'])
            self.frag_check([b, b + 4, b + 8], self.vTMP, self.kv_lines(t), 'kv')

    def tr64(self, dst, step_off, region_reg_base):
        e = self.e
        for j in range(4):
            e(f'ds_read_b64_tr_b16 {v(dst+4*j,2)}, {v(region_reg_base+j)} offset:{step_off}')
            e(f'ds_read_b64_tr_b16 {v(dst+4*j+2,2)}, {v(region_reg_base+j)} offset:{step_off+1024}', tag=f'w{dst+4*j}')

    def tr64_addr(self, base, region):
        e = self.e
        e(f'v_add_u32 {v(base)}, {region}, {v(self.vTR)}')
        for j in (1, 2, 3):
            e(f'v_xor_b32 {v(base+j)}, {32*j}, {v(base)}')

    def w64_dma(self, rs, step, halfrows, lds_addr, tag=None):
        self.dma(rs, self.vWO, s_ds, step * 32768, s_dl, lds_addr, tag=tag)

    def w64_bases(self, halfrows):
        e = self.e
        e(f's_lshl_b32 {s_dl}, {s_w}, 10')
        e(f's_mul_i32 {s_ds}, {s_kh}, {halfrows*1024}')
        e(f's_lshl_b32 {T0}, {s_m}, 13')
        e(f's_add_u32 {s_ds}, {s_ds}, {T0}')

    def attention(self):
        e = self.e; o = self.o; D = o['D']
        S = (self.S0, self.S1); O = (self.O0, self.O1); Q = (self.Q0, self.Q1)
        NT = 32
        kb = lambda t: self.KVB + 12 * (t % D)
        QK = lambda d, t, q: e(f'v_mfma_f32_32x32x16_bf16 {v(d,16)}, {v(kb(t),4)}, {v(q,4)}, 0')
        SM = lambda d, a, b: e(f'v_smfmac_f32_32x32x32_bf16 {v(d,16)}, {v(a,4)}, {v(b,8)}, {v(self.vIDX)}')
        self.stamp('att0')
        e('s_setprio 3')
        self.w64_bases(256)
        GB = self.GB
        gloads = []
        for p in range(2):
            gloads += [f's_mov_b32 {T7}, {WS_MODB + p*8192}',
                       f'buffer_load_dwordx4 {v(GB+4*p,4)}, v36, {srd(SWS)}, {T7} offen sc1']
        self.gb_loads = gloads

        def side(t):
            if t < 4:
                for i in (2 * t, 2 * t + 1):
                    self.w64_dma(SWO, i, 256, (L_WOA + i * 8192) if i < 4 else (L_WOB + (i - 4) * 8192))
            if t == 4:
                e(f's_lshl_b32 {T0}, {s_x}, 3')
                e(f's_add_u32 {T0}, {T0}, {s_tb}')
                e(f's_and_b32 {T1}, {T0}, 1')
                e(f's_lshr_b32 {T0}, {T0}, 1')
                e(f's_lshl_b32 {T0}, {T0}, 2')
                e(f's_add_u32 {T0}, {T0}, {s_cb}')
                e(f's_lshl_b32 {T2}, {T1}, 3')
                e(f's_add_u32 {T2}, {T2}, {s_w}')
                e(f's_mul_i32 {T2}, {T2}, {32*6144}')
                e(f's_lshl_b32 {T3}, {T0}, 5')
                e(f's_add_u32 {T2}, {T2}, {T3}')
                self.dma(SWM, self.vW32, T2, 2048, s_dl, L_MBW)
                e(f's_lshl_b32 {T1}, {T1}, 13')
                e(f's_lshl_b32 {T0}, {T0}, 6')
                e(f's_add_u32 {T0}, {T0}, {T1}')
                e(f's_add_u32 {T5}, {T0}, {WS_MODB}')
                e(f'buffer_store_dwordx4 {v(GB,4)}, {v(self.vOA)}, {srd(SWS)}, 0 offen sc1')
                e(f'buffer_store_dwordx4 {v(GB,4)}, {v(self.vYA)}, {srd(SWS)}, 0 offen sc1')
            if t == 5:
                e(f's_cmp_eq_u32 {s_c}, 28')
                e(f's_cselect_b32 {T4}, {OOB}, 0')
                e(f'buffer_store_dwordx4 {v(GB,4)}, {v(self.vHA)}, {srd(SWS)}, 0 offen sc1')
                e(f'buffer_store_dwordx4 {v(GB,4)}, {v(self.vHA)}, {srd(SWS)}, 0 offen offset:512 sc1')
                e(f'buffer_store_dwordx4 {v(GB,4)}, {v(self.vHA)}, {srd(SWS)}, {T4} offen offset:1024 sc1')
                e(f'buffer_store_dwordx2 {v(GB,2)}, {v(self.vSTA)}, {srd(SWS)}, 0 offen sc1', tag='clr')
            if t == 9:
                e('s_setprio 2')
            if t == 10:
                e.wait_vm('clr')
                e('s_barrier')
                lab = e.newlabel('nomb')
                e(f's_cmp_lg_u32 {s_w}, 5')
                e(f's_cbranch_scc1 {lab}')
                W = self.WOA
                e(f'v_lshlrev_b32 {v(self.vTMP)}, 3, v0')
                e(f'ds_write_b64 {v(self.vTMP)}, v[14:15] offset:{L_SB2}')
                e(f'v_lshrrev_b32 v14, 4, v0')
                e(f'v_and_b32 v15, 15, v0')
                e(f'v_lshlrev_b32 v15, 3, v15')
                e(f'v_lshl_add_u32 v15, v14, 8, v15')
                e(f'v_lshlrev_b32 v14, 4, v14')
                for ks in range(8):
                    e(f'ds_read_b128 {v(W+8*ks,4)}, v14 offset:{L_SB2+ks*64}')
                    e(f'ds_read_b64_tr_b16 {v(W+8*ks+4,2)}, v15 offset:{L_MBW+ks*1024}')
                    e(f'ds_read_b64_tr_b16 {v(W+8*ks+6,2)}, v15 offset:{L_MBW+ks*1024+128}')
                e('s_waitcnt lgkmcnt(0)')
                for ks in range(8):
                    e(f'v_mfma_f32_16x16x32_bf16 v[240:243], {v(W+8*ks,4)}, {v(W+8*ks+4,4)}, ' + ('0' if ks == 0 else 'v[240:243]'))
                self.tag_and_store(240, 14, 15, T5)
                e.label(lab)
                self.tr64_addr(240, L_WOA)
                for i in range(2):
                    self.tr64(self.WOA + 16 * i, i * 8192, 240)
            if t == 11:
                for i in range(2, 4):
                    self.tr64(self.WOA + 16 * i, i * 8192, 240)
            if t == 12:
                e('s_waitcnt lgkmcnt(0)')
                e('s_barrier')
                e('s_setprio 1')
                e(f's_lshl_b32 {T5}, {s_w}, 11')
                e(f's_mul_i32 {T4}, {s_w}, {64*2752}')
            if t in (13, 15, 17, 19):
                i = (t - 13) // 2
                mat, rb = i % 2, i // 2
                for tl in range(3):
                    self.dma(SWU if mat else SWG, self.vWU if mat else self.vWG, T4, rb * 32 * 2752 + 32 * tl,
                             T5, L_WGU + tl * 32768 + mat * 16384 + rb * 1024)
            if t == 24:
                e(f's_mul_i32 {T0}, {s_c}, {43*1024}')
                e(f's_lshl_b32 {T1}, {s_w}, 7')
                e(f's_add_u32 {T0}, {T0}, {T1}')
                e(f'v_min_u32 {v(self.vTMP2)}, 42, v0')
                e(f'v_lshlrev_b32 {v(self.vTMP2)}, 10, {v(self.vTMP2)}')
                e(f'buffer_load_dword v37, {v(self.vTMP2)}, {srd(SWD)}, {T0} offen')
            if t == 27:
                e(f's_lshl_b32 {T0}, {s_w}, 10')
                e(f'v_lshl_add_u32 v36, v0, 4, {T0}')
                for l in gloads:
                    e(l, tag='gb')
                e(f's_lshl_b32 {T0}, {s_x}, 2')
                e(f's_add_u32 {T0}, {T0}, {s_oct}')
                e(f's_lshl_b32 {T0}, {T0}, 2')
                e(f's_add_u32 {T0}, {T0}, {s_m}')
                e(f's_lshl_b32 {s_act}, {T0}, 14')
                e(f's_lshl_b32 {T1}, {s_nb}, 1')
                e(f's_add_u32 {T1}, {T1}, {s_kh}')
                e(f's_lshl_b32 {T1}, {T1}, 6')
                e(f's_add_u32 {T1}, {T1}, {s_act}')
                e(f'v_and_b32 v38, 15, v0')
                e(f'v_lshl_add_u32 v38, v38, 10, {T1}')
                e(f'v_lshrrev_b32 {v(self.vTMP2)}, 4, v0')
                e(f'v_lshl_add_u32 {v(self.vTMP2)}, {v(self.vTMP2)}, 3, v38')
                e(f'buffer_load_dwordx2 {v(self.XRES,2)}, {v(self.vTMP2)}, {srd(SX)}, 0 offen')
                e(f'buffer_load_dwordx2 {v(self.XRES+2,2)}, {v(self.vTMP2)}, {srd(SX)}, 0 offen offset:32')
            if t == 29:
                e('s_setprio 0')

        self.kv_ready(0)
        QK(S[0], 0, Q[0])
        for t in range(NT):
            for a in range(2):
                cur, oth = S[a], S[1 - a]
                for r in range(16):
                    if r == 2:
                        if a == 0 and t > 0:
                            SM(O[1], kb(t - 1) + 8, oth + 8)
                            if t - 1 + D < NT:
                                self.kv_load(t - 1 + D)
                        if a == 1:
                            SM(O[0], kb(t) + 8, oth + 8)
                            if t + 1 < NT:
                                self.kv_ready(t + 1)
                    if r == 5:
                        if a == 0:
                            QK(oth, t, Q[1])
                        elif t + 1 < NT:
                            QK(oth, t + 1, Q[0])
                    if r == 10:
                        SM(O[a], kb(t) + 4, cur)
                        if a == 0:
                            side(t)
                    e(f'v_exp_f32 {v(cur+r)}, {v(cur+r)}')
        SM(O[1], kb(NT - 1) + 8, S[1] + 8)
        self.stamp('att1')

    def att_epilogue(self):
        e = self.e; o = self.o
        O0, O1, S0 = self.O0, self.O1, self.S0
        t, t2 = self.vTMP, self.vTMP2
        e(f's_mul_i32 {T0}, {s_w}, 2304')
        e(f's_add_u32 {T0}, {T0}, {L_EX}')
        e(f'v_lshl_add_u32 {v(t)}, v0, 4, {T0}')
        e(f'v_lshl_add_u32 {v(t2)}, v0, 2, {T0}')
        e(f's_xor_b32 {T1}, {s_w}, 4')
        e(f's_mul_i32 {T1}, {T1}, 2304')
        e(f's_add_u32 {T1}, {T1}, {L_EX}')
        e(f'v_lshl_add_u32 v14, v0, 4, {T1}')
        e(f'v_lshl_add_u32 v15, v0, 2, {T1}')
        e(f'ds_write_b128 {v(t)}, {v(O1,4)}')
        e(f'ds_write_b128 {v(t)}, {v(O1+4,4)} offset:1024')
        e(f'ds_write_b32 {v(t2)}, {v(O1+8)} offset:2048')
        e('s_waitcnt vmcnt(0) lgkmcnt(0)')
        e('s_barrier')
        e(f'ds_read_b32 {v(S0+8)}, v15 offset:2048', tag='l')
        e(f'ds_read_b128 {v(S0,4)}, v14', tag='a')
        e(f'ds_read_b128 {v(S0+4,4)}, v14 offset:1024', tag='b')
        e(f's_mov_b32 {T0}, {fbits(2.0**-90)}')
        e(f'v_mov_b32 {v(t2)}, {fbits(2.0**120)}')
        e.wait_lg('l')
        e(f'v_add_f32 {v(O0+8)}, {v(O0+8)}, {v(S0+8)}')
        e(f'v_med3_f32 {v(t)}, {v(O0+8)}, {T0}, {v(t2)}')
        e(f'v_cmp_neq_f32 {s(72,2)}, {v(t)}, {v(O0+8)}')
        e(f'v_rcp_f32 {v(O0+8)}, {v(O0+8)}')
        e.wait_lg('b')
        for j in range(0, 8, 2):
            e(f'v_pk_add_f32 {v(O0+j,2)}, {v(O0+j,2)}, {v(S0+j,2)}')
        for j in range(8):
            e(f'v_mul_f32 {v(O0+j)}, {v(O0+j)}, {v(O0+8)}')
        e(f'v_pk_add_f32 {v(S0,2)}, {v(O0,2)}, {v(O0+2,2)}')
        e(f'v_pk_add_f32 {v(S0+2,2)}, {v(O0+4,2)}, {v(O0+6,2)}')
        e(f'v_pk_add_f32 {v(S0,2)}, {v(S0,2)}, {v(S0+2,2)}')
        e(f'v_add_f32 {v(S0)}, {v(S0)}, {v(S0+1)}')
        e(f'v_mov_b32 {v(t)}, 0x207')
        e(f'v_cmp_class_f32 vcc, {v(S0)}, {v(t)}')
        e(f's_or_b64 vcc, vcc, {s(72,2)}')
        if o['force_slow']:
            e('s_branch L_slow')
        else:
            e('s_cbranch_vccnz L_slow')
        e.label('L_slow_ret')
        for j in range(4):
            e(f'v_cvt_pk_bf16_f32 {v(O0+j)}, {v(O0+2*j)}, {v(O0+2*j+1)}')
        e(f'buffer_store_dwordx4 {v(O0,4)}, {v(self.vOA)}, {srd(SWS)}, 0 offen sc1', tag='o')
        self.stubs.append(('code', self.slow_path))
        self.stamp('opub')

    def slow_path(self):
        e = self.e
        O0, S0, S1, K = self.O0, self.S0, self.S1, self.KVB
        t, m = self.vTMP, self.vTMP2
        e.label('L_slow')
        e('s_nop 7')

        def fetch(name):
            top = e.newlabel(name); go = e.newlabel(name + 'go')
            e.label(top)
            for l in self.kv_lines(0, buf=0, soff=T0):
                e(l, count=False)
            e('s_waitcnt vmcnt(0)')
            e(f'v_max3_u32 {v(t)}, {v(K)}, {v(K+4)}, {v(K+8)}')
            e(f'v_cmp_eq_u32 vcc, -1, {v(t)}')
            e(f's_cbranch_vccz {go}')
            e(f's_cmp_eq_u32 {s_budget}, 0')
            e(f's_cbranch_scc1 {go}')
            e(f's_sub_u32 {s_budget}, {s_budget}, 1')
            e(f's_branch {top}')
            e.label(go)
            return top
        e(f'v_mov_b32 {v(m)}, 0xff800000')
        e(f's_mov_b32 {T0}, {WS_KV}')
        top = fetch('sl1')
        e(f'v_mfma_f32_32x32x16_bf16 {v(S0,16)}, {v(K,4)}, {v(self.Q0,4)}, 0')
        for j in range(0, 16, 2):
            e(f'v_max3_f32 {v(m)}, {v(m)}, {v(S0+j)}, {v(S0+j+1)}')
        e(f's_add_u32 {T0}, {T0}, 2048')
        e(f's_cmp_lt_u32 {T0}, {WS_KV+64*2048}')
        e(f's_cbranch_scc1 {top}')
        e(f'v_mov_b32 {v(t)}, {v(m)}')
        e(f'v_permlane32_swap_b32 {v(m)}, {v(t)}')
        e(f'v_max_f32 {v(m)}, {v(m)}, {v(t)}')
        for j in range(16):
            e(f'v_sub_f32 {v(S1+j)}, 0, {v(m)}')
            e(f'v_mov_b32 {v(O0+j)}, 0')
        e(f's_mov_b32 {T0}, {WS_KV}')
        top = fetch('sl2')
        e(f'v_mfma_f32_32x32x16_bf16 {v(S0,16)}, {v(K,4)}, {v(self.Q0,4)}, {v(S1,16)}')
        for j in range(16):
            e(f'v_exp_f32 {v(S0+j)}, {v(S0+j)}')
        e(f'v_smfmac_f32_32x32x32_bf16 {v(O0,16)}, {v(K+4,4)}, {v(S0,8)}, {v(self.vIDX)}')
        e(f'v_smfmac_f32_32x32x32_bf16 {v(O0,16)}, {v(K+8,4)}, {v(S0+8,8)}, {v(self.vIDX)}')
        e('s_nop 7')
        e(f's_add_u32 {T0}, {T0}, 2048')
        e(f's_cmp_lt_u32 {T0}, {WS_KV+64*2048}')
        e(f's_cbranch_scc1 {top}')
        e('s_nop 7')
        e(f'v_rcp_f32 {v(O0+8)}, {v(O0+8)}')
        for j in range(8):
            e(f'v_mul_f32 {v(O0+j)}, {v(O0+j)}, {v(O0+8)}')
        e('s_branch L_slow_ret')

    def exchange(self, acc, recv):
        e = self.e
        t, t2 = self.vTMP, self.vTMP2
        e(f'ds_write_b128 {v(t)}, {v(acc+8,4)}')
        e(f'ds_write_b128 {v(t)}, {v(acc+12,4)} offset:1024')
        e('s_waitcnt lgkmcnt(0)')
        e('s_barrier')
        e(f'ds_read_b128 {v(recv,4)}, {v(t2)}', tag='a')
        e(f'ds_read_b128 {v(recv+4,4)}, {v(t2)} offset:1024', tag='b')
        e.wait_lg('a')
        for j in (0, 2):
            e(f'v_pk_add_f32 {v(acc+j,2)}, {v(acc+j,2)}, {v(recv+j,2)}')
        e.wait_lg('b')
        for j in (4, 6):
            e(f'v_pk_add_f32 {v(acc+j,2)}, {v(acc+j,2)}, {v(recv+j,2)}')

    def exchange_addr(self):
        e = self.e
        e(f's_lshl_b32 {T0}, {s_w}, 11')
        e(f's_add_u32 {T0}, {T0}, {L_EX}')
        e(f'v_lshl_add_u32 {v(self.vTMP)}, v0, 4, {T0}')
        e(f'v_xor_b32 {v(self.vTMP2)}, 8192, {v(self.vTMP)}')

    X1 = 16

    def phase_o(self):
        e = self.e; o = self.o
        GB = self.GB; X1 = self.X1
        WB, OF, ACC, RECV, GA, CB = 104, 40, 72, 88, 240, 248
        e(f's_lshr_b32 {T0}, {s_w}, 1')
        e(f's_cmp_eq_u32 {T0}, 2')
        e(f's_cselect_b32 {s_one}, 1.0, 0')
        self.tr64_addr(96, L_WOB)
        for i in range(2):
            self.tr64(WB + 16 * i, i * 8192, 96)
        self.gather_check(GB, 2, 14, self.gb_loads, 'gb')
        self.round_mod(GB, GB + 4)
        e(f'v_lshrrev_b32 v15, 1, v36')
        e(f'v_add_u32 v36, {L_STGB}, v36')
        e(f'ds_write_b128 v36, {v(GB,4)}')
        lab = e.newlabel('no16')
        e(f's_sub_u32 {T0}, {s_w}, 2')
        e(f's_cmp_ge_u32 {T0}, 4')
        e(f's_cbranch_scc1 {lab}')
        e(f'v_add_u32 v15, {L_STG16-1024}, v15')
        e(f'ds_write_b64 v15, {v(GB+4,2)}', count=False)
        e.label(lab)
        for i in range(2, 4):
            self.tr64(WB + 16 * i, i * 8192, 96)
        for j in range(4):
            self.unpack(self.XRES + j, X1 + 2 * j, X1 + 2 * j + 1)
        self.exchange_addr()
        e(f's_lshl_b32 {T0}, {s_nb}, 1')
        e(f's_add_u32 {T0}, {T0}, {s_kh}')
        e(f's_lshl_b32 {T0}, {T0}, 7')
        e(f's_add_u32 {T0}, {T0}, {L_STGB}')
        e(f'v_lshrrev_b32 v15, 4, v0')
        e(f'v_lshl_add_u32 v15, v15, 4, {T0}')
        e(f's_lshl_b32 {T0}, {s_kh}, 13')
        e(f's_add_u32 {s_act}, {s_act}, {T0}')
        e(f's_add_u32 {s_act}, {s_act}, {WS_O}')
        e(f's_add_u32 {T6}, {s_act}, 4096')
        e(f'v_lshlrev_b32 v1, 4, v0')
        self.w64_bases(704)
        e('s_waitcnt vmcnt(0) lgkmcnt(0)')
        self.sleep(o['dly_o'])
        e('s_barrier')
        self.stamp('BO1')
        ol = [f'buffer_load_dwordx4 {v(OF+4*k,4)}, v1, {srd(SWS)}, {s_act if k < 4 else T6} offen offset:{(k%4)*1024} sc1' for k in range(8)]
        for k in range(8):
            e(ol[k], tag=f'o{k}')
        ent = [(e.newlabel('ro'), ol[k:k + 2]) for k in range(0, 8, 2)]
        self.stubs.append(('seq', ent))
        for i in range(4):
            self.w64_dma(SWD, i, 704, L_WD1 + i * 8192)
        lab = e.newlabel('noep')
        e(f's_or_b32 {T0}, s2, {s_w}')
        e(f's_cmp_lg_u32 {T0}, 0')
        e(f's_cbranch_scc1 {lab}')
        e(f'v_mov_b32 v14, {s_nonce}')
        e(f'buffer_store_dword v14, off, {srd(SWS)}, 0 sc1', count=False)
        e.label(lab)
        for base, sec in ((GA, 0), (CB, 2), (GB, 3)):
            e(f'ds_read_b128 {v(base,4)}, v15 offset:{sec*2048}')
            e(f'ds_read_b128 {v(base+4,4)}, v15 offset:{sec*2048+64}')
        for k in range(8):
            if k % 2 == 0:
                e.wait_vm(f'o{k+1}')
                self.frag_check([OF + 4 * k, OF + 4 * k + 4], 14, ent[k // 2][0], 'o')
            W = (self.WOA + 16 * k) if k < 4 else (WB + 16 * (k - 4))
            for j in (2, 3, 0, 1):
                e(f'v_mfma_f32_16x16x32_bf16 {v(ACC+4*j,4)}, {v(W+4*j,4)}, {v(OF+4*k,4)}, ' + ('0' if k == 0 else v(ACC + 4 * j, 4)))
        self.exchange(ACC, RECV)
        for j in range(0, 8, 2):
            e(f'v_pk_fma_f32 {v(X1+j,2)}, {v(ACC+j,2)}, {v(GA+j,2)}, {v(X1+j,2)}')
        for j in range(0, 8, 2):
            e(f'v_pk_mul_f32 {v(ACC+j,2)}, {v(X1+j,2)}, {v(CB+j,2)}')
        for j in range(4):
            e(f'v_cvt_pk_bf16_f32 {v(ACC+j)}, {v(ACC+2*j)}, {v(ACC+2*j+1)}')
        e(f'buffer_store_dwordx4 {v(ACC,4)}, {v(self.vYA)}, {srd(SWS)}, 0 offen sc1', tag='y')
        self.stamp('ypub')
        a, b = 88, 89
        e(f'v_add_f32 {v(a)}, {v(X1)}, {v(X1+1)}')
        e(f'v_mul_f32 {v(b)}, {v(X1)}, {v(X1)}')
        for j in range(1, 8):
            if j > 1:
                e(f'v_add_f32 {v(a)}, {v(a)}, {v(X1+j)}')
            e(f'v_fmac_f32 {v(b)}, {v(X1+j)}, {v(X1+j)}')
        e(f'v_permlane32_swap_b32 {v(a)}, {v(b)}')
        e(f'v_add_f32 {v(a)}, {v(a)}, {v(b)}')
        e(f'v_mov_b32 {v(b)}, {v(a)}')
        e(f'v_permlane16_swap_b32 {v(a)}, {v(b)}')
        e(f'v_add_f32 {v(a)}, {v(a)}, {v(b)}')
        e(f's_lshl_b32 {T0}, {s_w}, 7')
        e(f's_add_u32 {T0}, {T0}, {L_ST}')
        e(f'v_and_b32 v14, 15, v0')
        e(f'v_lshl_add_u32 v14, v14, 3, {T0}')
        e(f'v_lshrrev_b32 v15, 5, v0')
        e(f'v_lshl_add_u32 v14, v15, 2, v14')
        e(f'ds_write_b32 v14, {v(a)}')
        e('s_waitcnt lgkmcnt(0)')
        e('s_barrier')
        lab = e.newlabel('nost')
        e(f's_cmp_lg_u32 {s_w}, 7')
        e(f's_cbranch_scc1 {lab}')
        e(f'v_lshlrev_b32 v14, 3, v0')
        e(f'v_add_u32 v14, {L_ST}, v14')
        e(f'ds_read_b64 v[88:89], v14')
        e(f'ds_read_b64 v[90:91], v14 offset:512')
        e('s_waitcnt lgkmcnt(0)')
        e('v_pk_add_f32 v[88:89], v[88:89], v[90:91]')
        e(f'buffer_store_dwordx2 v[88:89], {v(self.vSTA)}, {srd(SWS)}, 0 offen sc1', count=False)
        e.label(lab)
        for i in range(4, 7):
            self.w64_dma(SWD, i, 704, L_WD1 + i * 8192)

    def phase_g(self):
        e = self.e; o = self.o
        Y, ACC, AF, ST, AX, BX = 128, 40, 88, 32, 112, 118
        vA, vA2 = 124, 125
        e(f's_cmp_ge_u32 {s_c}, 29')
        e('s_cbranch_scc1 L_g_skip')
        lab = e.newlabel('noax')
        e(f's_cmp_ge_u32 {s_w}, 6')
        e(f's_cbranch_scc1 {lab}')
        e(f's_and_b32 {T0}, {s_w}, 1')
        e(f's_lshl_b32 {T1}, {T0}, 4')
        e(f'v_xor_b32 v14, {T1}, v0')
        e(f's_lshl_b32 {T2}, {s_w}, 14')
        e(f'v_lshl_add_u32 v14, v14, 3, {T2}')
        e(f'v_lshrrev_b32 v15, 4, v0')
        e(f'v_lshlrev_b32 v15, 3, v15')
        e(f'v_and_b32 v36, 1, v0')
        e(f'v_xor_b32 v36, 1, v36')
        e(f'v_lshl_add_u32 v15, v36, 10, v15')
        e(f'v_add_u32 v15, {L_STG16}, v15')
        R = 128
        for nb in range(16):
            r = R + 8 * nb
            e(f'ds_read_b64 {v(r,2)}, v15 offset:{nb*64}')
            e(f'ds_read_b64 {v(r+2,2)}, v15 offset:{nb*64+32}')
            e(f'ds_read_b64_tr_b16 {v(r+4,2)}, v14 offset:{nb*1024}')
            e(f'ds_read_b64_tr_b16 {v(r+6,2)}, v14 offset:{nb*1024+512}', tag=f'ax{nb}')
            if nb >= 2:
                k = nb - 2
                e.wait_lg(f'ax{k}')
                e(f'v_mfma_f32_16x16x32_bf16 v[40:43], {v(R+8*k,4)}, {v(R+8*k+4,4)}, ' + ('0' if k == 0 else 'v[40:43]'))
        for k in (14, 15):
            e.wait_lg(f'ax{k}')
            e(f'v_mfma_f32_16x16x32_bf16 v[40:43], {v(R+8*k,4)}, {v(R+8*k+4,4)}, v[40:43]')
        e('v_and_b32 v14, 16, v0')
        e('v_cmp_ne_u32 vcc, 0, v14')
        e('v_and_b32 v15, 15, v0')
        e('v_lshl_add_u32 v15, v14, 1, v15')
        e(f'v_add_u32 v15, {T1}, v15')
        e(f's_lshr_b32 {T2}, {s_w}, 1')
        e(f's_lshl_b32 {T2}, {T2}, 9')
        e(f's_add_u32 {T2}, {T2}, {L_AX}')
        e(f'v_lshl_add_u32 v15, v15, 3, {T2}')
        e('v_cndmask_b32 v40, v40, v41, vcc')
        e('v_cvt_pk_bf16_f32 v45, v40, 0')
        e('v_lshlrev_b32 v41, 16, v45')
        e('v_sub_f32 v41, v40, v41')
        e('v_cvt_pk_bf16_f32 v44, v40, v41')
        e('ds_write_b64 v15, v[44:45]')
        e.label(lab)
        e.flush_hist()
        e('v_bfe_u32 v14, v0, 4, 1')
        e('v_lshrrev_b32 v15, 5, v0')
        e('v_xor_b32 v36, v14, v15')
        e(f'v_and_b32 {v(vA)}, 15, v0')
        e(f'v_lshlrev_b32 {v(vA)}, 3, {v(vA)}')
        e(f'v_lshl_add_u32 {v(vA)}, v36, 7, {v(vA)}')
        e(f'v_lshl_add_u32 {v(vA)}, v14, 14, {v(vA)}')
        e(f'v_add_u32 {v(vA2)}, 65536, {v(vA)}')
        e(f's_lshl_b32 {T0}, {s_x}, 3')
        e(f's_add_u32 {T0}, {T0}, {s_w}')
        e(f's_lshl_b32 {T5}, {T0}, 11')
        e(f's_add_u32 {T5}, {T5}, {WS_STATS}')
        e('v_and_b32 v14, 31, v0')
        e('v_lshlrev_b32 v14, 3, v14')
        e('v_lshl_add_u32 v126, v15, 10, v14')
        e(f's_lshl_b32 {s_act}, {T0}, 15')
        e(f's_add_u32 {s_act}, {s_act}, {WS_Y}')
        e('v_lshlrev_b32 v127, 3, v0')
        e(f'v_add_u32 v127, {L_AX}, v127')
        e('s_waitcnt vmcnt(0) lgkmcnt(0)')
        self.sleep(o['dly_y'])
        e('s_barrier')
        self.stamp('BG0')
        ent = []
        for g in range(8):
            L = [f's_add_u32 {T7}, {s_act}, {g*4096}']
            for k in range(4):
                L.append(f'buffer_load_dwordx4 {v(Y+16*g+4*k,4)}, v1, {srd(SWS)}, {T7} offen offset:{k*1024} sc1')
            ent.append((e.newlabel('ry'), L))
            for l in L:
                e(l, tag=f'y{g}')
        L = [f'buffer_load_dwordx2 {v(ST+2*i,2)}, v126, {srd(SWS)}, {T5} offen offset:{i*256} sc1' for i in range(4)]
        ent.append((e.newlabel('rs'), L))
        e('v_mov_b32 v3, v38')
        for l in L:
            e(l, tag='st')
        self.stubs.append(('seq', ent))
        for tl in range(3):
            e(f'ds_read_b64 {v(AX+2*tl,2)}, v127 offset:{tl*512}')

        def areads(ks):
            r = AF + 12 * (ks % 2)
            nb, jj = ks // 2, ks % 2
            for tl in range(3):
                base = vA if tl < 2 else vA2
                off = (tl % 2) * 32768 + nb * 1024 + jj * 256
                e(f'ds_read_b64_tr_b16 {v(r+4*tl,2)}, {v(base)} offset:{off}')
                e(f'ds_read_b64_tr_b16 {v(r+4*tl+2,2)}, {v(base)} offset:{off+512}', tag=f'a{ks}_{tl}')
        areads(0)
        areads(1)
        for ks in range(32):
            if ks % 4 == 0:
                g = ks // 4
                e.wait_vm(f'y{g}')
                self.frag_check([Y + 16 * g + 4 * k for k in range(4)], 14, ent[g][0], 'y')
            r = AF + 12 * (ks % 2)
            for tl in range(3):
                e.wait_lg(f'a{ks}_{tl}')
                e(f'v_mfma_f32_32x32x16_bf16 {v(ACC+16*tl,16)}, {v(r+4*tl,4)}, {v(Y+4*ks,4)}, ' + ('0' if ks == 0 else v(ACC + 16 * tl, 16)))
            if ks + 2 < 32:
                areads(ks + 2)
            if ks == 29:
                e.wait_vm('st')
                self.frag_check([ST + 2 * i for i in range(4)], 14, ent[8][0], 'st')
                e(f'v_pk_add_f32 {v(ST,2)}, {v(ST,2)}, {v(ST+2,2)}')
                e(f'v_pk_add_f32 {v(ST+4,2)}, {v(ST+4,2)}, {v(ST+6,2)}')
                e(f'v_pk_add_f32 {v(ST,2)}, {v(ST,2)}, {v(ST+4,2)}')
                e(f'v_mov_b32 {v(ST+2)}, {v(ST)}')
                e(f'v_mov_b32 {v(ST+3)}, {v(ST+1)}')
                e(f'v_cmp_gt_u32 vcc, 32, v0')
                e(f'v_permlane32_swap_b32 {v(ST)}, {v(ST+2)}')
                e(f'v_permlane32_swap_b32 {v(ST+1)}, {v(ST+3)}')
                e(f'v_pk_add_f32 {v(ST,2)}, {v(ST,2)}, {v(ST+2,2)}')
                e(f'v_mul_f32 {v(ST)}, {fbits(-1.0/512)}, {v(ST)}')
                e(f'v_mul_f32 {v(ST+1)}, {fbits(1.0/512)}, {v(ST+1)}')
                e(f'v_fma_f32 {v(ST+1)}, -{v(ST)}, {v(ST)}, {v(ST+1)}')
                e(f'v_max_f32 {v(ST+1)}, 0, {v(ST+1)}')
                e(f'v_add_f32 {v(ST+1)}, {fbits(1e-5)}, {v(ST+1)}')
                e(f'v_sqrt_f32 {v(ST+2)}, {v(ST+1)}')
                e(f'v_rcp_f32 {v(ST+4)}, {v(ST+1)}')
                e(f'v_cndmask_b32 {v(ST)}, {v(ST+2)}, {v(ST)}, vcc')
                e(f'v_cvt_pk_bf16_f32 {v(BX)}, {v(ST)}, {v(ST)}')
                e(f'v_lshlrev_b32 {v(ST+1)}, 16, {v(BX)}')
                e(f'v_sub_f32 {v(ST+1)}, {v(ST)}, {v(ST+1)}')
                e(f'v_cvt_pk_bf16_f32 {v(BX+1)}, {v(ST+1)}, 0')
                e(f'v_mov_b32 {v(ST+5)}, {v(ST+4)}')
        for tl in range(3):
            e(f'v_mfma_f32_32x32x8_bf16 {v(ACC+16*tl,16)}, {v(AX+2*tl,2)}, {v(BX,2)}, {v(ACC+16*tl,16)}')
        e(f's_cmp_eq_u32 {s_c}, 28')
        e(f's_cselect_b32 {T4}, {OOB}, 0')
        for tl in range(3):
            a = ACC + 16 * tl
            for j in range(8):
                e(f'v_max_f32 {v(a+j)}, 0, {v(a+j)}')
            for j in range(0, 8, 2):
                e(f'v_pk_mul_f32 {v(a+8+j,2)}, {v(a+8+j,2)}, {v(ST+4,2)}')
            for j in range(0, 8, 2):
                e(f'v_pk_mul_f32 {v(a+j,2)}, {v(a+j,2)}, {v(a+8+j,2)}')
            for j in range(4):
                e(f'v_cvt_pk_bf16_f32 {v(240+4*tl+j)}, {v(a+2*j)}, {v(a+2*j+1)}')
            e(f'buffer_store_dwordx4 {v(240+4*tl,4)}, {v(self.vHA)}, {srd(SWS)}, {T4 if tl == 2 else 0} offen offset:{tl*512} sc1')
        e('s_branch L_g_done')
        e.label('L_g_skip')
        e.flush_hist()
        e('v_mov_b32 v3, v38')
        e('s_waitcnt vmcnt(0) lgkmcnt(0)')
        e('s_barrier')
        if o['prof']:
            self.nstamp -= 1; self.stamp_names.pop(); self.stamp('BG0')
        e.label('L_g_done')
        e.flush_hist()
        e.vm = []; e.lg = []
        self.stamp('hhpub')

    def phase_d(self):
        e = self.e; o = self.o
        WP, HF, ACC, RECV = 40, 152, 240, 40
        X1, GB = self.X1, self.GB
        A1, A2 = 32, 36
        self.tr64_addr(A1, L_WD1)
        for i in range(7):
            self.tr64(WP + 16 * i, i * 8192, A1)
        self.tr64_addr(A2, L_WD2)
        e(f's_lshl_b32 {T0}, {s_x}, 2')
        e(f's_add_u32 {T0}, {T0}, {s_oct}')
        e(f's_lshl_b32 {T0}, {T0}, 2')
        e(f's_add_u32 {T0}, {T0}, {s_m}')
        e(f's_mul_i32 {s_act}, {T0}, 44032')
        e(f's_mul_i32 {T0}, {s_kh}, {22*1024}')
        e(f's_add_u32 {s_act}, {s_act}, {T0}')
        e(f's_add_u32 {s_act}, {s_act}, {WS_HH}')
        e(f's_cmp_eq_u32 {s_kh}, 0')
        e(f's_cselect_b32 {T5}, 0, {OOB}')
        e('s_waitcnt lgkmcnt(0)')
        e('s_barrier')
        self.stamp('BG1')

        def wloc(ks):
            return (L_WD2 + (ks - 7) * 8192) if ks < 19 else (L_WD3 + (ks - 19) * 8192)
        ent = []
        for g in range(11):
            L = [f's_add_u32 {T7}, {s_act}, {g*2048}']
            L.append(f'buffer_load_dwordx4 {v(HF+8*g,4)}, v1, {srd(SWS)}, {T7} offen sc1')
            if g == 10:
                L.append(f's_add_u32 {T7}, {T7}, {T5}')
            L.append(f'buffer_load_dwordx4 {v(HF+8*g+4,4)}, v1, {srd(SWS)}, {T7} offen offset:1024 sc1')
            ent.append((e.newlabel('rh'), L))
        self.stubs.append(('seq', ent))
        for ks in range(7, 13):
            self.w64_dma(SWD, ks, 704, wloc(ks), tag='wd2a')
        self.sleep(o['dly_hh'])
        for g in range(0, 5):
            for l in ent[g][1]:
                e(l, tag=f'h{g}')
        for ks in range(13, 22):
            self.w64_dma(SWD, ks, 704, wloc(ks), tag='wd2b')
        for g in range(5, 11):
            for l in ent[g][1]:
                e(l, tag=f'h{g}')
        self.exchange_addr()

        def wreg(ks):
            return WP + 16 * (ks % 7)

        def wread(ks):
            if ks < 15:
                self.tr64(wreg(ks), (ks - 7) * 8192, A2)
            elif ks < 19:
                if ks == 15:
                    self.tr64_addr(A2, L_WD2 + 65536)
                self.tr64(wreg(ks), (ks - 15) * 8192, A2)
            else:
                self.tr64(wreg(ks), (ks - 19) * 8192, A1)
        LEAD = 2
        for ks in range(22):
            if ks % 2 == 0:
                g = ks // 2
                e.wait_vm(f'h{g}')
                self.frag_check([HF + 8 * g, HF + 8 * g + 4], 14, ent[g][0], 'h')
            nx = ks + LEAD
            if nx == 7:
                e('s_barrier')
            if nx == 13:
                e.wait_vm('wd2b')
                e('s_barrier')
            W = wreg(ks)
            for j in (2, 3, 0, 1):
                if ks >= 7 and j == 2:
                    e.wait_lg(f'w{W+4*3}')
                e(f'v_mfma_f32_16x16x32_bf16 {v(ACC+4*j,4)}, {v(W+4*j,4)}, {v(HF+4*ks,4)}, ' + ('0' if ks == 0 else v(ACC + 4 * j, 4)))
            if 7 <= nx < 22:
                wread(nx)
        self.stamp('Dmma')
        self.exchange(ACC, RECV)
        for j in range(0, 8, 2):
            e(f'v_pk_fma_f32 {v(X1+j,2)}, {v(ACC+j,2)}, {v(GB+j,2)}, {v(X1+j,2)}')
        for j in range(4):
            e(f'v_cvt_pk_bf16_f32 {v(X1+j)}, {v(X1+2*j)}, {v(X1+2*j+1)}')
        e('v_bfe_u32 v14, v0, 4, 1')
        e('v_lshl_add_u32 v3, v14, 5, v3')
        e('v_lshrrev_b32 v14, 5, v0')
        e('v_lshl_add_u32 v3, v14, 4, v3')
        e(f'v_permlane16_swap_b32 {v(X1)}, {v(X1+2)}')
        e(f'v_permlane16_swap_b32 {v(X1+1)}, {v(X1+3)}')
        e(f'buffer_store_dwordx4 {v(X1,4)}, v3, {srd(SOUT)}, 0 offen {o["out_flags"]}'.rstrip())

    def finish(self):
        e = self.e
        if self.o['prof']:
            e('s_waitcnt vmcnt(0)')
            self.stamp('end')
            e('s_memrealtime s[100:101]')
            e('s_waitcnt lgkmcnt(0)')
            e(f's_lshl_b32 {T0}, s2, 3')
            e(f's_add_u32 {T0}, {T0}, {s_w}')
            e(f's_lshl_b32 {T0}, {T0}, 7')
            e(f's_add_u32 {T0}, {T0}, {WS_PROF}')
            e('v_mov_b32 v1, 0')
            vals = [f's{S_STAMP+i}' for i in range(16)] + ['s3', 's100', s_budget]
            for i, r in enumerate(vals):
                e(f'v_writelane_b32 v1, {r}, {i}')
            e('v_lshlrev_b32 v2, 2, v0')
            e('s_mov_b64 exec, 0xffffffff')
            e(f'buffer_store_dword v1, v2, {srd(SWS)}, {T0} offen')
        e.label('L_end')
        e('s_endpgm')

    def build(self):
        e = self.e
        self.prologue()
        if self.o['prof']:
            e('s_waitcnt lgkmcnt(0)')
            e('s_mov_b32 s3, s98')
        self.front()
        self.attention()
        self.att_epilogue()
        self.phase_o()
        self.phase_g()
        self.phase_d()
        self.finish()
        self.emit_stubs()
        e.label('L_code_end')
        head = open('adaLN_cond__grouped_kv_mqa__glu_gated_reglu__prompt.s.ref').read().split('; Override launch')[0]
        txt = head + '; @launch grid=(256,1,1) block=(512,1,1) lds=163840\n'
        txt += f'''.amdgcn_target "amdgcn-amd-amdhsa--gfx950"
.text
.globl {NAME}
.p2align 8
.type {NAME},@function
{NAME}:
'''
        txt += e.text()
        txt += f'''    s_endpgm
.section .rodata,"a"
.p2align 6
.amdhsa_kernel {NAME}
  .amdhsa_next_free_vgpr 256
  .amdhsa_next_free_sgpr 102
  .amdhsa_accum_offset 256
  .amdhsa_group_segment_fixed_size 0
  .amdhsa_kernarg_size 112
  .amdhsa_user_sgpr_count 2
  .amdhsa_user_sgpr_kernarg_segment_ptr 1
  .amdhsa_system_sgpr_workgroup_id_x 1
.end_amdhsa_kernel
'''
        return txt


if __name__ == '__main__':
    kw = {}
    out = sys.argv[1]
    for a in sys.argv[2:]:
        k, val = a.split('=')
        try:
            val = int(val)
        except ValueError:
            pass
        kw[k] = val
    g = Gen(**kw)
    txt = g.build()
    open(out, 'w').write(txt)
    print('nops inserted', g.e.nops, 'lines', txt.count('\n'), getattr(g, 'stamp_names', ''))
    for n, l in g.e.nop_log:
        if n >= 4:
            print('  nop', n, l)
```

```python
import sys, struct, math
from emit import Emitter, v, s

NAME = 'adaLN_cond__grouped_kv_mqa__glu_gated_reglu__prompt_kernel'


def fbits(x):
    return '0x%08x' % struct.unpack('<I', struct.pack('<f', x))[0]


DEFAULTS = dict(prof=0, stop=99, D=6, nchk=10, force_slow=0,
                dly_moda=0, dly_kv=0, dly_o=0, dly_y=0, dly_hh=0, codepf=1, out_flags='', budget=60000)

WS_EPOCH = 0
WS_MODA = 0x1000
WS_MODB = 0x8000
WS_STATS = 0x10000
WS_KV = 0x40000
WS_PROF = 0x80000
WS_O = 0x200000
WS_Y = 0x400000
WS_HH = 0x600000
WS_DBG = 0x1000000
WS_SIZE = 0x10000000
OOB = 0x40000000

L_WQ = 0
L_H = 131072
L_WKV = L_H
L_MW = L_H + 16384
L_SB = L_H + 20480
L_STGA = 7 * 16384
L_QX = 0
L_WGU = 0
L_WOB = 98304
L_WOA = 131072
L_MBW = 8192
L_SB2 = 16384
L_EX = 131072
L_STGB = 149504
L_STG16 = 157696
L_AX = 159744
L_ST = 161280
L_WD1 = 98304
L_WD2 = 0
L_WD3 = 98304

SX, SWQ, SWKV, SWO, SWG, SWU, SWD, SC, SWM, SOUT, SWS = (4, 8, 12, 16, 20, 24, 28, 32, 36, 40, 44)
s_x, s_c, s_w, s_tb, s_cb, s_oct, s_nb, s_m, s_kh = ('s48', 's49', 's50', 's51', 's52', 's53', 's54', 's55', 's56')
s_nonce = 's57'
S_NB = 58
s_budget = 's62'
s_one = 's63'
S_RET = 64
S_VM = 66
T0, T1, T2, T3, T4, T5, T6, T7 = ('s68', 's69', 's70', 's71', 's72', 's73', 's74', 's75')
s_kvb = 's76'
s_dl = 's77'
s_ds = 's78'
s_act = 's79'
S_MU = 80
S_STAMP = 84


def srd(n):
    return s(n, 4)


class Gen:
    def __init__(self, **kw):
        self.o = dict(DEFAULTS); self.o.update(kw)
        self.e = Emitter()
        self.stubs = []
        self.nstamp = 0

    def stamp(self, name):
        if not self.o['prof']:
            return
        e = self.e
        i = self.nstamp; self.nstamp += 1
        assert i < 16
        self.stamp_names = getattr(self, 'stamp_names', []) + [name]
        e('s_memtime s[100:101]')
        e('s_waitcnt lgkmcnt(0)')
        e(f's_mov_b32 s{S_STAMP+i}, s100')

    def dma(self, rs, voff, soff_base, soff_imm, lds_base, lds_imm, tag=None, count=True, flags=''):
        e = self.e
        if lds_base is None:
            e(f's_mov_b32 m0, {lds_imm}')
        else:
            e(f's_add_u32 m0, {lds_base}, {lds_imm}')
        if soff_base is None:
            e(f's_mov_b32 {T7}, {soff_imm}'); so = T7
        elif soff_imm:
            e(f's_add_u32 {T7}, {soff_base}, {soff_imm}'); so = T7
        else:
            so = soff_base
        e(f'buffer_load_dwordx4 {v(voff)}, {srd(rs)}, {so} offen lds {flags}'.rstrip(), tag=tag, count=count)

    def sleep(self, n):
        if n:
            self.e(f's_sleep {n}')

    def silu(self, r, t):
        e = self.e
        e(f'v_mul_f32 {v(t)}, {fbits(-1.4426950408889634)}, {v(r)}')
        e(f'v_exp_f32 {v(t)}, {v(t)}')
        e(f'v_add_f32 {v(t)}, 1.0, {v(t)}')
        e(f'v_rcp_f32 {v(t)}, {v(t)}')
        e(f'v_mul_f32 {v(r)}, {v(r)}, {v(t)}')

    def unpack(self, src, lo, hi):
        e = self.e
        if hi == src:
            e(f'v_lshlrev_b32 {v(lo)}, 16, {v(src)}')
            e(f'v_and_b32 {v(hi)}, 0xffff0000, {v(src)}')
        else:
            e(f'v_and_b32 {v(hi)}, 0xffff0000, {v(src)}')
            e(f'v_lshlrev_b32 {v(lo)}, 16, {v(src)}')

    def red4(self, a, b, c, d):
        e = self.e
        e(f'v_permlane32_swap_b32 {v(a)}, {v(b)}')
        e(f'v_permlane32_swap_b32 {v(c)}, {v(d)}')
        e(f'v_add_f32 {v(a)}, {v(a)}, {v(b)}')
        e(f'v_add_f32 {v(c)}, {v(c)}, {v(d)}')
        e(f'v_permlane16_swap_b32 {v(a)}, {v(c)}')
        e(f'v_add_f32 {v(a)}, {v(a)}, {v(c)}')
        for r in (8, 4, 2, 1):
            e(f'v_add_f32_dpp {v(a)}, {v(a)}, {v(a)} row_ror:{r} row_mask:0xf bank_mask:0xf')

    def tag_and_store(self, val, tmp, addr, soff):
        e = self.e
        e(f'v_and_b32 {v(tmp)}, 3, v0')
        e(f'v_lshlrev_b32 {v(tmp)}, 3, {v(tmp)}')
        e(f'v_lshrrev_b32 {v(tmp)}, {v(tmp)}, {s_nonce}')
        e(f'v_and_b32 {v(tmp)}, 0xff, {v(tmp)}')
        e(f'v_and_b32 {v(val)}, 0xffffff00, {v(val)}')
        e(f'v_or_b32 {v(val)}, {v(val)}, {v(tmp)}')
        e(f'v_lshlrev_b32 {v(addr)}, 2, v0')
        e('s_mov_b64 exec, 0xffff')
        e(f'buffer_store_dword {v(val)}, {v(addr)}, {srd(SWS)}, {soff} offen sc1', count=False)
        e('s_mov_b64 exec, -1')

    def gather_check(self, base, npart, tmp, loads, name):
        e = self.e
        chk = e.newlabel(name + '_chk'); ok = e.newlabel(name + '_ok'); stub = e.newlabel(name + '_stub')
        e.label(chk)
        for p in range(npart):
            for j in range(4):
                e(f'v_xor_b32 {v(base+4*p+j)}, s{S_NB+j}, {v(base+4*p+j)}')
        regs = list(range(base, base + 4 * npart))
        e(f'v_or3_b32 {v(tmp)}, {v(regs[0])}, {v(regs[1])}, {v(regs[2])}')
        i = 3
        while i < len(regs):
            if i + 1 < len(regs):
                e(f'v_or3_b32 {v(tmp)}, {v(tmp)}, {v(regs[i])}, {v(regs[i+1])}'); i += 2
            else:
                e(f'v_or_b32 {v(tmp)}, {v(tmp)}, {v(regs[i])}'); i += 1
        e(f'v_and_b32 {v(tmp)}, 0xff, {v(tmp)}')
        e(f'v_cmp_ne_u32 vcc, 0, {v(tmp)}')
        e(f's_cbranch_vccnz {stub}')
        e.label(ok)
        self.stubs.append(('reload', stub, chk, ok, loads))
        for j in range(4):
            if npart == 4:
                e(f'v_add_f32 {v(base+j)}, {v(base+j)}, {v(base+4+j)}')
                e(f'v_add_f32 {v(base+8+j)}, {v(base+8+j)}, {v(base+12+j)}')
            else:
                e(f'v_add_f32 {v(base+j)}, {v(base+j)}, {v(base+4+j)}')
        if npart == 4:
            for j in range(4):
                e(f'v_add_f32 {v(base+j)}, {v(base+j)}, {v(base+8+j)}')

    def round_mod(self, base, p0):
        e = self.e
        for rep in range(2):
            e(f'v_cvt_pk_bf16_f32 {v(p0)}, {v(base)}, {v(base+1)}')
            e(f'v_cvt_pk_bf16_f32 {v(p0+1)}, {v(base+2)}, {v(base+3)}')
            self.unpack(p0, base, base + 1)
            self.unpack(p0 + 1, base + 2, base + 3)
            if rep == 0:
                for j in range(4):
                    e(f'v_add_f32 {v(base+j)}, {s_one}, {v(base+j)}')

    def frag_check(self, regs, tmp, reissue, name):
        e = self.e
        chk = e.newlabel(name + '_chk'); ok = e.newlabel(name + '_ok'); stub = e.newlabel(name + '_stub')
        e.label(chk)
        if len(regs) == 1:
            e(f'v_cmp_eq_u32 vcc, -1, {v(regs[0])}')
        else:
            if len(regs) == 2:
                e(f'v_max_u32 {v(tmp)}, {v(regs[0])}, {v(regs[1])}')
            else:
                e(f'v_max3_u32 {v(tmp)}, {v(regs[0])}, {v(regs[1])}, {v(regs[2])}')
                for r in regs[3:]:
                    e(f'v_max_u32 {v(tmp)}, {v(tmp)}, {v(r)}')
            e(f'v_cmp_eq_u32 vcc, -1, {v(tmp)}')
        e(f's_cbranch_vccnz {stub}')
        e.label(ok)
        if isinstance(reissue, str):
            self.stubs.append(('call', stub, chk, ok, reissue))
        else:
            self.stubs.append(('reload', stub, chk, ok, reissue))

    def emit_stubs(self):
        e = self.e
        for st in self.stubs:
            kind = st[0]
            e.flush_hist()
            if kind in ('reload', 'call'):
                _, stub, chk, ok, arg = st
                e.label(stub)
                e(f's_cmp_eq_u32 {s_budget}, 0')
                e(f's_cbranch_scc1 {ok}')
                e(f's_sub_u32 {s_budget}, {s_budget}, 1')
                if kind == 'reload':
                    e('s_waitcnt vmcnt(0)')
                    e('s_sleep 2')
                    for l in arg:
                        e(l, count=False)
                    e('s_waitcnt vmcnt(0)')
                else:
                    e('s_waitcnt vmcnt(0)')
                    e('s_sleep 2')
                    e(f's_call_b64 {s(S_RET,2)}, {arg}')
                e(f's_branch {chk}')
            elif kind == 'seq':
                _, entries = st
                for lab, lines in entries:
                    e.label(lab)
                    for l in lines:
                        e(l, count=False)
                e('s_waitcnt vmcnt(0)')
                e(f's_setpc_b64 {s(S_RET,2)}')
            elif kind == 'code':
                st[1]()

    def dump(self, regs, slot, stride_regs):
        e = self.e
        e('s_nop 7'); e('s_nop 7')
        e(f's_lshl_b32 {T6}, s2, 3')
        e(f's_add_u32 {T6}, {T6}, {s_w}')
        e(f's_mul_i32 {T6}, {T6}, {stride_regs*256}')
        e(f's_add_u32 {T6}, {T6}, {WS_DBG + slot*0x1000000}')
        e('v_lshlrev_b32 v0, 2, v0')
        for i, r in enumerate(regs):
            e(f'buffer_store_dword {v(r)}, v0, {srd(SWS)}, {T6} offen', count=False)
            e(f's_add_u32 {T6}, {T6}, 256')
        e('s_waitcnt vmcnt(0)')
        e('v_lshrrev_b32 v0, 2, v0')

    def prologue(self):
        e = self.e
        e('s_cmp_ge_u32 s2, 256')
        e('s_cbranch_scc1 L_end')
        e(f's_lshr_b32 {s_c}, s2, 3')
        e(f's_and_b32 {T0}, {s_c}, 1')
        e(f's_lshl_b32 {T0}, {T0}, 3')
        e(f's_add_u32 {T0}, {T0}, 16')
        for r, off in ((SWS, 104), (SC, 72), (SWM, 80), (SX, 0), (SWQ, 8), (SWO, 32), (SWG, 48), (SWU, 56), (SWD, 64), (SOUT, 88)):
            e(f's_load_dwordx2 {s(r,2)}, s[0:1], {off}')
        e(f's_load_dwordx2 {s(SWKV,2)}, s[0:1], {T0}')
        if self.o['prof']:
            e('s_memrealtime s[98:99]')
        e('v_lshrrev_b32 v1, 6, v0')
        e('v_and_b32 v0, 63, v0')
        e(f'v_readfirstlane_b32 {s_w}, v1')
        e(f's_and_b32 {s_x}, s2, 7')
        e(f's_lshr_b32 {s_tb}, {s_c}, 2')
        e(f's_and_b32 {s_cb}, {s_c}, 3')
        e(f's_lshr_b32 {s_oct}, {s_c}, 3')
        e(f's_and_b32 {s_nb}, {s_c}, 7')
        e(f's_and_b32 {s_m}, {s_w}, 3')
        e(f's_lshr_b32 {s_kh}, {s_w}, 2')
        if self.o['codepf']:
            lab = e.newlabel('nopf')
            e(f's_cmp_lg_u32 {s_w}, 7')
            e(f's_cbranch_scc1 {lab}')
            e(f's_cmp_ge_u32 {s_c}, (L_code_end-L_pc0)/1024')
            e(f's_cbranch_scc1 {lab}')
            e('s_getpc_b64 s[74:75]')
            e.label('L_pc0')
            e(f's_lshl_b32 {T0}, {s_c}, 10')
            e(f'v_lshl_add_u32 v2, v0, 4, {T0}')
            e('global_load_dword v255, v2, s[74:75]', count=False)
            e.label(lab)
        for r, n in ((SX, 2097152), (SWQ, 524288), (SWKV, 16384), (SWO, 524288), (SWG, 1409024), (SWU, 1409024),
                     (SWD, 1409024), (SC, 1024), (SWM, 3145728), (SOUT, 2097152), (SWS, WS_SIZE)):
            e(f's_mov_b32 s{r+2}, {n}')
            e(f's_mov_b32 s{r+3}, 0x20000')
        e(f's_mov_b32 {s_budget}, {self.o["budget"]}')
        e(f's_mov_b32 s{S_VM}, 0xffff')
        e(f's_mov_b32 s{S_VM+1}, 0xffff')

    def front(self):
        e = self.e; o = self.o
        vL16, vWQ, vW32, vT, vT2, vEP, vC, vHW = 1, 2, 4, 5, 6, 7, 8, 9
        XR, N, SA, CA, G = 16, 32, 64, 72, 80
        e(f'v_lshlrev_b32 {v(vL16)}, 4, v0')
        e(f'v_lshrrev_b32 {v(vT)}, 4, v0')
        e(f'v_lshlrev_b32 {v(vT2)}, 2, {v(vT)}')
        e(f'v_xor_b32 {v(vT2)}, {v(vT2)}, v0')
        e(f'v_and_b32 {v(vT2)}, 15, {v(vT2)}')
        e(f'v_lshlrev_b32 {v(vT2)}, 4, {v(vT2)}')
        e(f'v_lshl_add_u32 {v(vWQ)}, {v(vT)}, 10, {v(vT2)}')
        e(f's_lshl_b32 {T0}, {s_cb}, 8')
        e(f'v_add_u32 {v(vWQ)}, {T0}, {v(vWQ)}')
        e(f'v_lshrrev_b32 {v(vT)}, 1, v0')
        e(f'v_mul_u32_u24 {v(vT)}, 6144, {v(vT)}')
        e(f'v_and_b32 {v(vT2)}, 1, v0')
        e(f'v_lshl_add_u32 {v(vW32)}, {v(vT2)}, 4, {v(vT)}')
        e(f's_lshl_b32 {T0}, {s_x}, 8')
        e(f's_lshl_b32 {T1}, {s_tb}, 5')
        e(f's_add_u32 {T0}, {T0}, {T1}')
        e(f's_lshl_b32 {T1}, {s_w}, 2')
        e(f's_add_u32 {T0}, {T0}, {T1}')
        for i in range(4):
            e(f's_add_u32 {T1}, {s_cb}, {i}')
            e(f's_and_b32 {T1}, {T1}, 3')
            e(f's_add_u32 {T1}, {T1}, {T0}')
            e(f's_lshl_b32 s{S_MU+i}, {T1}, 10')
        e(f's_lshl_b32 {T0}, {s_x}, 3')
        e(f's_add_u32 {T3}, {T0}, {s_tb}')
        e(f's_lshl_b32 {T0}, {T3}, 11')
        e(f's_and_b32 {T1}, {s_cb}, 1')
        e(f's_lshl_b32 {T1}, {T1}, 10')
        e(f's_add_u32 {T0}, {T0}, {T1}')
        e(f's_lshr_b32 {T1}, {s_cb}, 1')
        e(f's_lshl_b32 {T1}, {T1}, 9')
        e(f's_add_u32 {T0}, {T0}, {T1}')
        e(f's_add_u32 {s_act}, {T0}, {WS_KV}')
        e(f's_lshl_b32 {T0}, {s_w}, 10')
        e(f'v_add_u32 v3, {T0}, {v(vL16)}')
        e(f's_lshl_b32 {s_dl}, {s_m}, 12')
        e(f's_lshl_b32 {s_ds}, {s_m}, 14')

        def xload(i):
            e(f'buffer_load_dwordx4 {v(XR+4*i,4)}, {v(vL16)}, {srd(SX)}, s{S_MU+i} offen', tag=f'x{i}')

        def wq_eighth(i, count=True):
            e(f's_add_u32 {T6}, {s_tb}, {i}')
            e(f's_and_b32 {T6}, {T6}, 7')
            e(f's_lshl_b32 {T6}, {T6}, 16')
            e(f's_add_u32 {T6}, {T6}, {s_ds}')
            for j in range(4):
                self.dma(SWQ, vWQ, T6, j * 4096, s_dl, L_WQ + i * 16384 + j * 1024, tag=f'wq{i}', count=count)

        def nonce():
            e(f'v_readfirstlane_b32 {s_nonce}, {v(vEP)}')
            e(f's_mul_i32 {s_nonce}, {s_nonce}, 0x9e3779b1')
            e(f's_add_u32 {s_nonce}, {s_nonce}, 0x7f4a7c15')
            for j in range(4):
                e(f's_bfe_u32 s{S_NB+j}, {s_nonce}, {hex((8<<16)|(8*j))}')

        e('s_waitcnt lgkmcnt(0)')
        self.stamp('kernarg')
        e(f'buffer_load_dword {v(vEP)}, off, {srd(SWS)}, 0 sc1', tag='ep')
        e(f's_cmp_eq_u32 {s_w}, 0')
        e('s_cbranch_scc1 L_w0')
        xload(0)
        e(f's_cmp_lt_u32 {s_w}, 4')
        e('s_cbranch_scc1 L_w123')
        wq_eighth(0, count=False)
        e.label('L_w123')
        for i in (1, 2, 3):
            xload(i)
        e(f's_cmp_lg_u32 {s_w}, 4')
        e('s_cbranch_scc1 L_not4a')
        e(f's_lshl_b32 {T5}, {s_tb}, 11')
        for j in range(16):
            self.dma(SWKV, vL16, T5, 0, None, L_WKV + j * 1024, count=False)
            e(f's_add_u32 {T5}, {T5}, 1024')
            e(f's_and_b32 {T5}, {T5}, 16383')
        e.label('L_not4a')
        e(f's_cmp_lg_u32 {s_w}, 5')
        e('s_cbranch_scc1 L_not5a')
        e(f's_and_b32 {T5}, {T3}, 1')
        e(f's_lshl_b32 {T5}, {T5}, 9')
        e(f'v_lshlrev_b32 {v(vT)}, 3, v0')
        e(f'buffer_load_dwordx2 v[14:15], {v(vT)}, {srd(SC)}, {T5} offen', count=False)
        e.label('L_not5a')
        e('s_branch L_b1')
        e.label('L_w0')
        e.flush_hist()
        e.vm = ['ep']
        e(f's_and_b32 {T4}, {T3}, 3')
        e(f's_lshl_b32 {T5}, {T4}, 8')
        e(f'v_lshlrev_b32 {v(vT)}, 2, v0')
        e(f'buffer_load_dword {v(vC)}, {v(vT)}, {srd(SC)}, {T5} offen', tag='c')
        e(f's_lshr_b32 {T2}, {T3}, 2')
        e(f's_lshl_b32 {T2}, {T2}, 2')
        e(f's_add_u32 {T2}, {T2}, {s_cb}')
        e(f's_mul_i32 {T5}, {T4}, {128*6144}')
        e(f's_lshl_b32 {T1}, {T2}, 5')
        e(f's_add_u32 {T5}, {T5}, {T1}')
        for j in range(4):
            self.dma(SWM, vW32, T5, j * 32 * 6144, None, L_MW + j * 1024, tag='mw')
        e('v_mov_b32 v10, -1')
        e('v_mov_b32 v11, -1')
        e(f'v_lshlrev_b32 {v(vT2)}, 3, v0')
        e(f'buffer_store_dwordx2 v[10:11], {v(vT2)}, {srd(SWS)}, {s_act} offen sc1', tag='clr')
        xload(0)
        e(f's_lshl_b32 {T4}, {T4}, 12')
        e(f's_lshl_b32 {T2}, {T2}, 6')
        e(f's_add_u32 {T4}, {T4}, {T2}')
        e(f's_add_u32 {T4}, {T4}, {WS_MODA}')
        e(f'v_lshrrev_b32 v12, 4, v0')
        e(f'v_and_b32 v13, 15, v0')
        e(f'v_lshlrev_b32 v13, 3, v13')
        e(f'v_lshl_add_u32 v13, v12, 8, v13')
        e(f'v_add_u32 v13, {L_MW}, v13')
        e(f'v_lshlrev_b32 v12, 4, v12')
        e(f'v_add_u32 v12, {L_SB}, v12')
        e(f'v_add_u32 {v(vT)}, {L_SB}, {v(vT)}')
        e.wait_vm('c')
        nonce()
        self.unpack(vC, 10, 11)
        self.silu(10, 14); self.silu(11, 15)
        e('v_cvt_pk_bf16_f32 v10, v10, v11')
        e(f'ds_write_b32 {v(vT)}, v10')
        for ks in range(4):
            e(f'ds_read_b128 {v(96+4*ks,4)}, v12 offset:{ks*64}')
        e.wait_vm('clr')
        for ks in range(4):
            e(f'ds_read_b64_tr_b16 {v(112+4*ks,2)}, v13 offset:{ks*1024}')
            e(f'ds_read_b64_tr_b16 {v(114+4*ks,2)}, v13 offset:{ks*1024+128}', tag=f'mw{ks}')
        for ks in range(4):
            e.wait_lg(f'mw{ks}')
            e(f'v_mfma_f32_16x16x32_bf16 v[128:131], {v(96+4*ks,4)}, {v(112+4*ks,4)}, ' + ('0' if ks == 0 else 'v[128:131]'))
        self.tag_and_store(128, 10, 11, T4)
        for i in (1, 2, 3):
            xload(i)
        e('s_waitcnt vmcnt(3)')
        self.sleep(o['dly_moda'])
        e.label('L_b1')
        e.flush_hist()
        e.vm = ['x0', 'x1', 'x2', 'x3']
        e('s_barrier')
        self.stamp('B1')
        gl = [f'buffer_load_dwordx4 {v(G+4*p,4)}, v3, {srd(SWS)}, {T4} offen sc1' for p in range(4)]
        gloads = []
        for p in range(4):
            gloads += [f's_mov_b32 {T4}, {WS_MODA + p*4096}', gl[p]]
        e(f's_cmp_ge_u32 {s_w}, 4')
        e('s_cbranch_scc1 L_nog')
        for l in gloads:
            e(l, count=False)
        e('s_waitcnt vmcnt(4)')
        e('s_branch L_g1')
        e.label('L_nog')
        e('s_waitcnt vmcnt(0)')
        e.label('L_g1')
        e.vm = []
        nonce()
        for i in range(4):
            for j in range(4):
                self.unpack(XR + 4 * i + j, N + 8 * i + 2 * j, N + 8 * i + 2 * j + 1)
        for i in range(4):
            e(f'v_add_f32 {v(XR+i)}, {v(N+8*i)}, {v(N+8*i+1)}')
        for j in range(2, 8):
            for i in range(4):
                e(f'v_add_f32 {v(XR+i)}, {v(XR+i)}, {v(N+8*i+j)}')
        e(f's_cmp_lt_u32 {s_w}, 4')
        e('s_cbranch_scc1 L_nl1')
        wq_eighth(1, count=False)
        wq_eighth(2, count=False)
        e.label('L_nl1')
        self.red4(XR, XR + 1, XR + 2, XR + 3)
        e(f'v_mul_f32 {v(XR)}, {fbits(1.0/512)}, {v(XR)}')
        for i, ln in enumerate((0, 32, 16, 48)):
            e(f'v_readlane_b32 s{S_MU+i}, {v(XR)}, {ln}')
        for i in range(4):
            for j in range(8):
                e(f'v_subrev_f32 {v(N+8*i+j)}, s{S_MU+i}, {v(N+8*i+j)}')
        for i in range(4):
            e(f'v_mul_f32 {v(XR+i)}, {v(N+8*i)}, {v(N+8*i)}')
        for j in range(1, 8):
            for i in range(4):
                e(f'v_fmac_f32 {v(XR+i)}, {v(N+8*i+j)}, {v(N+8*i+j)}')
        self.red4(XR, XR + 1, XR + 2, XR + 3)
        e(f'v_mov_b32 {v(XR+1)}, {fbits(1e-5)}')
        e(f'v_fmac_f32 {v(XR+1)}, {fbits(1.0/512)}, {v(XR)}')
        e(f'v_rsq_f32 {v(XR)}, {v(XR+1)}')
        for i, ln in enumerate((0, 32, 16, 48)):
            e(f'v_readlane_b32 s{S_MU+i}, {v(XR)}, {ln}')
        for i in range(4):
            for j in range(8):
                e(f'v_mul_f32 {v(N+8*i+j)}, s{S_MU+i}, {v(N+8*i+j)}')
        e(f's_lshl_b32 {T0}, {s_tb}, 3')
        e(f'v_subrev_u32 {v(vHW)}, {T0}, v0')
        e(f'v_and_b32 {v(vHW)}, 63, {v(vHW)}')
        e(f'v_lshlrev_b32 {v(vHW)}, 9, {v(vHW)}')
        e(f'v_add_u32 {v(vHW)}, {L_H}, {v(vHW)}')
        e(f'v_and_b32 {v(vT)}, 7, v0')
        e(f's_lshl_b32 {T0}, {s_w}, 2')
        for i in range(4):
            e(f's_add_u32 {T1}, {s_cb}, {i}')
            e(f's_and_b32 {T1}, {T1}, 3')
            e(f's_add_u32 {T1}, {T1}, {T0}')
            e(f'v_xor_b32 {v(vT2)}, {T1}, {v(vT)}')
            e(f'v_lshl_add_u32 {v(XR+i)}, {v(vT2)}, 4, {v(vHW)}')
        e(f'v_lshlrev_b32 {v(vT)}, 5, v0')
        e(f'v_add_u32 {v(vT)}, {L_STGA}, {v(vT)}')
        e(f's_cmp_ge_u32 {s_w}, 4')
        e('s_cbranch_scc1 L_ld2')
        e(f's_cmp_ge_u32 {s_w}, 2')
        e(f's_cselect_b32 {s_one}, 1.0, 0')
        e('s_waitcnt vmcnt(0)')
        self.gather_check(G, 4, vT2, gloads, 'ga')
        self.round_mod(G, G + 4)
        e(f'v_add_u32 v3, {L_STGA}, v3')
        e(f'ds_write_b128 v3, {v(G,4)}')
        e('s_branch L_b2')
        e.label('L_ld2')
        e.flush_hist()
        e(f's_cmp_lg_u32 {s_w}, 4')
        e('s_cbranch_scc1 L_not4b')
        e(f'v_lshrrev_b32 v12, 4, v0')
        e(f'v_and_b32 v13, 15, v0')
        e(f'v_lshlrev_b32 v13, 3, v13')
        e(f'v_lshl_add_u32 v13, v12, 8, v13')
        e(f'v_add_u32 v13, {L_WKV}, v13')
        for ks in range(16):
            e(f'ds_read_b64_tr_b16 {v(176+4*ks,2)}, v13 offset:{ks*1024}')
            e(f'ds_read_b64_tr_b16 {v(178+4*ks,2)}, v13 offset:{ks*1024+128}')
        e('s_branch L_b2')
        e.label('L_not4b')
        e(f's_cmp_lg_u32 {s_w}, 5')
        e('s_cbranch_scc1 L_b2')
        self.unpack(14, 10, 11); self.unpack(15, 12, 13)
        for r in (10, 11, 12, 13):
            self.silu(r, 14)
        e('v_cvt_pk_bf16_f32 v14, v10, v11')
        e('v_cvt_pk_bf16_f32 v15, v12, v13')
        e.label('L_b2')
        e.flush_hist()
        e('s_waitcnt lgkmcnt(0)')
        e('s_barrier')
        self.stamp('B2')
        e(f'ds_read_b128 {v(SA,4)}, {v(vT)}')
        e(f'ds_read_b128 {v(CA,4)}, {v(vT)} offset:2048', tag='m0')
        e(f'ds_read_b128 {v(SA+4,4)}, {v(vT)} offset:16')
        e(f'ds_read_b128 {v(CA+4,4)}, {v(vT)} offset:2064', tag='m1')
        e(f's_cmp_lt_u32 {s_w}, 4')
        e('s_cbranch_scc1 L_nl2')
        wq_eighth(3, count=False)
        wq_eighth(4, count=False)
        e.label('L_nl2')
        e.wait_lg('m1')
        for i in range(4):
            for j in range(0, 8, 2):
                e(f'v_pk_fma_f32 {v(N+8*i+j,2)}, {v(N+8*i+j,2)}, {v(CA+j,2)}, {v(SA+j,2)}')
            for j in range(4):
                e(f'v_cvt_pk_bf16_f32 {v(N+8*i+j)}, {v(N+8*i+2*j)}, {v(N+8*i+2*j+1)}')
            e(f'ds_write_b128 {v(XR+i)}, {v(N+8*i,4)}')
        e('s_waitcnt vmcnt(8) lgkmcnt(0)')
        e('s_barrier')
        self.stamp('B3')
        e(f's_cmp_lt_u32 {s_w}, 4')
        e('s_cbranch_scc1 L_qw')
        e(f's_cmp_lg_u32 {s_w}, 4')
        e('s_cbranch_scc1 L_not4c')
        e('s_setprio 3')
        e(f's_lshr_b32 {T0}, {s_cb}, 1')
        e(f's_lshl_b32 {T0}, {T0}, 4')
        e(f'v_and_b32 v10, 15, v0')
        e(f'v_add_u32 v10, {T0}, v10')
        e(f'v_lshrrev_b32 v12, 4, v0')
        e(f'v_xor_b32 v10, v10, v12')
        e(f'v_lshlrev_b32 v10, 4, v10')
        e(f'v_lshl_add_u32 v10, v12, 9, v10')
        e(f'v_add_u32 v10, {L_H}, v10')
        e(f'v_xor_b32 v11, 64, v10')
        for ks in range(16):
            e(f'ds_read_b128 {v(104+4*ks,4)}, v{10+ks%2} offset:{ks*2048}', tag=f'h{ks}')
        e(f'v_and_b32 v13, 15, v0')
        e(f'v_lshlrev_b32 v13, 4, v13')
        e(f'v_and_b32 v10, 1, v12')
        e(f'v_lshrrev_b32 v11, 1, v12')
        e(f's_bitcmp1_b32 {s_cb}, 0')
        e('s_cbranch_scc1 L_isv')
        lgsave = list(e.lg)
        for isv in (0, 1):
            if isv:
                e.label('L_isv'); e.flush_hist(); e.lg = list(lgsave)
            a, b = (11, 10) if isv else (10, 11)
            e(f'v_lshl_add_u32 v13, v{a}, 8, v13')
            e(f'v_lshl_add_u32 v13, v{b}, 3, v13')
            for ks in range(16):
                e.wait_lg(f'h{ks}')
                acc = 240 + 4 * (ks % 2)
                W, H = v(176 + 4 * ks, 4), v(104 + 4 * ks, 4)
                A, B = (H, W) if isv else (W, H)
                e(f'v_mfma_f32_16x16x32_bf16 {v(acc,4)}, {A}, {B}, ' + ('0' if ks < 2 else v(acc, 4)))
            e(f'v_pk_add_f32 v[240:241], v[240:241], v[244:245]')
            e(f'v_pk_add_f32 v[242:243], v[242:243], v[246:247]')
            if not isv:
                for j in range(4):
                    e(f'v_mul_f32 {v(240+j)}, {fbits(0.25*1.4426950408889634)}, {v(240+j)}')
                e('s_branch L_kvst')
        e.label('L_kvst')
        e('v_cvt_pk_bf16_f32 v240, v240, v241')
        e('v_cvt_pk_bf16_f32 v241, v242, v243')
        e(f'buffer_store_dwordx2 v[240:241], v13, {srd(SWS)}, {s_act} offen sc1', count=False)
        e('s_setprio 0')
        e.label('L_not4c')
        e.flush_hist()
        for i in (5, 6, 7):
            wq_eighth(i, count=False)
        self.att_setup()
        e('s_waitcnt vmcnt(0)')
        self.sleep(o['dly_kv'])
        e('s_barrier')
        self.stamp('Bw2')
        self.kv_prologue()
        vmsave = list(e.vm)
        e('s_barrier')
        e(f's_lshl_b32 {T0}, {s_m}, 11')
        e(f'v_lshl_add_u32 v40, v0, 4, {T0}')
        e(f'ds_read_b128 v[16:19], v40 offset:{L_QX+1024}')
        e(f'ds_read_b128 v[20:23], v40 offset:{L_QX}')
        e('s_waitcnt lgkmcnt(0)')
        e('s_branch L_att')
        e.label('L_qw')
        e.flush_hist(); e.vm = []; e.lg = []
        self.nstamp -= 1 if o['prof'] else 0
        if o['prof']:
            self.stamp_names.pop()
        vA, vA2, vH = 240, 241, 242
        e('v_bfe_u32 v10, v0, 2, 2')
        e('v_lshrrev_b32 v11, 5, v0')
        e('v_lshl_add_u32 v11, v11, 3, v10')
        e(f'v_lshlrev_b32 {v(vA)}, 8, v11')
        e(f'v_xor_b32 v10, {s_m}, v10')
        e(f'v_lshl_add_u32 {v(vA)}, v10, 6, {v(vA)}')
        e('v_bfe_u32 v10, v0, 4, 1')
        e(f'v_lshl_add_u32 {v(vA)}, v10, 5, {v(vA)}')
        e('v_and_b32 v10, 3, v0')
        e(f'v_lshl_add_u32 {v(vA)}, v10, 3, {v(vA)}')
        e(f'v_add_u32 {v(vA2)}, 65536, {v(vA)}')
        e('v_and_b32 v10, 31, v0')
        e('v_lshrrev_b32 v11, 5, v0')
        e('v_xor_b32 v10, v10, v11')
        e('v_lshlrev_b32 v10, 4, v10')
        e('v_lshl_add_u32 v10, v11, 9, v10')
        e(f'v_add_u32 {v(vH)}, {L_H}, v10')
        for j in (1, 2, 3):
            e(f'v_xor_b32 {v(vH+j)}, {32*j}, {v(vH)}')
        RING = 4

        def qreads(ks):
            r = 176 + 8 * (ks % RING)
            base = vA if ks < 16 else vA2
            off = (ks % 16) * 4096
            e(f'ds_read_b64_tr_b16 {v(r,2)}, {v(base)} offset:{off}')
            e(f'ds_read_b64_tr_b16 {v(r+2,2)}, {v(base)} offset:{off+1024}')
            e(f'ds_read_b128 {v(r+4,4)}, {v(vH+ks%4)} offset:{ks*1024}', tag=f'q{ks}')

        def qseg(k0, k1):
            for ks in range(k0, min(k0 + RING - 1, k1)):
                qreads(ks)
            for ks in range(k0, k1):
                if ks + RING - 1 < k1:
                    qreads(ks + RING - 1)
                e.wait_lg(f'q{ks}')
                r = 176 + 8 * (ks % RING)
                e(f'v_mfma_f32_32x32x16_bf16 v[40:55], {v(r,4)}, {v(r+4,4)}, ' + ('0' if ks == 0 else 'v[40:55]'))
        qseg(0, 12)
        self.att_setup()
        e('s_barrier')
        self.stamp('Bw2')
        self.kv_prologue()
        assert e.vm == vmsave
        qseg(12, 32)
        for j in range(8):
            e(f'v_cvt_pk_bf16_f32 {v(16+j)}, {v(40+2*j)}, {v(41+2*j)}')
        e(f's_lshl_b32 {T0}, {s_m}, 11')
        e(f'v_lshl_add_u32 v40, v0, 4, {T0}')
        e(f'ds_write_b128 v40, v[16:19] offset:{L_QX}')
        e(f'ds_write_b128 v40, v[20:23] offset:{L_QX+1024}')
        e('s_waitcnt lgkmcnt(0)')
        e('s_barrier')
        e.label('L_att')
        e.flush_hist()

    vKV, vIDX, vOA, vW32, vYA, vHA, vSTA, vWO, vWG, vWU = 1, 2, 3, 4, 5, 6, 7, 8, 9, 10
    vTR = 11
    vTMP = 12
    vTMP2 = 13
    Q0, Q1 = 16, 20
    GB, XRES = 24, 32
    S0, S1, O0, O1, KVB, WOA = 40, 56, 72, 88, 104, 176

    def att_setup(self):
        e = self.e; D = self.o['D']
        t, t2, t3 = 24, 25, 26
        e(f'v_and_b32 {v(t)}, 15, v0')
        e(f'v_lshlrev_b32 {v(t)}, 4, {v(t)}')
        e(f'v_lshrrev_b32 {v(t2)}, 5, v0')
        e(f'v_lshl_add_u32 {v(t2)}, {v(t2)}, 8, {v(t)}')
        e(f'v_bfe_u32 {v(t3)}, v0, 4, 1')
        e(f'v_lshl_add_u32 {v(self.vKV)}, {v(t3)}, 9, {v(t2)}')
        e(f's_lshl_b32 {s_kvb}, {s_kh}, 16')
        e(f's_add_u32 {s_kvb}, {s_kvb}, {WS_KV}')
        e(f'v_mov_b32 {v(self.vIDX)}, 0xdddddddd')
        e(f's_lshl_b32 {T0}, {s_x}, 3')
        e(f's_add_u32 {T0}, {T0}, {s_tb}')
        e(f's_lshl_b32 {T0}, {T0}, 15')
        e(f's_lshl_b32 {T1}, {s_cb}, 2')
        e(f's_add_u32 {T1}, {T1}, {s_m}')
        e(f's_lshl_b32 {T1}, {T1}, 1')
        e(f's_add_u32 {T1}, {T1}, {s_kh}')
        e(f's_lshl_b32 {T1}, {T1}, 9')
        e(f's_add_u32 {T0}, {T0}, {T1}')
        e(f's_add_u32 {T0}, {T0}, {WS_O}')
        e(f'v_lshl_add_u32 {v(self.vOA)}, {v(t3)}, 14, {v(t2)}')
        e(f'v_add_u32 {v(self.vOA)}, {T0}, {v(self.vOA)}')
        e(f's_lshl_b32 {T0}, {s_x}, 3')
        e(f's_add_u32 {T0}, {T0}, {s_w}')
        e(f's_mul_i32 {T0}, {T0}, {2*44032}')
        e(f's_mul_i32 {T1}, {s_c}, 1536')
        e(f's_add_u32 {T0}, {T0}, {T1}')
        e(f's_add_u32 {T0}, {T0}, {WS_HH}')
        e(f's_cmp_ge_u32 {s_c}, 29')
        e(f's_cselect_b32 {T0}, {OOB}, {T0}')
        e(f'v_mul_u32_u24 {v(self.vHA)}, 44032, {v(t3)}')
        e(f'v_add3_u32 {v(self.vHA)}, {v(self.vHA)}, {v(t2)}, {T0}')
        e(f's_lshl_b32 {T0}, {s_x}, 2')
        e(f's_add_u32 {T0}, {T0}, {s_oct}')
        e(f's_lshl_b32 {T0}, {T0}, 1')
        e(f's_lshr_b32 {T1}, {s_m}, 1')
        e(f's_add_u32 {T1}, {T1}, {T0}')
        e(f's_lshl_b32 {T1}, {T1}, 15')
        e(f's_lshl_b32 {T2}, {s_nb}, 1')
        e(f's_add_u32 {T2}, {T2}, {s_kh}')
        e(f's_lshl_b32 {T2}, {T2}, 11')
        e(f's_add_u32 {T1}, {T1}, {T2}')
        e(f's_and_b32 {T2}, {s_m}, 1')
        e(f's_lshl_b32 {T2}, {T2}, 8')
        e(f's_add_u32 {T1}, {T1}, {T2}')
        e(f's_add_u32 {T1}, {T1}, {WS_Y}')
        e(f'v_lshrrev_b32 {v(t3)}, 4, v0')
        e(f'v_lshl_add_u32 {v(self.vYA)}, {v(t3)}, 9, {v(t)}')
        e(f'v_add_u32 {v(self.vYA)}, {T1}, {v(self.vYA)}')
        e(f's_lshl_b32 {T0}, {T0}, 11')
        e(f's_lshl_b32 {T1}, {s_nb}, 8')
        e(f's_add_u32 {T0}, {T0}, {T1}')
        e(f's_add_u32 {T0}, {T0}, {WS_STATS}')
        e(f's_cmp_eq_u32 {s_w}, 7')
        e(f's_cselect_b32 {T0}, {T0}, {OOB}')
        e(f'v_and_b32 {v(t)}, 31, v0')
        e(f'v_lshlrev_b32 {v(t)}, 3, {v(t)}')
        e(f'v_lshrrev_b32 {v(t2)}, 5, v0')
        e(f'v_lshl_add_u32 {v(t)}, {v(t2)}, 11, {v(t)}')
        e(f'v_add_u32 {v(self.vSTA)}, {T0}, {v(t)}')
        e(f'v_bfe_u32 {v(t)}, v0, 1, 2')
        e(f'v_xor_b32 {v(t)}, {v(t)}, {v(t3)}')
        e(f'v_lshlrev_b32 {v(t)}, 5, {v(t)}')
        e(f'v_lshrrev_b32 {v(t2)}, 3, v0')
        e(f'v_lshl_add_u32 {v(t)}, {v(t2)}, 10, {v(t)}')
        e(f'v_and_b32 {v(t2)}, 1, v0')
        e(f'v_lshl_add_u32 {v(t)}, {v(t2)}, 4, {v(t)}')
        e(f's_lshl_b32 {T0}, {s_nb}, 7')
        e(f'v_add_u32 {v(self.vWO)}, {T0}, {v(t)}')
        e(f's_mul_i32 {T0}, {s_c}, 96')
        e(f'v_lshl_add_u32 {v(t2)}, {v(t2)}, 4, {T0}')
        e(f'v_lshrrev_b32 {v(t)}, 1, v0')
        e(f'v_mul_u32_u24 {v(self.vWG)}, 2752, {v(t)}')
        e(f'v_add_u32 {v(self.vWG)}, {v(self.vWG)}, {v(t2)}')
        e(f'v_xor_b32 {v(t)}, 4, {v(t)}')
        e(f'v_mul_u32_u24 {v(self.vWU)}, 2752, {v(t)}')
        e(f'v_add_u32 {v(self.vWU)}, {v(self.vWU)}, {v(t2)}')
        e(f'v_bfe_u32 {v(t)}, v0, 2, 3')
        e(f'v_lshrrev_b32 {v(t2)}, 5, v0')
        e(f'v_lshl_add_u32 {v(t2)}, {v(t2)}, 4, {v(t)}')
        e(f'v_lshlrev_b32 {v(t2)}, 7, {v(t2)}')
        e(f'v_lshrrev_b32 {v(t)}, 1, {v(t)}')
        e(f's_lshl_b32 {T0}, {s_kh}, 1')
        e(f'v_xor_b32 {v(t)}, {T0}, {v(t)}')
        e(f'v_lshl_add_u32 {v(t2)}, {v(t)}, 5, {v(t2)}')
        e(f'v_and_b32 {v(t)}, 3, v0')
        e(f'v_lshl_add_u32 {v(t2)}, {v(t)}, 3, {v(t2)}')
        e(f's_lshl_b32 {T0}, {s_kh}, 12')
        e(f'v_add_u32 {v(self.vTR)}, {T0}, {v(t2)}')
        e(f'v_and_b32 {v(t)}, 27, v0')
        e(f'v_cmp_eq_u32 vcc, 16, {v(t)}')
        e(f'v_mov_b32 {v(t2)}, 0x3f803f80')
        e(f'v_cndmask_b32 {v(t)}, 0, {v(t2)}, vcc')
        for b in range(D):
            for j in range(8):
                e(f'v_mov_b32 {v(self.KVB+12*b+4+j)}, {v(t)}')
        for j in range(32):
            e(f'v_mov_b32 {v(self.O0+j)}, 0')
        for j in range(4):
            e(f'v_mov_b32 {v(self.GB+j)}, -1')

    def kv_lines(self, t, buf=None, soff=None):
        b = self.KVB + 12 * ((t % self.o['D']) if buf is None else buf)
        L = []
        if soff is None:
            L.append(f's_add_u32 {T7}, {s_kvb}, {t*2048}'); soff = T7
        L.append(f'buffer_load_dwordx4 {v(b,4)}, {v(self.vKV)}, {srd(SWS)}, {soff} offen sc1')
        L.append(f's_mov_b64 exec, {s(S_VM,2)}')
        L.append(f'buffer_load_dwordx4 {v(b+4,4)}, {v(self.vKV)}, {srd(SWS)}, {soff} offen offset:1024 sc1')
        L.append(f'buffer_load_dwordx4 {v(b+8,4)}, {v(self.vKV)}, {srd(SWS)}, {soff} offen offset:1536 sc1')
        L.append('s_mov_b64 exec, -1')
        return L

    def kv_load(self, t):
        for l in self.kv_lines(t):
            self.e(l, tag=f'kv{t}')

    def kv_prologue(self):
        self.e.vm = []
        for t in range(self.o['D']):
            self.kv_load(t)

    def kv_ready(self, t):
        e = self.e
        e.wait_vm(f'kv{t}')
        if t < self.o['nchk']:
            b = self.KVB + 12 * (t % self.o['D'])
            self.frag_check([b, b + 4, b + 8], self.vTMP, self.kv_lines(t), 'kv')

    def tr64(self, dst, step_off, region_reg_base):
        e = self.e
        for j in range(4):
            e(f'ds_read_b64_tr_b16 {v(dst+4*j,2)}, {v(region_reg_base+j)} offset:{step_off}')
            e(f'ds_read_b64_tr_b16 {v(dst+4*j+2,2)}, {v(region_reg_base+j)} offset:{step_off+1024}', tag=f'w{dst+4*j}')

    def tr64_addr(self, base, region):
        e = self.e
        e(f'v_add_u32 {v(base)}, {region}, {v(self.vTR)}')
        for j in (1, 2, 3):
            e(f'v_xor_b32 {v(base+j)}, {32*j}, {v(base)}')

    def w64_dma(self, rs, step, halfrows, lds_addr, tag=None):
        self.dma(rs, self.vWO, s_ds, step * 32768, s_dl, lds_addr, tag=tag)

    def w64_bases(self, halfrows):
        e = self.e
        e(f's_lshl_b32 {s_dl}, {s_w}, 10')
        e(f's_mul_i32 {s_ds}, {s_kh}, {halfrows*1024}')
        e(f's_lshl_b32 {T0}, {s_m}, 13')
        e(f's_add_u32 {s_ds}, {s_ds}, {T0}')

    def attention(self):
        e = self.e; o = self.o; D = o['D']
        S = (self.S0, self.S1); O = (self.O0, self.O1); Q = (self.Q0, self.Q1)
        NT = 32
        kb = lambda t: self.KVB + 12 * (t % D)
        QK = lambda d, t, q: e(f'v_mfma_f32_32x32x16_bf16 {v(d,16)}, {v(kb(t),4)}, {v(q,4)}, 0')
        SM = lambda d, a, b: e(f'v_smfmac_f32_32x32x32_bf16 {v(d,16)}, {v(a,4)}, {v(b,8)}, {v(self.vIDX)}')
        self.stamp('att0')
        e('s_setprio 3')
        self.w64_bases(256)
        GB = self.GB
        gloads = []
        for p in range(2):
            gloads += [f's_mov_b32 {T7}, {WS_MODB + p*8192}',
                       f'buffer_load_dwordx4 {v(GB+4*p,4)}, v36, {srd(SWS)}, {T7} offen sc1']
        self.gb_loads = gloads

        def side(t):
            if t < 4:
                for i in (2 * t, 2 * t + 1):
                    self.w64_dma(SWO, i, 256, (L_WOA + i * 8192) if i < 4 else (L_WOB + (i - 4) * 8192))
            if t == 4:
                e(f's_lshl_b32 {T0}, {s_x}, 3')
                e(f's_add_u32 {T0}, {T0}, {s_tb}')
                e(f's_and_b32 {T1}, {T0}, 1')
                e(f's_lshr_b32 {T0}, {T0}, 1')
                e(f's_lshl_b32 {T0}, {T0}, 2')
                e(f's_add_u32 {T0}, {T0}, {s_cb}')
                e(f's_lshl_b32 {T2}, {T1}, 3')
                e(f's_add_u32 {T2}, {T2}, {s_w}')
                e(f's_mul_i32 {T2}, {T2}, {32*6144}')
                e(f's_lshl_b32 {T3}, {T0}, 5')
                e(f's_add_u32 {T2}, {T2}, {T3}')
                self.dma(SWM, self.vW32, T2, 2048, s_dl, L_MBW)
                e(f's_lshl_b32 {T1}, {T1}, 13')
                e(f's_lshl_b32 {T0}, {T0}, 6')
                e(f's_add_u32 {T0}, {T0}, {T1}')
                e(f's_add_u32 {T5}, {T0}, {WS_MODB}')
                e(f'buffer_store_dwordx4 {v(GB,4)}, {v(self.vOA)}, {srd(SWS)}, 0 offen sc1')
                e(f'buffer_store_dwordx4 {v(GB,4)}, {v(self.vYA)}, {srd(SWS)}, 0 offen sc1')
            if t == 5:
                e(f's_cmp_eq_u32 {s_c}, 28')
                e(f's_cselect_b32 {T4}, {OOB}, 0')
                e(f'buffer_store_dwordx4 {v(GB,4)}, {v(self.vHA)}, {srd(SWS)}, 0 offen sc1')
                e(f'buffer_store_dwordx4 {v(GB,4)}, {v(self.vHA)}, {srd(SWS)}, 0 offen offset:512 sc1')
                e(f'buffer_store_dwordx4 {v(GB,4)}, {v(self.vHA)}, {srd(SWS)}, {T4} offen offset:1024 sc1')
                e(f'buffer_store_dwordx2 {v(GB,2)}, {v(self.vSTA)}, {srd(SWS)}, 0 offen sc1', tag='clr')
            if t == 9:
                e('s_setprio 2')
            if t == 10:
                e.wait_vm('clr')
                e('s_barrier')
                lab = e.newlabel('nomb')
                e(f's_cmp_lg_u32 {s_w}, 5')
                e(f's_cbranch_scc1 {lab}')
                W = self.WOA
                e(f'v_lshlrev_b32 {v(self.vTMP)}, 3, v0')
                e(f'ds_write_b64 {v(self.vTMP)}, v[14:15] offset:{L_SB2}')
                e(f'v_lshrrev_b32 v14, 4, v0')
                e(f'v_and_b32 v15, 15, v0')
                e(f'v_lshlrev_b32 v15, 3, v15')
                e(f'v_lshl_add_u32 v15, v14, 8, v15')
                e(f'v_lshlrev_b32 v14, 4, v14')
                for ks in range(8):
                    e(f'ds_read_b128 {v(W+8*ks,4)}, v14 offset:{L_SB2+ks*64}')
                    e(f'ds_read_b64_tr_b16 {v(W+8*ks+4,2)}, v15 offset:{L_MBW+ks*1024}')
                    e(f'ds_read_b64_tr_b16 {v(W+8*ks+6,2)}, v15 offset:{L_MBW+ks*1024+128}')
                e('s_waitcnt lgkmcnt(0)')
                for ks in range(8):
                    e(f'v_mfma_f32_16x16x32_bf16 v[240:243], {v(W+8*ks,4)}, {v(W+8*ks+4,4)}, ' + ('0' if ks == 0 else 'v[240:243]'))
                self.tag_and_store(240, 14, 15, T5)
                e.label(lab)
                self.tr64_addr(240, L_WOA)
                for i in range(2):
                    self.tr64(self.WOA + 16 * i, i * 8192, 240)
            if t == 11:
                for i in range(2, 4):
                    self.tr64(self.WOA + 16 * i, i * 8192, 240)
            if t == 12:
                e('s_waitcnt lgkmcnt(0)')
                e('s_barrier')
                e('s_setprio 1')
                e(f's_lshl_b32 {T5}, {s_w}, 11')
                e(f's_mul_i32 {T4}, {s_w}, {64*2752}')
            if t in (13, 15, 17, 19):
                i = (t - 13) // 2
                mat, rb = i % 2, i // 2
                for tl in range(3):
                    self.dma(SWU if mat else SWG, self.vWU if mat else self.vWG, T4, rb * 32 * 2752 + 32 * tl,
                             T5, L_WGU + tl * 32768 + mat * 16384 + rb * 1024)
            if t == 24:
                e(f's_mul_i32 {T0}, {s_c}, {43*1024}')
                e(f's_lshl_b32 {T1}, {s_w}, 7')
                e(f's_add_u32 {T0}, {T0}, {T1}')
                e(f'v_min_u32 {v(self.vTMP2)}, 42, v0')
                e(f'v_lshlrev_b32 {v(self.vTMP2)}, 10, {v(self.vTMP2)}')
                e(f'buffer_load_dword v37, {v(self.vTMP2)}, {srd(SWD)}, {T0} offen')
            if t == 27:
                e(f's_lshl_b32 {T0}, {s_w}, 10')
                e(f'v_lshl_add_u32 v36, v0, 4, {T0}')
                for l in gloads:
                    e(l, tag='gb')
                e(f's_lshl_b32 {T0}, {s_x}, 2')
                e(f's_add_u32 {T0}, {T0}, {s_oct}')
                e(f's_lshl_b32 {T0}, {T0}, 2')
                e(f's_add_u32 {T0}, {T0}, {s_m}')
                e(f's_lshl_b32 {s_act}, {T0}, 14')
                e(f's_lshl_b32 {T1}, {s_nb}, 1')
                e(f's_add_u32 {T1}, {T1}, {s_kh}')
                e(f's_lshl_b32 {T1}, {T1}, 6')
                e(f's_add_u32 {T1}, {T1}, {s_act}')
                e(f'v_and_b32 v38, 15, v0')
                e(f'v_lshl_add_u32 v38, v38, 10, {T1}')
                e(f'v_lshrrev_b32 {v(self.vTMP2)}, 4, v0')
                e(f'v_lshl_add_u32 {v(self.vTMP2)}, {v(self.vTMP2)}, 3, v38')
                e(f'buffer_load_dwordx2 {v(self.XRES,2)}, {v(self.vTMP2)}, {srd(SX)}, 0 offen')
                e(f'buffer_load_dwordx2 {v(self.XRES+2,2)}, {v(self.vTMP2)}, {srd(SX)}, 0 offen offset:32')
            if t == 29:
                e('s_setprio 0')

        self.kv_ready(0)
        QK(S[0], 0, Q[0])
        for t in range(NT):
            for a in range(2):
                cur, oth = S[a], S[1 - a]
                for r in range(16):
                    if r == 2:
                        if a == 0 and t > 0:
                            SM(O[1], kb(t - 1) + 8, oth + 8)
                            if t - 1 + D < NT:
                                self.kv_load(t - 1 + D)
                        if a == 1:
                            SM(O[0], kb(t) + 8, oth + 8)
                            if t + 1 < NT:
                                self.kv_ready(t + 1)
                    if r == 5:
                        if a == 0:
                            QK(oth, t, Q[1])
                        elif t + 1 < NT:
                            QK(oth, t + 1, Q[0])
                    if r == 10:
                        SM(O[a], kb(t) + 4, cur)
                        if a == 0:
                            side(t)
                    e(f'v_exp_f32 {v(cur+r)}, {v(cur+r)}')
        SM(O[1], kb(NT - 1) + 8, S[1] + 8)
        self.stamp('att1')

    def att_epilogue(self):
        e = self.e; o = self.o
        O0, O1, S0 = self.O0, self.O1, self.S0
        t, t2 = self.vTMP, self.vTMP2
        e(f's_mul_i32 {T0}, {s_w}, 2304')
        e(f's_add_u32 {T0}, {T0}, {L_EX}')
        e(f'v_lshl_add_u32 {v(t)}, v0, 4, {T0}')
        e(f'v_lshl_add_u32 {v(t2)}, v0, 2, {T0}')
        e(f's_xor_b32 {T1}, {s_w}, 4')
        e(f's_mul_i32 {T1}, {T1}, 2304')
        e(f's_add_u32 {T1}, {T1}, {L_EX}')
        e(f'v_lshl_add_u32 v14, v0, 4, {T1}')
        e(f'v_lshl_add_u32 v15, v0, 2, {T1}')
        e(f'ds_write_b128 {v(t)}, {v(O1,4)}')
        e(f'ds_write_b128 {v(t)}, {v(O1+4,4)} offset:1024')
        e(f'ds_write_b32 {v(t2)}, {v(O1+8)} offset:2048')
        e('s_waitcnt vmcnt(0) lgkmcnt(0)')
        e('s_barrier')
        e(f'ds_read_b32 {v(S0+8)}, v15 offset:2048', tag='l')
        e(f'ds_read_b128 {v(S0,4)}, v14', tag='a')
        e(f'ds_read_b128 {v(S0+4,4)}, v14 offset:1024', tag='b')
        e(f's_mov_b32 {T0}, {fbits(2.0**-90)}')
        e(f'v_mov_b32 {v(t2)}, {fbits(2.0**120)}')
        e.wait_lg('l')
        e(f'v_add_f32 {v(O0+8)}, {v(O0+8)}, {v(S0+8)}')
        e(f'v_med3_f32 {v(t)}, {v(O0+8)}, {T0}, {v(t2)}')
        e(f'v_cmp_neq_f32 {s(72,2)}, {v(t)}, {v(O0+8)}')
        e(f'v_rcp_f32 {v(O0+8)}, {v(O0+8)}')
        e.wait_lg('b')
        for j in range(0, 8, 2):
            e(f'v_pk_add_f32 {v(O0+j,2)}, {v(O0+j,2)}, {v(S0+j,2)}')
        for j in range(8):
            e(f'v_mul_f32 {v(O0+j)}, {v(O0+j)}, {v(O0+8)}')
        e(f'v_pk_add_f32 {v(S0,2)}, {v(O0,2)}, {v(O0+2,2)}')
        e(f'v_pk_add_f32 {v(S0+2,2)}, {v(O0+4,2)}, {v(O0+6,2)}')
        e(f'v_pk_add_f32 {v(S0,2)}, {v(S0,2)}, {v(S0+2,2)}')
        e(f'v_add_f32 {v(S0)}, {v(S0)}, {v(S0+1)}')
        e(f'v_mov_b32 {v(t)}, 0x207')
        e(f'v_cmp_class_f32 vcc, {v(S0)}, {v(t)}')
        e(f's_or_b64 vcc, vcc, {s(72,2)}')
        if o['force_slow']:
            e('s_branch L_slow')
        else:
            e('s_cbranch_vccnz L_slow')
        e.label('L_slow_ret')
        for j in range(4):
            e(f'v_cvt_pk_bf16_f32 {v(O0+j)}, {v(O0+2*j)}, {v(O0+2*j+1)}')
        e(f'buffer_store_dwordx4 {v(O0,4)}, {v(self.vOA)}, {srd(SWS)}, 0 offen sc1', tag='o')
        self.stubs.append(('code', self.slow_path))
        self.stamp('opub')

    def slow_path(self):
        e = self.e
        O0, S0, S1, K = self.O0, self.S0, self.S1, self.KVB
        t, m = self.vTMP, self.vTMP2
        e.label('L_slow')
        e('s_nop 7')

        def fetch(name):
            top = e.newlabel(name); go = e.newlabel(name + 'go')
            e.label(top)
            for l in self.kv_lines(0, buf=0, soff=T0):
                e(l, count=False)
            e('s_waitcnt vmcnt(0)')
            e(f'v_max3_u32 {v(t)}, {v(K)}, {v(K+4)}, {v(K+8)}')
            e(f'v_cmp_eq_u32 vcc, -1, {v(t)}')
            e(f's_cbranch_vccz {go}')
            e(f's_cmp_eq_u32 {s_budget}, 0')
            e(f's_cbranch_scc1 {go}')
            e(f's_sub_u32 {s_budget}, {s_budget}, 1')
            e(f's_branch {top}')
            e.label(go)
            return top
        e(f'v_mov_b32 {v(m)}, 0xff800000')
        e(f's_mov_b32 {T0}, {WS_KV}')
        top = fetch('sl1')
        e(f'v_mfma_f32_32x32x16_bf16 {v(S0,16)}, {v(K,4)}, {v(self.Q0,4)}, 0')
        for j in range(0, 16, 2):
            e(f'v_max3_f32 {v(m)}, {v(m)}, {v(S0+j)}, {v(S0+j+1)}')
        e(f's_add_u32 {T0}, {T0}, 2048')
        e(f's_cmp_lt_u32 {T0}, {WS_KV+64*2048}')
        e(f's_cbranch_scc1 {top}')
        e(f'v_mov_b32 {v(t)}, {v(m)}')
        e(f'v_permlane32_swap_b32 {v(m)}, {v(t)}')
        e(f'v_max_f32 {v(m)}, {v(m)}, {v(t)}')
        for j in range(16):
            e(f'v_sub_f32 {v(S1+j)}, 0, {v(m)}')
            e(f'v_mov_b32 {v(O0+j)}, 0')
        e(f's_mov_b32 {T0}, {WS_KV}')
        top = fetch('sl2')
        e(f'v_mfma_f32_32x32x16_bf16 {v(S0,16)}, {v(K,4)}, {v(self.Q0,4)}, {v(S1,16)}')
        for j in range(16):
            e(f'v_exp_f32 {v(S0+j)}, {v(S0+j)}')
        e(f'v_smfmac_f32_32x32x32_bf16 {v(O0,16)}, {v(K+4,4)}, {v(S0,8)}, {v(self.vIDX)}')
        e(f'v_smfmac_f32_32x32x32_bf16 {v(O0,16)}, {v(K+8,4)}, {v(S0+8,8)}, {v(self.vIDX)}')
        e('s_nop 7')
        e(f's_add_u32 {T0}, {T0}, 2048')
        e(f's_cmp_lt_u32 {T0}, {WS_KV+64*2048}')
        e(f's_cbranch_scc1 {top}')
        e('s_nop 7')
        e(f'v_rcp_f32 {v(O0+8)}, {v(O0+8)}')
        for j in range(8):
            e(f'v_mul_f32 {v(O0+j)}, {v(O0+j)}, {v(O0+8)}')
        e('s_branch L_slow_ret')

    def exchange(self, acc, recv):
        e = self.e
        t, t2 = self.vTMP, self.vTMP2
        e(f'ds_write_b128 {v(t)}, {v(acc+8,4)}')
        e(f'ds_write_b128 {v(t)}, {v(acc+12,4)} offset:1024')
        e('s_waitcnt lgkmcnt(0)')
        e('s_barrier')
        e(f'ds_read_b128 {v(recv,4)}, {v(t2)}', tag='a')
        e(f'ds_read_b128 {v(recv+4,4)}, {v(t2)} offset:1024', tag='b')
        e.wait_lg('a')
        for j in (0, 2):
            e(f'v_pk_add_f32 {v(acc+j,2)}, {v(acc+j,2)}, {v(recv+j,2)}')
        e.wait_lg('b')
        for j in (4, 6):
            e(f'v_pk_add_f32 {v(acc+j,2)}, {v(acc+j,2)}, {v(recv+j,2)}')

    def exchange_addr(self):
        e = self.e
        e(f's_lshl_b32 {T0}, {s_w}, 11')
        e(f's_add_u32 {T0}, {T0}, {L_EX}')
        e(f'v_lshl_add_u32 {v(self.vTMP)}, v0, 4, {T0}')
        e(f'v_xor_b32 {v(self.vTMP2)}, 8192, {v(self.vTMP)}')

    X1 = 16

    def phase_o(self):
        e = self.e; o = self.o
        GB = self.GB; X1 = self.X1
        WB, OF, ACC, RECV, GA, CB = 104, 40, 72, 88, 240, 248
        e(f's_lshr_b32 {T0}, {s_w}, 1')
        e(f's_cmp_eq_u32 {T0}, 2')
        e(f's_cselect_b32 {s_one}, 1.0, 0')
        self.tr64_addr(96, L_WOB)
        for i in range(2):
            self.tr64(WB + 16 * i, i * 8192, 96)
        self.gather_check(GB, 2, 14, self.gb_loads, 'gb')
        self.round_mod(GB, GB + 4)
        e(f'v_lshrrev_b32 v15, 1, v36')
        e(f'v_add_u32 v36, {L_STGB}, v36')
        e(f'ds_write_b128 v36, {v(GB,4)}')
        lab = e.newlabel('no16')
        e(f's_sub_u32 {T0}, {s_w}, 2')
        e(f's_cmp_ge_u32 {T0}, 4')
        e(f's_cbranch_scc1 {lab}')
        e(f'v_add_u32 v15, {L_STG16-1024}, v15')
        e(f'ds_write_b64 v15, {v(GB+4,2)}', count=False)
        e.label(lab)
        for i in range(2, 4):
            self.tr64(WB + 16 * i, i * 8192, 96)
        for j in range(4):
            self.unpack(self.XRES + j, X1 + 2 * j, X1 + 2 * j + 1)
        self.exchange_addr()
        e(f's_lshl_b32 {T0}, {s_nb}, 1')
        e(f's_add_u32 {T0}, {T0}, {s_kh}')
        e(f's_lshl_b32 {T0}, {T0}, 7')
        e(f's_add_u32 {T0}, {T0}, {L_STGB}')
        e(f'v_lshrrev_b32 v15, 4, v0')
        e(f'v_lshl_add_u32 v15, v15, 4, {T0}')
        e(f's_lshl_b32 {T0}, {s_kh}, 13')
        e(f's_add_u32 {s_act}, {s_act}, {T0}')
        e(f's_add_u32 {s_act}, {s_act}, {WS_O}')
        e(f's_add_u32 {T6}, {s_act}, 4096')
        e(f'v_lshlrev_b32 v1, 4, v0')
        self.w64_bases(704)
        e('s_waitcnt vmcnt(0) lgkmcnt(0)')
        self.sleep(o['dly_o'])
        e('s_barrier')
        self.stamp('BO1')
        ol = [f'buffer_load_dwordx4 {v(OF+4*k,4)}, v1, {srd(SWS)}, {s_act if k < 4 else T6} offen offset:{(k%4)*1024} sc1' for k in range(8)]
        for k in range(8):
            e(ol[k], tag=f'o{k}')
        ent = [(e.newlabel('ro'), ol[k:k + 2]) for k in range(0, 8, 2)]
        self.stubs.append(('seq', ent))
        for i in range(4):
            self.w64_dma(SWD, i, 704, L_WD1 + i * 8192)
        lab = e.newlabel('noep')
        e(f's_or_b32 {T0}, s2, {s_w}')
        e(f's_cmp_lg_u32 {T0}, 0')
        e(f's_cbranch_scc1 {lab}')
        e(f'v_mov_b32 v14, {s_nonce}')
        e(f'buffer_store_dword v14, off, {srd(SWS)}, 0 sc1', count=False)
        e.label(lab)
        for base, sec in ((GA, 0), (CB, 2), (GB, 3)):
            e(f'ds_read_b128 {v(base,4)}, v15 offset:{sec*2048}')
            e(f'ds_read_b128 {v(base+4,4)}, v15 offset:{sec*2048+64}')
        for k in range(8):
            if k % 2 == 0:
                e.wait_vm(f'o{k+1}')
                self.frag_check([OF + 4 * k, OF + 4 * k + 4], 14, ent[k // 2][0], 'o')
            W = (self.WOA + 16 * k) if k < 4 else (WB + 16 * (k - 4))
            for j in (2, 3, 0, 1):
                e(f'v_mfma_f32_16x16x32_bf16 {v(ACC+4*j,4)}, {v(W+4*j,4)}, {v(OF+4*k,4)}, ' + ('0' if k == 0 else v(ACC + 4 * j, 4)))
        self.exchange(ACC, RECV)
        for j in range(0, 8, 2):
            e(f'v_pk_fma_f32 {v(X1+j,2)}, {v(ACC+j,2)}, {v(GA+j,2)}, {v(X1+j,2)}')
        for j in range(0, 8, 2):
            e(f'v_pk_mul_f32 {v(ACC+j,2)}, {v(X1+j,2)}, {v(CB+j,2)}')
        for j in range(4):
            e(f'v_cvt_pk_bf16_f32 {v(ACC+j)}, {v(ACC+2*j)}, {v(ACC+2*j+1)}')
        e(f'buffer_store_dwordx4 {v(ACC,4)}, {v(self.vYA)}, {srd(SWS)}, 0 offen sc1', tag='y')
        self.stamp('ypub')
        a, b = 88, 89
        e(f'v_add_f32 {v(a)}, {v(X1)}, {v(X1+1)}')
        e(f'v_mul_f32 {v(b)}, {v(X1)}, {v(X1)}')
        for j in range(1, 8):
            if j > 1:
                e(f'v_add_f32 {v(a)}, {v(a)}, {v(X1+j)}')
            e(f'v_fmac_f32 {v(b)}, {v(X1+j)}, {v(X1+j)}')
        e(f'v_permlane32_swap_b32 {v(a)}, {v(b)}')
        e(f'v_add_f32 {v(a)}, {v(a)}, {v(b)}')
        e(f'v_mov_b32 {v(b)}, {v(a)}')
        e(f'v_permlane16_swap_b32 {v(a)}, {v(b)}')
        e(f'v_add_f32 {v(a)}, {v(a)}, {v(b)}')
        e(f's_lshl_b32 {T0}, {s_w}, 7')
        e(f's_add_u32 {T0}, {T0}, {L_ST}')
        e(f'v_and_b32 v14, 15, v0')
        e(f'v_lshl_add_u32 v14, v14, 3, {T0}')
        e(f'v_lshrrev_b32 v15, 5, v0')
        e(f'v_lshl_add_u32 v14, v15, 2, v14')
        e(f'ds_write_b32 v14, {v(a)}')
        e('s_waitcnt lgkmcnt(0)')
        e('s_barrier')
        lab = e.newlabel('nost')
        e(f's_cmp_lg_u32 {s_w}, 7')
        e(f's_cbranch_scc1 {lab}')
        e(f'v_lshlrev_b32 v14, 3, v0')
        e(f'v_add_u32 v14, {L_ST}, v14')
        e(f'ds_read_b64 v[88:89], v14')
        e(f'ds_read_b64 v[90:91], v14 offset:512')
        e('s_waitcnt lgkmcnt(0)')
        e('v_pk_add_f32 v[88:89], v[88:89], v[90:91]')
        e(f'buffer_store_dwordx2 v[88:89], {v(self.vSTA)}, {srd(SWS)}, 0 offen sc1', count=False)
        e.label(lab)
        for i in range(4, 7):
            self.w64_dma(SWD, i, 704, L_WD1 + i * 8192)

    def phase_g(self):
        e = self.e; o = self.o
        Y, ACC, AF, ST, AX, BX = 128, 40, 88, 32, 112, 118
        vA, vA2 = 124, 125
        e(f's_cmp_ge_u32 {s_c}, 29')
        e('s_cbranch_scc1 L_g_skip')
        lab = e.newlabel('noax')
        e(f's_cmp_ge_u32 {s_w}, 6')
        e(f's_cbranch_scc1 {lab}')
        e(f's_and_b32 {T0}, {s_w}, 1')
        e(f's_lshl_b32 {T1}, {T0}, 4')
        e(f'v_xor_b32 v14, {T1}, v0')
        e(f's_lshl_b32 {T2}, {s_w}, 14')
        e(f'v_lshl_add_u32 v14, v14, 3, {T2}')
        e(f'v_lshrrev_b32 v15, 4, v0')
        e(f'v_lshlrev_b32 v15, 3, v15')
        e(f'v_and_b32 v36, 1, v0')
        e(f'v_xor_b32 v36, 1, v36')
        e(f'v_lshl_add_u32 v15, v36, 10, v15')
        e(f'v_add_u32 v15, {L_STG16}, v15')
        R = 128
        for nb in range(16):
            r = R + 8 * nb
            e(f'ds_read_b64 {v(r,2)}, v15 offset:{nb*64}')
            e(f'ds_read_b64 {v(r+2,2)}, v15 offset:{nb*64+32}')
            e(f'ds_read_b64_tr_b16 {v(r+4,2)}, v14 offset:{nb*1024}')
            e(f'ds_read_b64_tr_b16 {v(r+6,2)}, v14 offset:{nb*1024+512}', tag=f'ax{nb}')
            if nb >= 2:
                k = nb - 2
                e.wait_lg(f'ax{k}')
                e(f'v_mfma_f32_16x16x32_bf16 v[40:43], {v(R+8*k,4)}, {v(R+8*k+4,4)}, ' + ('0' if k == 0 else 'v[40:43]'))
        for k in (14, 15):
            e.wait_lg(f'ax{k}')
            e(f'v_mfma_f32_16x16x32_bf16 v[40:43], {v(R+8*k,4)}, {v(R+8*k+4,4)}, v[40:43]')
        e('v_and_b32 v14, 16, v0')
        e('v_cmp_ne_u32 vcc, 0, v14')
        e('v_and_b32 v15, 15, v0')
        e('v_lshl_add_u32 v15, v14, 1, v15')
        e(f'v_add_u32 v15, {T1}, v15')
        e(f's_lshr_b32 {T2}, {s_w}, 1')
        e(f's_lshl_b32 {T2}, {T2}, 9')
        e(f's_add_u32 {T2}, {T2}, {L_AX}')
        e(f'v_lshl_add_u32 v15, v15, 3, {T2}')
        e('v_cndmask_b32 v40, v40, v41, vcc')
        e('v_cvt_pk_bf16_f32 v45, v40, 0')
        e('v_lshlrev_b32 v41, 16, v45')
        e('v_sub_f32 v41, v40, v41')
        e('v_cvt_pk_bf16_f32 v44, v40, v41')
        e('ds_write_b64 v15, v[44:45]')
        e.label(lab)
        e.flush_hist()
        e('v_bfe_u32 v14, v0, 4, 1')
        e('v_lshrrev_b32 v15, 5, v0')
        e('v_xor_b32 v36, v14, v15')
        e(f'v_and_b32 {v(vA)}, 15, v0')
        e(f'v_lshlrev_b32 {v(vA)}, 3, {v(vA)}')
        e(f'v_lshl_add_u32 {v(vA)}, v36, 7, {v(vA)}')
        e(f'v_lshl_add_u32 {v(vA)}, v14, 14, {v(vA)}')
        e(f'v_add_u32 {v(vA2)}, 65536, {v(vA)}')
        e(f's_lshl_b32 {T0}, {s_x}, 3')
        e(f's_add_u32 {T0}, {T0}, {s_w}')
        e(f's_lshl_b32 {T5}, {T0}, 11')
        e(f's_add_u32 {T5}, {T5}, {WS_STATS}')
        e('v_and_b32 v14, 31, v0')
        e('v_lshlrev_b32 v14, 3, v14')
        e('v_lshl_add_u32 v126, v15, 10, v14')
        e(f's_lshl_b32 {s_act}, {T0}, 15')
        e(f's_add_u32 {s_act}, {s_act}, {WS_Y}')
        e('v_lshlrev_b32 v127, 3, v0')
        e(f'v_add_u32 v127, {L_AX}, v127')
        e('s_waitcnt vmcnt(0) lgkmcnt(0)')
        self.sleep(o['dly_y'])
        e('s_barrier')
        self.stamp('BG0')
        ent = []
        for g in range(8):
            L = [f's_add_u32 {T7}, {s_act}, {g*4096}']
            for k in range(4):
                L.append(f'buffer_load_dwordx4 {v(Y+16*g+4*k,4)}, v1, {srd(SWS)}, {T7} offen offset:{k*1024} sc1')
            ent.append((e.newlabel('ry'), L))
            for l in L:
                e(l, tag=f'y{g}')
        L = [f'buffer_load_dwordx2 {v(ST+2*i,2)}, v126, {srd(SWS)}, {T5} offen offset:{i*256} sc1' for i in range(4)]
        ent.append((e.newlabel('rs'), L))
        e('v_mov_b32 v3, v38')
        for l in L:
            e(l, tag='st')
        self.stubs.append(('seq', ent))
        for tl in range(3):
            e(f'ds_read_b64 {v(AX+2*tl,2)}, v127 offset:{tl*512}')

        def areads(ks):
            r = AF + 12 * (ks % 2)
            nb, jj = ks // 2, ks % 2
            for tl in range(3):
                base = vA if tl < 2 else vA2
                off = (tl % 2) * 32768 + nb * 1024 + jj * 256
                e(f'ds_read_b64_tr_b16 {v(r+4*tl,2)}, {v(base)} offset:{off}')
                e(f'ds_read_b64_tr_b16 {v(r+4*tl+2,2)}, {v(base)} offset:{off+512}', tag=f'a{ks}_{tl}')
        areads(0)
        areads(1)
        for ks in range(32):
            if ks % 4 == 0:
                g = ks // 4
                e.wait_vm(f'y{g}')
                self.frag_check([Y + 16 * g + 4 * k for k in range(4)], 14, ent[g][0], 'y')
            r = AF + 12 * (ks % 2)
            for tl in range(3):
                e.wait_lg(f'a{ks}_{tl}')
                e(f'v_mfma_f32_32x32x16_bf16 {v(ACC+16*tl,16)}, {v(r+4*tl,4)}, {v(Y+4*ks,4)}, ' + ('0' if ks == 0 else v(ACC + 16 * tl, 16)))
            if ks + 2 < 32:
                areads(ks + 2)
            if ks == 29:
                e.wait_vm('st')
                self.frag_check([ST + 2 * i for i in range(4)], 14, ent[8][0], 'st')
                e(f'v_pk_add_f32 {v(ST,2)}, {v(ST,2)}, {v(ST+2,2)}')
                e(f'v_pk_add_f32 {v(ST+4,2)}, {v(ST+4,2)}, {v(ST+6,2)}')
                e(f'v_pk_add_f32 {v(ST,2)}, {v(ST,2)}, {v(ST+4,2)}')
                e(f'v_mov_b32 {v(ST+2)}, {v(ST)}')
                e(f'v_mov_b32 {v(ST+3)}, {v(ST+1)}')
                e(f'v_cmp_gt_u32 vcc, 32, v0')
                e(f'v_permlane32_swap_b32 {v(ST)}, {v(ST+2)}')
                e(f'v_permlane32_swap_b32 {v(ST+1)}, {v(ST+3)}')
                e(f'v_pk_add_f32 {v(ST,2)}, {v(ST,2)}, {v(ST+2,2)}')
                e(f'v_mul_f32 {v(ST)}, {fbits(-1.0/512)}, {v(ST)}')
                e(f'v_mul_f32 {v(ST+1)}, {fbits(1.0/512)}, {v(ST+1)}')
                e(f'v_fma_f32 {v(ST+1)}, -{v(ST)}, {v(ST)}, {v(ST+1)}')
                e(f'v_max_f32 {v(ST+1)}, 0, {v(ST+1)}')
                e(f'v_add_f32 {v(ST+1)}, {fbits(1e-5)}, {v(ST+1)}')
                e(f'v_sqrt_f32 {v(ST+2)}, {v(ST+1)}')
                e(f'v_rcp_f32 {v(ST+4)}, {v(ST+1)}')
                e(f'v_cndmask_b32 {v(ST)}, {v(ST+2)}, {v(ST)}, vcc')
                e(f'v_cvt_pk_bf16_f32 {v(BX)}, {v(ST)}, {v(ST)}')
                e(f'v_lshlrev_b32 {v(ST+1)}, 16, {v(BX)}')
                e(f'v_sub_f32 {v(ST+1)}, {v(ST)}, {v(ST+1)}')
                e(f'v_cvt_pk_bf16_f32 {v(BX+1)}, {v(ST+1)}, 0')
                e(f'v_mov_b32 {v(ST+5)}, {v(ST+4)}')
        for tl in range(3):
            e(f'v_mfma_f32_32x32x8_bf16 {v(ACC+16*tl,16)}, {v(AX+2*tl,2)}, {v(BX,2)}, {v(ACC+16*tl,16)}')
        e(f's_cmp_eq_u32 {s_c}, 28')
        e(f's_cselect_b32 {T4}, {OOB}, 0')
        for tl in range(3):
            a = ACC + 16 * tl
            for j in range(8):
                e(f'v_max_f32 {v(a+j)}, 0, {v(a+j)}')
            for j in range(0, 8, 2):
                e(f'v_pk_mul_f32 {v(a+8+j,2)}, {v(a+8+j,2)}, {v(ST+4,2)}')
            for j in range(0, 8, 2):
                e(f'v_pk_mul_f32 {v(a+j,2)}, {v(a+j,2)}, {v(a+8+j,2)}')
            for j in range(4):
                e(f'v_cvt_pk_bf16_f32 {v(240+4*tl+j)}, {v(a+2*j)}, {v(a+2*j+1)}')
            e(f'buffer_store_dwordx4 {v(240+4*tl,4)}, {v(self.vHA)}, {srd(SWS)}, {T4 if tl == 2 else 0} offen offset:{tl*512} sc1')
        e('s_branch L_g_done')
        e.label('L_g_skip')
        e.flush_hist()
        e('v_mov_b32 v3, v38')
        e('s_waitcnt vmcnt(0) lgkmcnt(0)')
        e('s_barrier')
        if o['prof']:
            self.nstamp -= 1; self.stamp_names.pop(); self.stamp('BG0')
        e.label('L_g_done')
        e.flush_hist()
        e.vm = []; e.lg = []
        self.stamp('hhpub')

    def phase_d(self):
        e = self.e; o = self.o
        WP, HF, ACC, RECV = 40, 152, 240, 40
        X1, GB = self.X1, self.GB
        A1, A2 = 32, 36
        self.tr64_addr(A1, L_WD1)
        for i in range(7):
            self.tr64(WP + 16 * i, i * 8192, A1)
        self.tr64_addr(A2, L_WD2)
        e(f's_lshl_b32 {T0}, {s_x}, 2')
        e(f's_add_u32 {T0}, {T0}, {s_oct}')
        e(f's_lshl_b32 {T0}, {T0}, 2')
        e(f's_add_u32 {T0}, {T0}, {s_m}')
        e(f's_mul_i32 {s_act}, {T0}, 44032')
        e(f's_mul_i32 {T0}, {s_kh}, {22*1024}')
        e(f's_add_u32 {s_act}, {s_act}, {T0}')
        e(f's_add_u32 {s_act}, {s_act}, {WS_HH}')
        e(f's_cmp_eq_u32 {s_kh}, 0')
        e(f's_cselect_b32 {T5}, 0, {OOB}')
        e('s_waitcnt lgkmcnt(0)')
        e('s_barrier')
        self.stamp('BG1')

        def wloc(ks):
            return (L_WD2 + (ks - 7) * 8192) if ks < 19 else (L_WD3 + (ks - 19) * 8192)
        ent = []
        for g in range(11):
            L = [f's_add_u32 {T7}, {s_act}, {g*2048}']
            L.append(f'buffer_load_dwordx4 {v(HF+8*g,4)}, v1, {srd(SWS)}, {T7} offen sc1')
            if g == 10:
                L.append(f's_add_u32 {T7}, {T7}, {T5}')
            L.append(f'buffer_load_dwordx4 {v(HF+8*g+4,4)}, v1, {srd(SWS)}, {T7} offen offset:1024 sc1')
            ent.append((e.newlabel('rh'), L))
        self.stubs.append(('seq', ent))
        for ks in range(7, 13):
            self.w64_dma(SWD, ks, 704, wloc(ks), tag='wd2a')
        self.sleep(o['dly_hh'])
        for g in range(0, 5):
            for l in ent[g][1]:
                e(l, tag=f'h{g}')
        for ks in range(13, 22):
            self.w64_dma(SWD, ks, 704, wloc(ks), tag='wd2b')
        for g in range(5, 11):
            for l in ent[g][1]:
                e(l, tag=f'h{g}')
        self.exchange_addr()

        def wreg(ks):
            return WP + 16 * (ks % 7)

        def wread(ks):
            if ks < 15:
                self.tr64(wreg(ks), (ks - 7) * 8192, A2)
            elif ks < 19:
                if ks == 15:
                    self.tr64_addr(A2, L_WD2 + 65536)
                self.tr64(wreg(ks), (ks - 15) * 8192, A2)
            else:
                self.tr64(wreg(ks), (ks - 19) * 8192, A1)
        LEAD = 2
        for ks in range(22):
            if ks % 2 == 0:
                g = ks // 2
                e.wait_vm(f'h{g}')
                self.frag_check([HF + 8 * g, HF + 8 * g + 4], 14, ent[g][0], 'h')
            nx = ks + LEAD
            if nx == 7:
                e('s_barrier')
            if nx == 13:
                e.wait_vm('wd2b')
                e('s_barrier')
            W = wreg(ks)
            for j in (2, 3, 0, 1):
                if ks >= 7 and j == 2:
                    e.wait_lg(f'w{W+4*3}')
                e(f'v_mfma_f32_16x16x32_bf16 {v(ACC+4*j,4)}, {v(W+4*j,4)}, {v(HF+4*ks,4)}, ' + ('0' if ks == 0 else v(ACC + 4 * j, 4)))
            if 7 <= nx < 22:
                wread(nx)
        self.stamp('Dmma')
        self.exchange(ACC, RECV)
        for j in range(0, 8, 2):
            e(f'v_pk_fma_f32 {v(X1+j,2)}, {v(ACC+j,2)}, {v(GB+j,2)}, {v(X1+j,2)}')
        for j in range(4):
            e(f'v_cvt_pk_bf16_f32 {v(X1+j)}, {v(X1+2*j)}, {v(X1+2*j+1)}')
        e('v_bfe_u32 v14, v0, 4, 1')
        e('v_lshl_add_u32 v3, v14, 5, v3')
        e('v_lshrrev_b32 v14, 5, v0')
        e('v_lshl_add_u32 v3, v14, 4, v3')
        e(f'v_permlane16_swap_b32 {v(X1)}, {v(X1+2)}')
        e(f'v_permlane16_swap_b32 {v(X1+1)}, {v(X1+3)}')
        e(f'buffer_store_dwordx4 {v(X1,4)}, v3, {srd(SOUT)}, 0 offen {o["out_flags"]}'.rstrip())

    def finish(self):
        e = self.e
        if self.o['prof']:
            e('s_waitcnt vmcnt(0)')
            self.stamp('end')
            e('s_memrealtime s[100:101]')
            e('s_waitcnt lgkmcnt(0)')
            e(f's_lshl_b32 {T0}, s2, 3')
            e(f's_add_u32 {T0}, {T0}, {s_w}')
            e(f's_lshl_b32 {T0}, {T0}, 7')
            e(f's_add_u32 {T0}, {T0}, {WS_PROF}')
            e('v_mov_b32 v1, 0')
            vals = [f's{S_STAMP+i}' for i in range(16)] + ['s3', 's100', s_budget]
            for i, r in enumerate(vals):
                e(f'v_writelane_b32 v1, {r}, {i}')
            e('v_lshlrev_b32 v2, 2, v0')
            e('s_mov_b64 exec, 0xffffffff')
            e(f'buffer_store_dword v1, v2, {srd(SWS)}, {T0} offen')
            if self.o['prof'] >= 2:
                e(f's_cmp_lg_u32 s2, {self.o["prof"]-2}')
                e('s_cbranch_scc1 L_end')
                e(f's_cmp_lg_u32 {s_w}, 0')
                e('s_cbranch_scc1 L_end')
                e(f's_load_dwordx2 {s(SC,2)}, s[0:1], 96')
                e(f's_sub_u32 s100, s100, s3')
                e(f'v_subrev_u32 v1, s{S_STAMP}, v1')
                e(f'v_writelane_b32 v1, s100, 15')
                e(f's_sub_u32 s100, {self.o["budget"]}, {s_budget}')
                e(f'v_writelane_b32 v1, s100, 0')
                e(f's_mov_b32 s{SC+2}, 64')
                e('s_waitcnt lgkmcnt(0)')
                e(f'buffer_store_dword v1, v2, {srd(SC)}, 0 offen')
        e.label('L_end')
        e('s_endpgm')

    def build(self):
        e = self.e
        self.prologue()
        if self.o['prof']:
            e('s_waitcnt lgkmcnt(0)')
            e('s_mov_b32 s3, s98')
        self.front()
        self.attention()
        self.att_epilogue()
        self.phase_o()
        self.phase_g()
        self.phase_d()
        self.finish()
        self.emit_stubs()
        e.label('L_code_end')
        head = open('adaLN_cond__grouped_kv_mqa__glu_gated_reglu__prompt.s.ref').read().split('; Override launch')[0]
        txt = head + '; @launch grid=(256,1,1) block=(512,1,1) lds=163840\n'
        txt += f'''.amdgcn_target "amdgcn-amd-amdhsa--gfx950"
.text
.globl {NAME}
.p2align 8
.type {NAME},@function
{NAME}:
'''
        txt += e.text()
        txt += f'''    s_endpgm
.section .rodata,"a"
.p2align 6
.amdhsa_kernel {NAME}
  .amdhsa_next_free_vgpr 256
  .amdhsa_next_free_sgpr 102
  .amdhsa_accum_offset 256
  .amdhsa_group_segment_fixed_size 0
  .amdhsa_kernarg_size 112
  .amdhsa_user_sgpr_count 2
  .amdhsa_user_sgpr_kernarg_segment_ptr 1
  .amdhsa_system_sgpr_workgroup_id_x 1
.end_amdhsa_kernel
'''
        return txt


if __name__ == '__main__':
    kw = {}
    out = sys.argv[1]
    for a in sys.argv[2:]:
        k, val = a.split('=')
        try:
            val = int(val)
        except ValueError:
            pass
        kw[k] = val
    g = Gen(**kw)
    txt = g.build()
    open(out, 'w').write(txt)
    print('nops inserted', g.e.nops, 'lines', txt.count('\n'), getattr(g, 'stamp_names', ''))
    for n, l in g.e.nop_log:
        if n >= 4:
            print('  nop', n, l)
```

```python
import sys, struct, math
from emit import Emitter, v, s

NAME = 'adaLN_cond__grouped_kv_mqa__glu_gated_reglu__prompt_kernel'


def fbits(x):
    return '0x%08x' % struct.unpack('<I', struct.pack('<f', x))[0]


DEFAULTS = dict(stamps='kernarg,B1,B2,B3,Bw2,att0,att1,opub,BO1,ypub,BG0,hhpub,BG1,Dmma,end', kvsc1=0, tb1=12, la_y=10, la_h=8, prof=0, rt=0, noside=0, stop=99, D=6, nchk=10, force_slow=0,
                dly_moda=0, dly_kv=0, dly_o=0, dly_y=0, dly_hh=0, codepf=1, out_flags='', budget=60000)

WS_EPOCH = 0
WS_MODA = 0x1000
WS_MODB = 0x8000
WS_STATS = 0x10000
WS_KV = 0x40000
WS_PROF = 0x80000
WS_O = 0x200000
WS_Y = 0x400000
WS_HH = 0x600000
WS_DBG = 0x1000000
WS_SIZE = 0x10000000
OOB = 0x40000000

L_WQ = 0
L_H = 131072
L_WKV = L_H
L_MW = L_H + 16384
L_SB = L_H + 20480
L_STGA = 7 * 16384
L_QX = 0
L_WGU = 0
L_WOB = 98304
L_WOA = 131072
L_MBW = 98304
L_SB2 = 98304 + 8192
L_EX = 131072
L_STGB = 149504
L_STG16 = 157696
L_AX = 159744
L_ST = 161280
L_WD1 = 98304
L_WD2 = 0

SX, SWQ, SWKV, SWO, SWG, SWU, SWD, SC, SWM, SOUT, SWS = (4, 8, 12, 16, 20, 24, 28, 32, 36, 40, 44)
s_x, s_c, s_w, s_tb, s_cb, s_oct, s_nb, s_m, s_kh = ('s48', 's49', 's50', 's51', 's52', 's53', 's54', 's55', 's56')
s_nonce = 's57'
S_NB = 58
s_budget = 's62'
s_one = 's63'
S_RET = 64
S_VM = 66
T0, T1, T2, T3, T4, T5, T6, T7 = ('s68', 's69', 's70', 's71', 's72', 's73', 's74', 's75')
s_kvb = 's76'
s_dl = 's77'
s_ds = 's78'
s_act = 's79'
S_MU = 80
S_STAMP = 84


def srd(n):
    return s(n, 4)


class Gen:
    def __init__(self, **kw):
        self.o = dict(DEFAULTS); self.o.update(kw)
        self.e = Emitter()
        self.stubs = []
        self.stamp_names = self.o['stamps'].split(',')
        assert len(self.stamp_names) <= 15

    def stamp(self, name):
        if not self.o['prof']:
            return
        names = self.stamp_names
        if name not in names:
            return
        e = self.e
        i = names.index(name)
        e('s_memrealtime s[100:101]' if self.o['rt'] else 's_memtime s[100:101]')
        e('s_waitcnt lgkmcnt(0)')
        e(f's_mov_b32 s{S_STAMP+i}, s100')

    def dma(self, rs, voff, soff_base, soff_imm, lds_base, lds_imm, tag=None, count=True, flags=''):
        e = self.e
        if lds_base is None:
            e(f's_mov_b32 m0, {lds_imm}')
        else:
            e(f's_add_u32 m0, {lds_base}, {lds_imm}')
        if soff_base is None:
            e(f's_mov_b32 {T7}, {soff_imm}'); so = T7
        elif soff_imm:
            e(f's_add_u32 {T7}, {soff_base}, {soff_imm}'); so = T7
        else:
            so = soff_base
        e(f'buffer_load_dwordx4 {v(voff)}, {srd(rs)}, {so} offen lds {flags}'.rstrip(), tag=tag, count=count)

    def sleep(self, n):
        if n:
            self.e(f's_sleep {n}')

    def silu(self, r, t):
        e = self.e
        e(f'v_mul_f32 {v(t)}, {fbits(-1.4426950408889634)}, {v(r)}')
        e(f'v_exp_f32 {v(t)}, {v(t)}')
        e(f'v_add_f32 {v(t)}, 1.0, {v(t)}')
        e(f'v_rcp_f32 {v(t)}, {v(t)}')
        e(f'v_mul_f32 {v(r)}, {v(r)}, {v(t)}')

    def unpack(self, src, lo, hi):
        e = self.e
        if hi == src:
            e(f'v_lshlrev_b32 {v(lo)}, 16, {v(src)}')
            e(f'v_and_b32 {v(hi)}, 0xffff0000, {v(src)}')
        else:
            e(f'v_and_b32 {v(hi)}, 0xffff0000, {v(src)}')
            e(f'v_lshlrev_b32 {v(lo)}, 16, {v(src)}')

    def red4(self, a, b, c, d):
        e = self.e
        e(f'v_permlane32_swap_b32 {v(a)}, {v(b)}')
        e(f'v_permlane32_swap_b32 {v(c)}, {v(d)}')
        e(f'v_add_f32 {v(a)}, {v(a)}, {v(b)}')
        e(f'v_add_f32 {v(c)}, {v(c)}, {v(d)}')
        e(f'v_permlane16_swap_b32 {v(a)}, {v(c)}')
        e(f'v_add_f32 {v(a)}, {v(a)}, {v(c)}')
        for r in (8, 4, 2, 1):
            e(f'v_add_f32_dpp {v(a)}, {v(a)}, {v(a)} row_ror:{r} row_mask:0xf bank_mask:0xf')

    def tag_and_store(self, val, tmp, addr, soff):
        e = self.e
        e(f'v_and_b32 {v(tmp)}, 3, v0')
        e(f'v_lshlrev_b32 {v(tmp)}, 3, {v(tmp)}')
        e(f'v_lshrrev_b32 {v(tmp)}, {v(tmp)}, {s_nonce}')
        e(f'v_and_b32 {v(tmp)}, 0xff, {v(tmp)}')
        e(f'v_and_b32 {v(val)}, 0xffffff00, {v(val)}')
        e(f'v_or_b32 {v(val)}, {v(val)}, {v(tmp)}')
        e(f'v_lshlrev_b32 {v(addr)}, 2, v0')
        e('s_mov_b64 exec, 0xffff')
        e(f'buffer_store_dword {v(val)}, {v(addr)}, {srd(SWS)}, {soff} offen sc1', count=False)
        e('s_mov_b64 exec, -1')

    def gather_check(self, base, npart, tmp, loads, name):
        e = self.e
        chk = e.newlabel(name + '_chk'); ok = e.newlabel(name + '_ok'); stub = e.newlabel(name + '_stub')
        e.label(chk)
        for p in range(npart):
            for j in range(4):
                e(f'v_xor_b32 {v(base+4*p+j)}, s{S_NB+j}, {v(base+4*p+j)}')
        regs = list(range(base, base + 4 * npart))
        e(f'v_or3_b32 {v(tmp)}, {v(regs[0])}, {v(regs[1])}, {v(regs[2])}')
        i = 3
        while i < len(regs):
            if i + 1 < len(regs):
                e(f'v_or3_b32 {v(tmp)}, {v(tmp)}, {v(regs[i])}, {v(regs[i+1])}'); i += 2
            else:
                e(f'v_or_b32 {v(tmp)}, {v(tmp)}, {v(regs[i])}'); i += 1
        e(f'v_and_b32 {v(tmp)}, 0xff, {v(tmp)}')
        e(f'v_cmp_ne_u32 vcc, 0, {v(tmp)}')
        e(f's_cbranch_vccnz {stub}')
        e.label(ok)
        self.stubs.append(('reload', stub, chk, ok, loads))
        for j in range(4):
            if npart == 4:
                e(f'v_add_f32 {v(base+j)}, {v(base+j)}, {v(base+4+j)}')
                e(f'v_add_f32 {v(base+8+j)}, {v(base+8+j)}, {v(base+12+j)}')
            else:
                e(f'v_add_f32 {v(base+j)}, {v(base+j)}, {v(base+4+j)}')
        if npart == 4:
            for j in range(4):
                e(f'v_add_f32 {v(base+j)}, {v(base+j)}, {v(base+8+j)}')

    def round_mod(self, base, p0):
        e = self.e
        for rep in range(2):
            e(f'v_cvt_pk_bf16_f32 {v(p0)}, {v(base)}, {v(base+1)}')
            e(f'v_cvt_pk_bf16_f32 {v(p0+1)}, {v(base+2)}, {v(base+3)}')
            self.unpack(p0, base, base + 1)
            self.unpack(p0 + 1, base + 2, base + 3)
            if rep == 0:
                for j in range(4):
                    e(f'v_add_f32 {v(base+j)}, {s_one}, {v(base+j)}')

    def frag_check(self, regs, tmp, reissue, name):
        e = self.e
        chk = e.newlabel(name + '_chk'); ok = e.newlabel(name + '_ok'); stub = e.newlabel(name + '_stub')
        e.label(chk)
        if len(regs) == 1:
            e(f'v_cmp_eq_u32 vcc, -1, {v(regs[0])}')
        else:
            if len(regs) == 2:
                e(f'v_max_u32 {v(tmp)}, {v(regs[0])}, {v(regs[1])}')
            else:
                e(f'v_max3_u32 {v(tmp)}, {v(regs[0])}, {v(regs[1])}, {v(regs[2])}')
                for r in regs[3:]:
                    e(f'v_max_u32 {v(tmp)}, {v(tmp)}, {v(r)}')
            e(f'v_cmp_eq_u32 vcc, -1, {v(tmp)}')
        e(f's_cbranch_vccnz {stub}')
        e.label(ok)
        if isinstance(reissue, str):
            self.stubs.append(('call', stub, chk, ok, reissue))
        else:
            self.stubs.append(('reload', stub, chk, ok, reissue))

    def emit_stubs(self):
        e = self.e
        for st in self.stubs:
            kind = st[0]
            e.flush_hist()
            if kind in ('reload', 'call'):
                _, stub, chk, ok, arg = st
                e.label(stub)
                e(f's_cmp_eq_u32 {s_budget}, 0')
                e(f's_cbranch_scc1 {ok}')
                e(f's_sub_u32 {s_budget}, {s_budget}, 1')
                if kind == 'reload':
                    e('s_waitcnt vmcnt(0)')
                    e('s_sleep 2')
                    for l in arg:
                        e(l, count=False)
                    e('s_waitcnt vmcnt(0)')
                else:
                    e('s_waitcnt vmcnt(0)')
                    e('s_sleep 2')
                    e(f's_call_b64 {s(S_RET,2)}, {arg}')
                e(f's_branch {chk}')
            elif kind == 'seq':
                _, entries = st
                for lab, lines in entries:
                    e.label(lab)
                    for l in lines:
                        e(l, count=False)
                e('s_waitcnt vmcnt(0)')
                e(f's_setpc_b64 {s(S_RET,2)}')
            elif kind == 'code':
                st[1]()

    def dump(self, regs, slot, stride_regs):
        e = self.e
        e('s_nop 7'); e('s_nop 7')
        e(f's_lshl_b32 {T6}, s2, 3')
        e(f's_add_u32 {T6}, {T6}, {s_w}')
        e(f's_mul_i32 {T6}, {T6}, {stride_regs*256}')
        e(f's_add_u32 {T6}, {T6}, {WS_DBG + slot*0x1000000}')
        e('v_lshlrev_b32 v0, 2, v0')
        for i, r in enumerate(regs):
            e(f'buffer_store_dword {v(r)}, v0, {srd(SWS)}, {T6} offen', count=False)
            e(f's_add_u32 {T6}, {T6}, 256')
        e('s_waitcnt vmcnt(0)')
        e('v_lshrrev_b32 v0, 2, v0')

    def prologue(self):
        e = self.e
        e('s_cmp_ge_u32 s2, 256')
        e('s_cbranch_scc1 L_end')
        e(f's_lshr_b32 {s_c}, s2, 3')
        e(f's_and_b32 {T0}, {s_c}, 1')
        e(f's_lshl_b32 {T0}, {T0}, 3')
        e(f's_add_u32 {T0}, {T0}, 16')
        for r, off in ((SWS, 104), (SC, 72), (SWM, 80), (SX, 0), (SWQ, 8), (SWO, 32), (SWG, 48), (SWU, 56), (SWD, 64), (SOUT, 88)):
            e(f's_load_dwordx2 {s(r,2)}, s[0:1], {off}')
        e(f's_load_dwordx2 {s(SWKV,2)}, s[0:1], {T0}')
        if self.o['prof']:
            e('s_memrealtime s[98:99]')
        e('v_lshrrev_b32 v1, 6, v0')
        e('v_and_b32 v0, 63, v0')
        e(f'v_readfirstlane_b32 {s_w}, v1')
        e(f's_and_b32 {s_x}, s2, 7')
        e(f's_lshr_b32 {s_tb}, {s_c}, 2')
        e(f's_and_b32 {s_cb}, {s_c}, 3')
        e(f's_lshr_b32 {s_oct}, {s_c}, 3')
        e(f's_and_b32 {s_nb}, {s_c}, 7')
        e(f's_and_b32 {s_m}, {s_w}, 3')
        e(f's_lshr_b32 {s_kh}, {s_w}, 2')
        if self.o['codepf']:
            lab = e.newlabel('nopf')
            e(f's_cmp_lg_u32 {s_w}, 7')
            e(f's_cbranch_scc1 {lab}')
            e(f's_cmp_ge_u32 {s_c}, (L_code_end-L_pc0)/1024')
            e(f's_cbranch_scc1 {lab}')
            e('s_getpc_b64 s[74:75]')
            e.label('L_pc0')
            e(f's_lshl_b32 {T0}, {s_c}, 10')
            e(f'v_lshl_add_u32 v2, v0, 4, {T0}')
            e('global_load_dword v255, v2, s[74:75]', count=False)
            e.label(lab)
        for r, n in ((SX, 2097152), (SWQ, 524288), (SWKV, 16384), (SWO, 524288), (SWG, 1409024), (SWU, 1409024),
                     (SWD, 1409024), (SC, 1024), (SWM, 3145728), (SOUT, 2097152), (SWS, WS_SIZE)):
            e(f's_mov_b32 s{r+2}, {n}')
            e(f's_mov_b32 s{r+3}, 0x20000')
        e(f's_mov_b32 {s_budget}, {self.o["budget"]}')
        e(f's_mov_b32 s{S_VM}, 0xffff')
        e(f's_mov_b32 s{S_VM+1}, 0xffff')

    def front(self):
        e = self.e; o = self.o
        vL16, vWQ, vW32, vT, vT2, vEP, vC, vHW = 1, 2, 4, 5, 6, 7, 8, 9
        XR, N, SA, CA, G = 16, 32, 64, 72, 80
        e(f'v_lshlrev_b32 {v(vL16)}, 4, v0')
        e(f'v_lshrrev_b32 {v(vT)}, 4, v0')
        e(f'v_lshlrev_b32 {v(vT2)}, 2, {v(vT)}')
        e(f'v_xor_b32 {v(vT2)}, {v(vT2)}, v0')
        e(f'v_and_b32 {v(vT2)}, 15, {v(vT2)}')
        e(f'v_lshlrev_b32 {v(vT2)}, 4, {v(vT2)}')
        e(f'v_lshl_add_u32 {v(vWQ)}, {v(vT)}, 10, {v(vT2)}')
        e(f's_lshl_b32 {T0}, {s_cb}, 8')
        e(f'v_add_u32 {v(vWQ)}, {T0}, {v(vWQ)}')
        e(f'v_lshrrev_b32 {v(vT)}, 1, v0')
        e(f'v_mul_u32_u24 {v(vT)}, 6144, {v(vT)}')
        e(f'v_and_b32 {v(vT2)}, 1, v0')
        e(f'v_lshl_add_u32 {v(vW32)}, {v(vT2)}, 4, {v(vT)}')
        e(f's_lshl_b32 {T0}, {s_x}, 8')
        e(f's_lshl_b32 {T1}, {s_tb}, 5')
        e(f's_add_u32 {T0}, {T0}, {T1}')
        e(f's_lshl_b32 {T1}, {s_w}, 2')
        e(f's_add_u32 {T0}, {T0}, {T1}')
        for i in range(4):
            e(f's_add_u32 {T1}, {s_cb}, {i}')
            e(f's_and_b32 {T1}, {T1}, 3')
            e(f's_add_u32 {T1}, {T1}, {T0}')
            e(f's_lshl_b32 s{S_MU+i}, {T1}, 10')
        e(f's_lshl_b32 {T0}, {s_x}, 3')
        e(f's_add_u32 {T3}, {T0}, {s_tb}')
        e(f's_lshl_b32 {T0}, {T3}, 11')
        e(f's_and_b32 {T1}, {s_cb}, 1')
        e(f's_lshl_b32 {T1}, {T1}, 10')
        e(f's_add_u32 {T0}, {T0}, {T1}')
        e(f's_lshr_b32 {T1}, {s_cb}, 1')
        e(f's_lshl_b32 {T1}, {T1}, 9')
        e(f's_add_u32 {T0}, {T0}, {T1}')
        e(f's_add_u32 {s_act}, {T0}, {WS_KV}')
        e(f's_lshl_b32 {T0}, {s_w}, 10')
        e(f'v_add_u32 v3, {T0}, {v(vL16)}')
        e(f's_lshl_b32 {s_dl}, {s_m}, 12')
        e(f's_lshl_b32 {s_ds}, {s_m}, 14')

        def xload(i):
            e(f'buffer_load_dwordx4 {v(XR+4*i,4)}, {v(vL16)}, {srd(SX)}, s{S_MU+i} offen', tag=f'x{i}')

        def wq_eighth(i, count=True):
            e(f's_add_u32 {T6}, {s_tb}, {i}')
            e(f's_and_b32 {T6}, {T6}, 7')
            e(f's_lshl_b32 {T6}, {T6}, 16')
            e(f's_add_u32 {T6}, {T6}, {s_ds}')
            for j in range(4):
                self.dma(SWQ, vWQ, T6, j * 4096, s_dl, L_WQ + i * 16384 + j * 1024, tag=f'wq{i}', count=count)

        def nonce():
            e(f'v_readfirstlane_b32 {s_nonce}, {v(vEP)}')
            e(f's_mul_i32 {s_nonce}, {s_nonce}, 0x9e3779b1')
            e(f's_add_u32 {s_nonce}, {s_nonce}, 0x7f4a7c15')
            for j in range(4):
                e(f's_bfe_u32 s{S_NB+j}, {s_nonce}, {hex((8<<16)|(8*j))}')

        e('s_waitcnt lgkmcnt(0)')
        self.stamp('kernarg')
        e(f'buffer_load_dword {v(vEP)}, off, {srd(SWS)}, 0 sc1', tag='ep')
        e(f's_cmp_eq_u32 {s_w}, 0')
        e('s_cbranch_scc1 L_w0')
        xload(0)
        e(f's_cmp_lt_u32 {s_w}, 4')
        e('s_cbranch_scc1 L_w123')
        wq_eighth(0, count=False)
        e.label('L_w123')
        for i in (1, 2, 3):
            xload(i)
        e(f's_cmp_lg_u32 {s_w}, 4')
        e('s_cbranch_scc1 L_not4a')
        e(f's_lshl_b32 {T5}, {s_tb}, 11')
        for j in range(16):
            self.dma(SWKV, vL16, T5, 0, None, L_WKV + j * 1024, count=False)
            e(f's_add_u32 {T5}, {T5}, 1024')
            e(f's_and_b32 {T5}, {T5}, 16383')
        e.label('L_not4a')
        e(f's_cmp_lg_u32 {s_w}, 5')
        e('s_cbranch_scc1 L_not5a')
        e(f's_and_b32 {T5}, {T3}, 1')
        e(f's_lshl_b32 {T5}, {T5}, 9')
        e(f'v_lshlrev_b32 {v(vT)}, 3, v0')
        e(f'buffer_load_dwordx2 v[14:15], {v(vT)}, {srd(SC)}, {T5} offen', count=False)
        e.label('L_not5a')
        e('s_branch L_b1')
        e.label('L_w0')
        e.flush_hist()
        e.vm = ['ep']
        e(f's_and_b32 {T4}, {T3}, 3')
        e(f's_lshl_b32 {T5}, {T4}, 8')
        e(f'v_lshlrev_b32 {v(vT)}, 2, v0')
        e(f'buffer_load_dword {v(vC)}, {v(vT)}, {srd(SC)}, {T5} offen', tag='c')
        e(f's_lshr_b32 {T2}, {T3}, 2')
        e(f's_lshl_b32 {T2}, {T2}, 2')
        e(f's_add_u32 {T2}, {T2}, {s_cb}')
        e(f's_mul_i32 {T5}, {T4}, {128*6144}')
        e(f's_lshl_b32 {T1}, {T2}, 5')
        e(f's_add_u32 {T5}, {T5}, {T1}')
        for j in range(4):
            self.dma(SWM, vW32, T5, j * 32 * 6144, None, L_MW + j * 1024, tag='mw')
        e('v_mov_b32 v10, -1')
        e('v_mov_b32 v11, -1')
        e(f'v_lshlrev_b32 {v(vT2)}, 3, v0')
        e(f'buffer_store_dwordx2 v[10:11], {v(vT2)}, {srd(SWS)}, {s_act} offen sc1', tag='clr')
        xload(0)
        e(f's_lshl_b32 {T4}, {T4}, 12')
        e(f's_lshl_b32 {T2}, {T2}, 6')
        e(f's_add_u32 {T4}, {T4}, {T2}')
        e(f's_add_u32 {T4}, {T4}, {WS_MODA}')
        e(f'v_lshrrev_b32 v12, 4, v0')
        e(f'v_and_b32 v13, 15, v0')
        e(f'v_lshlrev_b32 v13, 3, v13')
        e(f'v_lshl_add_u32 v13, v12, 8, v13')
        e(f'v_add_u32 v13, {L_MW}, v13')
        e(f'v_lshlrev_b32 v12, 4, v12')
        e(f'v_add_u32 v12, {L_SB}, v12')
        e(f'v_add_u32 {v(vT)}, {L_SB}, {v(vT)}')
        e.wait_vm('c')
        self.stamp('w0c')
        nonce()
        self.unpack(vC, 10, 11)
        self.silu(10, 14); self.silu(11, 15)
        e('v_cvt_pk_bf16_f32 v10, v10, v11')
        e(f'ds_write_b32 {v(vT)}, v10')
        for ks in range(4):
            e(f'ds_read_b128 {v(96+4*ks,4)}, v12 offset:{ks*64}')
        e.wait_vm('clr')
        self.stamp('w0w')
        for ks in range(4):
            e(f'ds_read_b64_tr_b16 {v(112+4*ks,2)}, v13 offset:{ks*1024}')
            e(f'ds_read_b64_tr_b16 {v(114+4*ks,2)}, v13 offset:{ks*1024+128}', tag=f'mw{ks}')
        for ks in range(4):
            e.wait_lg(f'mw{ks}')
            e(f'v_mfma_f32_16x16x32_bf16 v[128:131], {v(96+4*ks,4)}, {v(112+4*ks,4)}, ' + ('0' if ks == 0 else 'v[128:131]'))
        self.tag_and_store(128, 10, 11, T4)
        self.stamp('w0st')
        for i in (1, 2, 3):
            xload(i)
        e('s_waitcnt vmcnt(3)')
        self.sleep(o['dly_moda'])
        e.label('L_b1')
        e.flush_hist()
        e.vm = ['x0', 'x1', 'x2', 'x3']
        e('s_barrier')
        self.stamp('B1')
        gl = [f'buffer_load_dwordx4 {v(G+4*p,4)}, v3, {srd(SWS)}, {T4} offen sc1' for p in range(4)]
        gloads = []
        for p in range(4):
            gloads += [f's_mov_b32 {T4}, {WS_MODA + p*4096}', gl[p]]
        e(f's_cmp_ge_u32 {s_w}, 4')
        e('s_cbranch_scc1 L_nog')
        for l in gloads:
            e(l, count=False)
        e('s_waitcnt vmcnt(4)')
        e('s_branch L_g1')
        e.label('L_nog')
        e('s_waitcnt vmcnt(0)')
        e.label('L_g1')
        e.vm = []
        self.stamp('xin')
        nonce()
        for i in range(4):
            for j in range(4):
                self.unpack(XR + 4 * i + j, N + 8 * i + 2 * j, N + 8 * i + 2 * j + 1)
        for i in range(4):
            e(f'v_add_f32 {v(XR+i)}, {v(N+8*i)}, {v(N+8*i+1)}')
        for j in range(2, 8):
            for i in range(4):
                e(f'v_add_f32 {v(XR+i)}, {v(XR+i)}, {v(N+8*i+j)}')
        e(f's_cmp_lt_u32 {s_w}, 4')
        e('s_cbranch_scc1 L_nl1')
        wq_eighth(1, count=False)
        wq_eighth(2, count=False)
        e.label('L_nl1')
        self.red4(XR, XR + 1, XR + 2, XR + 3)
        e(f'v_mul_f32 {v(XR)}, {fbits(1.0/512)}, {v(XR)}')
        for i, ln in enumerate((0, 32, 16, 48)):
            e(f'v_readlane_b32 s{S_MU+i}, {v(XR)}, {ln}')
        for i in range(4):
            for j in range(8):
                e(f'v_subrev_f32 {v(N+8*i+j)}, s{S_MU+i}, {v(N+8*i+j)}')
        for i in range(4):
            e(f'v_mul_f32 {v(XR+i)}, {v(N+8*i)}, {v(N+8*i)}')
        for j in range(1, 8):
            for i in range(4):
                e(f'v_fmac_f32 {v(XR+i)}, {v(N+8*i+j)}, {v(N+8*i+j)}')
        self.red4(XR, XR + 1, XR + 2, XR + 3)
        e(f'v_mov_b32 {v(XR+1)}, {fbits(1e-5)}')
        e(f'v_fmac_f32 {v(XR+1)}, {fbits(1.0/512)}, {v(XR)}')
        e(f'v_rsq_f32 {v(XR)}, {v(XR+1)}')
        for i, ln in enumerate((0, 32, 16, 48)):
            e(f'v_readlane_b32 s{S_MU+i}, {v(XR)}, {ln}')
        for i in range(4):
            for j in range(8):
                e(f'v_mul_f32 {v(N+8*i+j)}, s{S_MU+i}, {v(N+8*i+j)}')
        e(f's_lshl_b32 {T0}, {s_tb}, 3')
        e(f'v_subrev_u32 {v(vHW)}, {T0}, v0')
        e(f'v_and_b32 {v(vHW)}, 63, {v(vHW)}')
        e(f'v_lshlrev_b32 {v(vHW)}, 9, {v(vHW)}')
        e(f'v_add_u32 {v(vHW)}, {L_H}, {v(vHW)}')
        e(f'v_and_b32 {v(vT)}, 7, v0')
        e(f's_lshl_b32 {T0}, {s_w}, 2')
        for i in range(4):
            e(f's_add_u32 {T1}, {s_cb}, {i}')
            e(f's_and_b32 {T1}, {T1}, 3')
            e(f's_add_u32 {T1}, {T1}, {T0}')
            e(f'v_xor_b32 {v(vT2)}, {T1}, {v(vT)}')
            e(f'v_lshl_add_u32 {v(XR+i)}, {v(vT2)}, 4, {v(vHW)}')
        e(f'v_lshlrev_b32 {v(vT)}, 5, v0')
        e(f'v_add_u32 {v(vT)}, {L_STGA}, {v(vT)}')
        self.stamp('ln')
        e(f's_cmp_ge_u32 {s_w}, 4')
        e('s_cbranch_scc1 L_ld2')
        e(f's_cmp_ge_u32 {s_w}, 2')
        e(f's_cselect_b32 {s_one}, 1.0, 0')
        e('s_waitcnt vmcnt(0)')
        self.stamp('gin')
        self.gather_check(G, 4, vT2, gloads, 'ga')
        self.stamp('gok')
        self.round_mod(G, G + 4)
        e(f'v_add_u32 v3, {L_STGA}, v3')
        e(f'ds_write_b128 v3, {v(G,4)}')
        e('s_branch L_b2')
        e.label('L_ld2')
        e.flush_hist()
        wq_eighth(3, count=False)
        e(f's_cmp_lg_u32 {s_w}, 4')
        e('s_cbranch_scc1 L_not4b')
        e(f'v_lshrrev_b32 v12, 4, v0')
        e(f'v_and_b32 v13, 15, v0')
        e(f'v_lshlrev_b32 v13, 3, v13')
        e(f'v_lshl_add_u32 v13, v12, 8, v13')
        e(f'v_add_u32 v13, {L_WKV}, v13')
        for ks in range(16):
            e(f'ds_read_b64_tr_b16 {v(176+4*ks,2)}, v13 offset:{ks*1024}')
            e(f'ds_read_b64_tr_b16 {v(178+4*ks,2)}, v13 offset:{ks*1024+128}')
        e('s_branch L_b2')
        e.label('L_not4b')
        e(f's_cmp_lg_u32 {s_w}, 5')
        e('s_cbranch_scc1 L_b2')
        self.unpack(14, 10, 11); self.unpack(15, 12, 13)
        for r in (10, 11, 12, 13):
            self.silu(r, 14)
        e('v_cvt_pk_bf16_f32 v14, v10, v11')
        e('v_cvt_pk_bf16_f32 v15, v12, v13')
        e.label('L_b2')
        e.flush_hist()
        e('s_waitcnt lgkmcnt(0)')
        e('s_barrier')
        self.stamp('B2')
        e(f'ds_read_b128 {v(SA,4)}, {v(vT)}')
        e(f'ds_read_b128 {v(CA,4)}, {v(vT)} offset:2048', tag='m0')
        e(f'ds_read_b128 {v(SA+4,4)}, {v(vT)} offset:16')
        e(f'ds_read_b128 {v(CA+4,4)}, {v(vT)} offset:2064', tag='m1')
        e.wait_lg('m1')
        for i in range(4):
            for j in range(0, 8, 2):
                e(f'v_pk_fma_f32 {v(N+8*i+j,2)}, {v(N+8*i+j,2)}, {v(CA+j,2)}, {v(SA+j,2)}')
            for j in range(4):
                e(f'v_cvt_pk_bf16_f32 {v(N+8*i+j)}, {v(N+8*i+2*j)}, {v(N+8*i+2*j+1)}')
            e(f'ds_write_b128 {v(XR+i)}, {v(N+8*i,4)}')
        e('s_waitcnt vmcnt(0) lgkmcnt(0)')
        e('s_barrier')
        self.stamp('B3')
        e(f's_cmp_lt_u32 {s_w}, 4')
        e('s_cbranch_scc1 L_qw')
        e(f's_cmp_lg_u32 {s_w}, 4')
        e('s_cbranch_scc1 L_not4c')
        e('s_setprio 3')
        e(f's_lshr_b32 {T0}, {s_cb}, 1')
        e(f's_lshl_b32 {T0}, {T0}, 4')
        e(f'v_and_b32 v10, 15, v0')
        e(f'v_add_u32 v10, {T0}, v10')
        e(f'v_lshrrev_b32 v12, 4, v0')
        e(f'v_xor_b32 v10, v10, v12')
        e(f'v_lshlrev_b32 v10, 4, v10')
        e(f'v_lshl_add_u32 v10, v12, 9, v10')
        e(f'v_add_u32 v10, {L_H}, v10')
        e(f'v_xor_b32 v11, 64, v10')
        for ks in range(16):
            e(f'ds_read_b128 {v(104+4*ks,4)}, v{10+ks%2} offset:{ks*2048}', tag=f'h{ks}')
        e(f'v_and_b32 v13, 15, v0')
        e(f'v_lshlrev_b32 v13, 4, v13')
        e(f'v_and_b32 v10, 1, v12')
        e(f'v_lshrrev_b32 v11, 1, v12')
        e(f's_bitcmp1_b32 {s_cb}, 0')
        e('s_cbranch_scc1 L_isv')
        lgsave = list(e.lg)
        for isv in (0, 1):
            if isv:
                e.label('L_isv'); e.flush_hist(); e.lg = list(lgsave)
            a, b = (11, 10) if isv else (10, 11)
            e(f'v_lshl_add_u32 v13, v{a}, 8, v13')
            e(f'v_lshl_add_u32 v13, v{b}, 3, v13')
            for ks in range(16):
                e.wait_lg(f'h{ks}')
                acc = 240 + 4 * (ks % 2)
                W, H = v(176 + 4 * ks, 4), v(104 + 4 * ks, 4)
                A, B = (H, W) if isv else (W, H)
                e(f'v_mfma_f32_16x16x32_bf16 {v(acc,4)}, {A}, {B}, ' + ('0' if ks < 2 else v(acc, 4)))
            e(f'v_pk_add_f32 v[240:241], v[240:241], v[244:245]')
            e(f'v_pk_add_f32 v[242:243], v[242:243], v[246:247]')
            if not isv:
                for j in range(4):
                    e(f'v_mul_f32 {v(240+j)}, {fbits(0.25*1.4426950408889634)}, {v(240+j)}')
                e('s_branch L_kvst')
        e.label('L_kvst')
        e('v_cvt_pk_bf16_f32 v240, v240, v241')
        e('v_cvt_pk_bf16_f32 v241, v242, v243')
        e(f'buffer_store_dwordx2 v[240:241], v13, {srd(SWS)}, {s_act} offen sc1', count=False)
        e('s_setprio 0')
        self.stamp('kvst')
        e.label('L_not4c')
        e.flush_hist()
        for i in (4, 5, 6, 7):
            wq_eighth(i, count=False)
        self.att_setup()
        e('s_waitcnt vmcnt(0)')
        self.sleep(o['dly_kv'])
        e('s_barrier')
        self.stamp('Bw2')
        e.vm = []
        e('s_sleep 3')
        self.kv_load(0); self.kv_load(1)
        e(f's_lshl_b32 {T0}, {s_m}, 11')
        e(f'v_lshl_add_u32 v40, v0, 4, {T0}')
        e('s_barrier')
        e(f'ds_read_b128 v[16:19], v40 offset:{L_QX+1024}')
        e(f'ds_read_b128 v[20:23], v40 offset:{L_QX}')
        for t in range(2, o['D']):
            self.kv_load(t)
        vmsave = list(e.vm)
        e('s_waitcnt lgkmcnt(0)')
        e('s_branch L_att')
        e.label('L_qw')
        e.flush_hist(); e.vm = []; e.lg = []
        vA, vA2, vH = 240, 241, 242
        e('v_bfe_u32 v10, v0, 2, 2')
        e('v_lshrrev_b32 v11, 5, v0')
        e('v_lshl_add_u32 v11, v11, 3, v10')
        e(f'v_lshlrev_b32 {v(vA)}, 8, v11')
        e(f'v_xor_b32 v10, {s_m}, v10')
        e(f'v_lshl_add_u32 {v(vA)}, v10, 6, {v(vA)}')
        e('v_bfe_u32 v10, v0, 4, 1')
        e(f'v_lshl_add_u32 {v(vA)}, v10, 5, {v(vA)}')
        e('v_and_b32 v10, 3, v0')
        e(f'v_lshl_add_u32 {v(vA)}, v10, 3, {v(vA)}')
        e(f'v_add_u32 {v(vA2)}, 65536, {v(vA)}')
        e('v_and_b32 v10, 31, v0')
        e('v_lshrrev_b32 v11, 5, v0')
        e('v_xor_b32 v10, v10, v11')
        e('v_lshlrev_b32 v10, 4, v10')
        e('v_lshl_add_u32 v10, v11, 9, v10')
        e(f'v_add_u32 {v(vH)}, {L_H}, v10')
        for j in (1, 2, 3):
            e(f'v_xor_b32 {v(vH+j)}, {32*j}, {v(vH)}')
        RING = 4

        def qreads(ks):
            r = 176 + 8 * (ks % RING)
            base = vA if ks < 16 else vA2
            off = (ks % 16) * 4096
            e(f'ds_read_b64_tr_b16 {v(r,2)}, {v(base)} offset:{off}')
            e(f'ds_read_b64_tr_b16 {v(r+2,2)}, {v(base)} offset:{off+1024}')
            e(f'ds_read_b128 {v(r+4,4)}, {v(vH+ks%4)} offset:{ks*1024}', tag=f'q{ks}')

        def qseg(k0, k1, hook=None):
            for ks in range(k0, min(k0 + RING - 1, k1)):
                qreads(ks)
            for ks in range(k0, k1):
                if ks + RING - 1 < k1:
                    qreads(ks + RING - 1)
                e.wait_lg(f'q{ks}')
                r = 176 + 8 * (ks % RING)
                e(f'v_mfma_f32_32x32x16_bf16 v[40:55], {v(r,4)}, {v(r+4,4)}, ' + ('0' if ks == 0 else 'v[40:55]'))
                if hook:
                    hook(ks)
        qseg(0, 16)
        self.att_setup()
        e('s_barrier')
        self.stamp('Bw2')
        e.vm = []
        self.kv_load(0)
        pend = list(range(1, o['D']))

        def hook(ks):
            if ks % 3 == 1 and pend:
                self.kv_load(pend.pop(0))
        qseg(16, 32, hook)
        while pend:
            self.kv_load(pend.pop(0))
        assert e.vm == vmsave
        for j in range(8):
            e(f'v_cvt_pk_bf16_f32 {v(16+j)}, {v(40+2*j)}, {v(41+2*j)}')
        e(f's_lshl_b32 {T0}, {s_m}, 11')
        e(f'v_lshl_add_u32 v40, v0, 4, {T0}')
        e(f'ds_write_b128 v40, v[16:19] offset:{L_QX}')
        e(f'ds_write_b128 v40, v[20:23] offset:{L_QX+1024}')
        e('s_waitcnt lgkmcnt(0)')
        e('s_barrier')
        e.label('L_att')
        e.flush_hist()

    vKV, vIDX, vOA, vW32, vYA, vHA, vSTA, vWO, vWG, vWU = 1, 2, 3, 4, 5, 6, 7, 8, 9, 10
    vTR = 11
    vTMP = 12
    vTMP2 = 13
    Q0, Q1 = 16, 20
    GB, XRES = 24, 32
    S0, S1, O0, O1, KVB, WOA = 40, 56, 72, 88, 104, 176

    def att_setup(self):
        e = self.e; D = self.o['D']
        t, t2, t3 = 24, 25, 26
        e(f'v_and_b32 {v(t)}, 15, v0')
        e(f'v_lshlrev_b32 {v(t)}, 4, {v(t)}')
        e(f'v_lshrrev_b32 {v(t2)}, 5, v0')
        e(f'v_lshl_add_u32 {v(t2)}, {v(t2)}, 8, {v(t)}')
        e(f'v_bfe_u32 {v(t3)}, v0, 4, 1')
        e(f'v_lshl_add_u32 {v(self.vKV)}, {v(t3)}, 9, {v(t2)}')
        e(f's_lshl_b32 {s_kvb}, {s_kh}, 16')
        e(f's_add_u32 {s_kvb}, {s_kvb}, {WS_KV}')
        e(f'v_mov_b32 {v(self.vIDX)}, 0xdddddddd')
        e(f's_lshl_b32 {T0}, {s_x}, 3')
        e(f's_add_u32 {T0}, {T0}, {s_tb}')
        e(f's_lshl_b32 {T0}, {T0}, 15')
        e(f's_lshl_b32 {T1}, {s_cb}, 2')
        e(f's_add_u32 {T1}, {T1}, {s_m}')
        e(f's_lshl_b32 {T1}, {T1}, 1')
        e(f's_add_u32 {T1}, {T1}, {s_kh}')
        e(f's_lshl_b32 {T1}, {T1}, 9')
        e(f's_add_u32 {T0}, {T0}, {T1}')
        e(f's_add_u32 {T0}, {T0}, {WS_O}')
        e(f'v_lshl_add_u32 {v(self.vOA)}, {v(t3)}, 14, {v(t2)}')
        e(f'v_add_u32 {v(self.vOA)}, {T0}, {v(self.vOA)}')
        e(f's_lshl_b32 {T0}, {s_x}, 3')
        e(f's_add_u32 {T0}, {T0}, {s_w}')
        e(f's_mul_i32 {T0}, {T0}, {2*44032}')
        e(f's_mul_i32 {T1}, {s_c}, 1536')
        e(f's_add_u32 {T0}, {T0}, {T1}')
        e(f's_add_u32 {T0}, {T0}, {WS_HH}')
        e(f's_cmp_ge_u32 {s_c}, 29')
        e(f's_cselect_b32 {T0}, {OOB}, {T0}')
        e(f'v_mul_u32_u24 {v(self.vHA)}, 44032, {v(t3)}')
        e(f'v_add3_u32 {v(self.vHA)}, {v(self.vHA)}, {v(t2)}, {T0}')
        e(f's_lshl_b32 {T0}, {s_x}, 2')
        e(f's_add_u32 {T0}, {T0}, {s_oct}')
        e(f's_lshl_b32 {T0}, {T0}, 1')
        e(f's_lshr_b32 {T1}, {s_m}, 1')
        e(f's_add_u32 {T1}, {T1}, {T0}')
        e(f's_lshl_b32 {T1}, {T1}, 15')
        e(f's_lshl_b32 {T2}, {s_nb}, 1')
        e(f's_add_u32 {T2}, {T2}, {s_kh}')
        e(f's_lshl_b32 {T2}, {T2}, 11')
        e(f's_add_u32 {T1}, {T1}, {T2}')
        e(f's_and_b32 {T2}, {s_m}, 1')
        e(f's_lshl_b32 {T2}, {T2}, 8')
        e(f's_add_u32 {T1}, {T1}, {T2}')
        e(f's_add_u32 {T1}, {T1}, {WS_Y}')
        e(f'v_lshrrev_b32 {v(t3)}, 4, v0')
        e(f'v_lshl_add_u32 {v(self.vYA)}, {v(t3)}, 9, {v(t)}')
        e(f'v_add_u32 {v(self.vYA)}, {T1}, {v(self.vYA)}')
        e(f's_lshl_b32 {T0}, {T0}, 11')
        e(f's_lshl_b32 {T1}, {s_nb}, 8')
        e(f's_add_u32 {T0}, {T0}, {T1}')
        e(f's_add_u32 {T0}, {T0}, {WS_STATS}')
        e(f's_cmp_eq_u32 {s_w}, 7')
        e(f's_cselect_b32 {T0}, {T0}, {OOB}')
        e(f'v_and_b32 {v(t)}, 31, v0')
        e(f'v_lshlrev_b32 {v(t)}, 3, {v(t)}')
        e(f'v_lshrrev_b32 {v(t2)}, 5, v0')
        e(f'v_lshl_add_u32 {v(t)}, {v(t2)}, 11, {v(t)}')
        e(f'v_add_u32 {v(self.vSTA)}, {T0}, {v(t)}')
        e(f'v_bfe_u32 {v(t)}, v0, 1, 2')
        e(f'v_xor_b32 {v(t)}, {v(t)}, {v(t3)}')
        e(f'v_lshlrev_b32 {v(t)}, 5, {v(t)}')
        e(f'v_lshrrev_b32 {v(t2)}, 3, v0')
        e(f'v_lshl_add_u32 {v(t)}, {v(t2)}, 10, {v(t)}')
        e(f'v_and_b32 {v(t2)}, 1, v0')
        e(f'v_lshl_add_u32 {v(t)}, {v(t2)}, 4, {v(t)}')
        e(f's_lshl_b32 {T0}, {s_nb}, 7')
        e(f'v_add_u32 {v(self.vWO)}, {T0}, {v(t)}')
        e(f's_mul_i32 {T0}, {s_c}, 96')
        e(f'v_lshl_add_u32 {v(t2)}, {v(t2)}, 4, {T0}')
        e(f'v_lshrrev_b32 {v(t)}, 1, v0')
        e(f'v_mul_u32_u24 {v(self.vWG)}, 2752, {v(t)}')
        e(f'v_add_u32 {v(self.vWG)}, {v(self.vWG)}, {v(t2)}')
        e(f'v_xor_b32 {v(t)}, 4, {v(t)}')
        e(f'v_mul_u32_u24 {v(self.vWU)}, 2752, {v(t)}')
        e(f'v_add_u32 {v(self.vWU)}, {v(self.vWU)}, {v(t2)}')
        e(f'v_bfe_u32 {v(t)}, v0, 2, 3')
        e(f'v_lshrrev_b32 {v(t2)}, 5, v0')
        e(f'v_lshl_add_u32 {v(t2)}, {v(t2)}, 4, {v(t)}')
        e(f'v_lshlrev_b32 {v(t2)}, 7, {v(t2)}')
        e(f'v_lshrrev_b32 {v(t)}, 1, {v(t)}')
        e(f's_lshl_b32 {T0}, {s_kh}, 1')
        e(f'v_xor_b32 {v(t)}, {T0}, {v(t)}')
        e(f'v_lshl_add_u32 {v(t2)}, {v(t)}, 5, {v(t2)}')
        e(f'v_and_b32 {v(t)}, 3, v0')
        e(f'v_lshl_add_u32 {v(t2)}, {v(t)}, 3, {v(t2)}')
        e(f's_lshl_b32 {T0}, {s_kh}, 12')
        e(f'v_add_u32 {v(self.vTR)}, {T0}, {v(t2)}')
        e(f'v_and_b32 {v(t)}, 27, v0')
        e(f'v_cmp_eq_u32 vcc, 16, {v(t)}')
        e(f'v_mov_b32 {v(t2)}, 0x3f803f80')
        e(f'v_cndmask_b32 {v(t)}, 0, {v(t2)}, vcc')
        for b in range(D):
            for j in range(8):
                e(f'v_mov_b32 {v(self.KVB+12*b+4+j)}, {v(t)}')
        for j in range(32):
            e(f'v_mov_b32 {v(self.O0+j)}, 0')
        for j in range(4):
            e(f'v_mov_b32 {v(self.GB+j)}, -1')

    def kv_lines(self, t, buf=None, soff=None, fl='sc1'):
        b = self.KVB + 12 * ((t % self.o['D']) if buf is None else buf)
        L = []
        if soff is None:
            L.append(f's_add_u32 {T7}, {s_kvb}, {t*2048}'); soff = T7
        L.append(f'buffer_load_dwordx4 {v(b,4)}, {v(self.vKV)}, {srd(SWS)}, {soff} offen {fl}')
        L.append(f's_mov_b64 exec, {s(S_VM,2)}')
        L.append(f'buffer_load_dwordx4 {v(b+4,4)}, {v(self.vKV)}, {srd(SWS)}, {soff} offen offset:1024 {fl}')
        L.append(f'buffer_load_dwordx4 {v(b+8,4)}, {v(self.vKV)}, {srd(SWS)}, {soff} offen offset:1536 {fl}')
        L.append('s_mov_b64 exec, -1')
        return L

    def kv_load(self, t):
        for l in self.kv_lines(t, fl='sc1' if (self.o['kvsc1'] or t < self.o['nchk']) else ''):
            self.e(l, tag=f'kv{t}')

    def kv_prologue(self):
        self.e.vm = []
        for t in range(self.o['D']):
            self.kv_load(t)

    def kv_ready(self, t):
        e = self.e
        e.wait_vm(f'kv{t}')
        if t < self.o['nchk']:
            b = self.KVB + 12 * (t % self.o['D'])
            self.frag_check([b, b + 4, b + 8], self.vTMP, self.kv_lines(t), 'kv')

    def tr64(self, dst, step_off, region_reg_base):
        e = self.e
        for j in range(4):
            e(f'ds_read_b64_tr_b16 {v(dst+4*j,2)}, {v(region_reg_base+j)} offset:{step_off}')
            e(f'ds_read_b64_tr_b16 {v(dst+4*j+2,2)}, {v(region_reg_base+j)} offset:{step_off+1024}', tag=f'w{dst+4*j}')

    def tr64_addr(self, base, region):
        e = self.e
        e(f'v_add_u32 {v(base)}, {region}, {v(self.vTR)}')
        for j in (1, 2, 3):
            e(f'v_xor_b32 {v(base+j)}, {32*j}, {v(base)}')

    def w64_dma(self, rs, step, halfrows, lds_addr, tag=None):
        self.dma(rs, self.vWO, s_ds, step * 32768, s_dl, lds_addr, tag=tag)

    def w64_bases(self, halfrows):
        e = self.e
        e(f's_lshl_b32 {s_dl}, {s_w}, 10')
        e(f's_mul_i32 {s_ds}, {s_kh}, {halfrows*1024}')
        e(f's_lshl_b32 {T0}, {s_m}, 13')
        e(f's_add_u32 {s_ds}, {s_ds}, {T0}')

    def attention(self):
        e = self.e; o = self.o; D = o['D']
        S = (self.S0, self.S1); O = (self.O0, self.O1); Q = (self.Q0, self.Q1)
        NT = 32
        kb = lambda t: self.KVB + 12 * (t % D)
        QK = lambda d, t, q: e(f'v_mfma_f32_32x32x16_bf16 {v(d,16)}, {v(kb(t),4)}, {v(q,4)}, 0')
        SM = lambda d, a, b: e(f'v_smfmac_f32_32x32x32_bf16 {v(d,16)}, {v(a,4)}, {v(b,8)}, {v(self.vIDX)}')
        self.stamp('att0')
        e('s_setprio 3')
        self.w64_bases(256)
        GB = self.GB
        gloads = []
        for p in range(2):
            gloads += [f's_mov_b32 {T7}, {WS_MODB + p*8192}',
                       f'buffer_load_dwordx4 {v(GB+4*p,4)}, v36, {srd(SWS)}, {T7} offen sc1']
        self.gb_loads = gloads

        def triple(mat, rb):
            e(f's_lshl_b32 {T1}, {s_w}, 11')
            e(f's_mul_i32 {T0}, {s_w}, {64*2752}')
            for tl in range(3):
                self.dma(SWU if mat else SWG, self.vWU if mat else self.vWG, T0, rb * 32 * 2752 + 32 * tl,
                         T1, L_WGU + tl * 32768 + mat * 16384 + rb * 1024)

        def clear(i):
            if i == 0:
                e(f'buffer_store_dwordx4 {v(GB,4)}, {v(self.vOA)}, {srd(SWS)}, 0 offen sc1')
            elif i == 1:
                e(f'buffer_store_dwordx4 {v(GB,4)}, {v(self.vYA)}, {srd(SWS)}, 0 offen sc1')
            elif i == 2:
                e(f'buffer_store_dwordx4 {v(GB,4)}, {v(self.vHA)}, {srd(SWS)}, 0 offen sc1')
            elif i == 3:
                e(f'buffer_store_dwordx4 {v(GB,4)}, {v(self.vHA)}, {srd(SWS)}, 0 offen offset:512 sc1')
            elif i == 4:
                e(f's_cmp_eq_u32 {s_c}, 28')
                e(f's_cselect_b32 {T4}, {OOB}, 0')
                e(f'buffer_store_dwordx4 {v(GB,4)}, {v(self.vHA)}, {srd(SWS)}, {T4} offen offset:1024 sc1')
            else:
                e(f'buffer_store_dwordx2 {v(GB,2)}, {v(self.vSTA)}, {srd(SWS)}, 0 offen sc1', tag='clr')

        TB1 = o['tb1']

        def side(t):
            if o['noside'] and t not in (29,):
                return
            if 1 <= t <= 4:
                self.w64_dma(SWO, t - 1, 256, L_WOA + (t - 1) * 8192)
            if t == 5:
                e(f's_lshl_b32 {T0}, {s_x}, 3')
                e(f's_add_u32 {T0}, {T0}, {s_tb}')
                e(f's_and_b32 {T1}, {T0}, 1')
                e(f's_lshr_b32 {T0}, {T0}, 1')
                e(f's_lshl_b32 {T0}, {T0}, 2')
                e(f's_add_u32 {T0}, {T0}, {s_cb}')
                e(f's_lshl_b32 {T2}, {T1}, 3')
                e(f's_add_u32 {T2}, {T2}, {s_w}')
                e(f's_mul_i32 {T2}, {T2}, {32*6144}')
                e(f's_lshl_b32 {T3}, {T0}, 5')
                e(f's_add_u32 {T2}, {T2}, {T3}')
                self.dma(SWM, self.vW32, T2, 2048, s_dl, L_MBW)
                e(f's_lshl_b32 {T1}, {T1}, 13')
                e(f's_lshl_b32 {T0}, {T0}, 6')
                e(f's_add_u32 {T0}, {T0}, {T1}')
                e(f's_add_u32 {T5}, {T0}, {WS_MODB}')
            if 2 <= t <= 7:
                clear(t - 2)
            if t == 8:
                triple(1, 0)
            if t == TB1 - 1:
                e('s_setprio 2')
            if t == TB1:
                e.wait_vm('clr')
                e('s_barrier')
                lab = e.newlabel('nomb')
                e(f's_cmp_lg_u32 {s_w}, 5')
                e(f's_cbranch_scc1 {lab}')
                W = self.WOA
                e(f'v_lshlrev_b32 {v(self.vTMP)}, 3, v0')
                e(f'v_add_u32 {v(self.vTMP)}, {L_SB2}, {v(self.vTMP)}')
                e(f'ds_write_b64 {v(self.vTMP)}, v[14:15]')
                e(f'v_lshrrev_b32 v14, 4, v0')
                e(f'v_and_b32 v15, 15, v0')
                e(f'v_lshlrev_b32 v15, 3, v15')
                e(f'v_lshl_add_u32 v15, v14, 8, v15')
                e(f'v_add_u32 v15, {L_MBW}, v15')
                e(f'v_lshlrev_b32 v14, 4, v14')
                e(f'v_add_u32 v14, {L_SB2}, v14')
                for ks in range(8):
                    e(f'ds_read_b128 {v(W+8*ks,4)}, v14 offset:{ks*64}')
                    e(f'ds_read_b64_tr_b16 {v(W+8*ks+4,2)}, v15 offset:{ks*1024}')
                    e(f'ds_read_b64_tr_b16 {v(W+8*ks+6,2)}, v15 offset:{ks*1024+128}')
                e('s_waitcnt lgkmcnt(0)')
                for ks in range(8):
                    e(f'v_mfma_f32_16x16x32_bf16 v[240:243], {v(W+8*ks,4)}, {v(W+8*ks+4,4)}, ' + ('0' if ks == 0 else 'v[240:243]'))
                self.tag_and_store(240, 14, 15, T5)
                e.label(lab)
                self.tr64_addr(240, L_WOA)
                for i in range(2):
                    self.tr64(self.WOA + 16 * i, i * 8192, 240)
            if t == TB1 + 1:
                for i in range(2, 4):
                    self.tr64(self.WOA + 16 * i, i * 8192, 240)
                triple(1, 1)
            if t == TB1 + 2:
                e('s_waitcnt lgkmcnt(0)')
                e('s_barrier')
                e('s_setprio 1')
            if TB1 + 3 <= t <= TB1 + 6:
                i = t - TB1 - 3
                self.w64_dma(SWO, 4 + i, 256, L_WOB + i * 8192)
            if t == 19:
                triple(0, 0)
            if t == 23:
                triple(0, 1)
            if t in (21, 26):
                e(f's_mul_i32 {T0}, {s_c}, {43*1024}')
                e(f's_lshl_b32 {T1}, {s_w}, 7')
                e(f's_add_u32 {T0}, {T0}, {T1}')
                if t == 21:
                    e(f'v_min_u32 {v(self.vTMP2)}, 21, v0')
                    e(f'v_lshlrev_b32 {v(self.vTMP2)}, 10, {v(self.vTMP2)}')
                else:
                    e(f's_add_u32 {T0}, {T0}, {21*1024}')
                e(f'buffer_load_dword v37, {v(self.vTMP2)}, {srd(SWD)}, {T0} offen')
            if t == 27:
                e(f's_lshl_b32 {T0}, {s_w}, 10')
                e(f'v_lshl_add_u32 v36, v0, 4, {T0}')
                for l in gloads:
                    e(l, tag='gb')
                e(f's_lshl_b32 {T0}, {s_x}, 2')
                e(f's_add_u32 {T0}, {T0}, {s_oct}')
                e(f's_lshl_b32 {T0}, {T0}, 2')
                e(f's_add_u32 {T0}, {T0}, {s_m}')
                e(f's_lshl_b32 {s_act}, {T0}, 14')
                e(f's_lshl_b32 {T1}, {s_nb}, 1')
                e(f's_add_u32 {T1}, {T1}, {s_kh}')
                e(f's_lshl_b32 {T1}, {T1}, 6')
                e(f's_add_u32 {T1}, {T1}, {s_act}')
                e(f'v_and_b32 v4, 15, v0')
                e(f'v_lshl_add_u32 v4, v4, 10, {T1}')
                e(f'v_lshrrev_b32 {v(self.vTMP2)}, 4, v0')
                e(f'v_lshl_add_u32 {v(self.vTMP2)}, {v(self.vTMP2)}, 3, v4')
                e(f'buffer_load_dwordx2 {v(self.XRES,2)}, {v(self.vTMP2)}, {srd(SX)}, 0 offen')
                e(f'buffer_load_dwordx2 {v(self.XRES+2,2)}, {v(self.vTMP2)}, {srd(SX)}, 0 offen offset:32')
            if t == 29:
                e('s_setprio 0')
            if t in (4, 8, 12, 16, 20, 24, 28):
                self.stamp(f't{t}')

        self.kv_ready(0)
        QK(S[0], 0, Q[0])
        for t in range(NT):
            for a in range(2):
                cur, oth = S[a], S[1 - a]
                for r in range(16):
                    if r == 2:
                        if a == 0 and t > 0:
                            SM(O[1], kb(t - 1) + 8, oth + 8)
                            if t - 1 + D < NT:
                                self.kv_load(t - 1 + D)
                        if a == 1:
                            SM(O[0], kb(t) + 8, oth + 8)
                            if t + 1 < NT:
                                self.kv_ready(t + 1)
                    if r == 5:
                        if a == 0:
                            QK(oth, t, Q[1])
                        elif t + 1 < NT:
                            QK(oth, t + 1, Q[0])
                    if r == 10:
                        SM(O[a], kb(t) + 4, cur)
                        if a == 0:
                            side(t)
                    e(f'v_exp_f32 {v(cur+r)}, {v(cur+r)}')
        SM(O[1], kb(NT - 1) + 8, S[1] + 8)
        self.stamp('att1')

    def att_epilogue(self):
        e = self.e; o = self.o
        O0, O1, S0 = self.O0, self.O1, self.S0
        t, t2 = self.vTMP, self.vTMP2
        e(f's_mul_i32 {T0}, {s_w}, 2304')
        e(f's_add_u32 {T0}, {T0}, {L_EX}')
        e(f'v_lshl_add_u32 {v(t)}, v0, 4, {T0}')
        e(f'v_lshl_add_u32 {v(t2)}, v0, 2, {T0}')
        e(f's_xor_b32 {T1}, {s_w}, 4')
        e(f's_mul_i32 {T1}, {T1}, 2304')
        e(f's_add_u32 {T1}, {T1}, {L_EX}')
        e(f'v_lshl_add_u32 v14, v0, 4, {T1}')
        e(f'v_lshl_add_u32 v15, v0, 2, {T1}')
        e(f'ds_write_b128 {v(t)}, {v(O1,4)}')
        e(f'ds_write_b128 {v(t)}, {v(O1+4,4)} offset:1024')
        e(f'ds_write_b32 {v(t2)}, {v(O1+8)} offset:2048')
        e('s_waitcnt vmcnt(0) lgkmcnt(0)')
        e('s_barrier')
        e(f'ds_read_b32 {v(S0+8)}, v15 offset:2048', tag='l')
        e(f'ds_read_b128 {v(S0,4)}, v14', tag='a')
        e(f'ds_read_b128 {v(S0+4,4)}, v14 offset:1024', tag='b')
        e(f's_mov_b32 {T0}, {fbits(2.0**-90)}')
        e(f'v_mov_b32 {v(t2)}, {fbits(2.0**120)}')
        e.wait_lg('l')
        e(f'v_add_f32 {v(O0+8)}, {v(O0+8)}, {v(S0+8)}')
        e(f'v_med3_f32 {v(t)}, {v(O0+8)}, {T0}, {v(t2)}')
        e(f'v_cmp_neq_f32 {s(72,2)}, {v(t)}, {v(O0+8)}')
        e(f'v_rcp_f32 {v(O0+8)}, {v(O0+8)}')
        e.wait_lg('b')
        for j in range(0, 8, 2):
            e(f'v_pk_add_f32 {v(O0+j,2)}, {v(O0+j,2)}, {v(S0+j,2)}')
        for j in range(8):
            e(f'v_mul_f32 {v(O0+j)}, {v(O0+j)}, {v(O0+8)}')
        e(f'v_pk_add_f32 {v(S0,2)}, {v(O0,2)}, {v(O0+2,2)}')
        e(f'v_pk_add_f32 {v(S0+2,2)}, {v(O0+4,2)}, {v(O0+6,2)}')
        e(f'v_pk_add_f32 {v(S0,2)}, {v(S0,2)}, {v(S0+2,2)}')
        e(f'v_add_f32 {v(S0)}, {v(S0)}, {v(S0+1)}')
        e(f'v_mov_b32 {v(t)}, 0x207')
        e(f'v_cmp_class_f32 vcc, {v(S0)}, {v(t)}')
        e(f's_or_b64 vcc, vcc, {s(72,2)}')
        if o['force_slow']:
            e('s_branch L_slow')
        else:
            e('s_cbranch_vccnz L_slow')
        e.label('L_slow_ret')
        for j in range(4):
            e(f'v_cvt_pk_bf16_f32 {v(O0+j)}, {v(O0+2*j)}, {v(O0+2*j+1)}')
        e(f'buffer_store_dwordx4 {v(O0,4)}, {v(self.vOA)}, {srd(SWS)}, 0 offen sc1', tag='o')
        self.stubs.append(('code', self.slow_path))
        self.stamp('opub')

    def slow_path(self):
        e = self.e
        O0, S0, S1, K = self.O0, self.S0, self.S1, self.KVB
        t, m = self.vTMP, self.vTMP2
        e.label('L_slow')
        e('s_nop 7')

        def fetch(name):
            top = e.newlabel(name); go = e.newlabel(name + 'go')
            e.label(top)
            for l in self.kv_lines(0, buf=0, soff=T0):
                e(l, count=False)
            e('s_waitcnt vmcnt(0)')
            e(f'v_max3_u32 {v(t)}, {v(K)}, {v(K+4)}, {v(K+8)}')
            e(f'v_cmp_eq_u32 vcc, -1, {v(t)}')
            e(f's_cbranch_vccz {go}')
            e(f's_cmp_eq_u32 {s_budget}, 0')
            e(f's_cbranch_scc1 {go}')
            e(f's_sub_u32 {s_budget}, {s_budget}, 1')
            e(f's_branch {top}')
            e.label(go)
            return top
        e(f'v_mov_b32 {v(m)}, 0xff800000')
        e(f's_mov_b32 {T0}, {WS_KV}')
        top = fetch('sl1')
        e(f'v_mfma_f32_32x32x16_bf16 {v(S0,16)}, {v(K,4)}, {v(self.Q0,4)}, 0')
        for j in range(0, 16, 2):
            e(f'v_max3_f32 {v(m)}, {v(m)}, {v(S0+j)}, {v(S0+j+1)}')
        e(f's_add_u32 {T0}, {T0}, 2048')
        e(f's_cmp_lt_u32 {T0}, {WS_KV+64*2048}')
        e(f's_cbranch_scc1 {top}')
        e(f'v_mov_b32 {v(t)}, {v(m)}')
        e(f'v_permlane32_swap_b32 {v(m)}, {v(t)}')
        e(f'v_max_f32 {v(m)}, {v(m)}, {v(t)}')
        for j in range(16):
            e(f'v_sub_f32 {v(S1+j)}, 0, {v(m)}')
            e(f'v_mov_b32 {v(O0+j)}, 0')
        e(f's_mov_b32 {T0}, {WS_KV}')
        top = fetch('sl2')
        e(f'v_mfma_f32_32x32x16_bf16 {v(S0,16)}, {v(K,4)}, {v(self.Q0,4)}, {v(S1,16)}')
        for j in range(16):
            e(f'v_exp_f32 {v(S0+j)}, {v(S0+j)}')
        e(f'v_smfmac_f32_32x32x32_bf16 {v(O0,16)}, {v(K+4,4)}, {v(S0,8)}, {v(self.vIDX)}')
        e(f'v_smfmac_f32_32x32x32_bf16 {v(O0,16)}, {v(K+8,4)}, {v(S0+8,8)}, {v(self.vIDX)}')
        e('s_nop 7')
        e(f's_add_u32 {T0}, {T0}, 2048')
        e(f's_cmp_lt_u32 {T0}, {WS_KV+64*2048}')
        e(f's_cbranch_scc1 {top}')
        e('s_nop 7')
        e(f'v_rcp_f32 {v(O0+8)}, {v(O0+8)}')
        for j in range(8):
            e(f'v_mul_f32 {v(O0+j)}, {v(O0+j)}, {v(O0+8)}')
        e('s_branch L_slow_ret')

    def exchange(self, acc, recv):
        e = self.e
        t, t2 = self.vTMP, self.vTMP2
        e(f'ds_write_b128 {v(t)}, {v(acc+8,4)}')
        e(f'ds_write_b128 {v(t)}, {v(acc+12,4)} offset:1024')
        e('s_waitcnt lgkmcnt(0)')
        e('s_barrier')
        e(f'ds_read_b128 {v(recv,4)}, {v(t2)}', tag='a')
        e(f'ds_read_b128 {v(recv+4,4)}, {v(t2)} offset:1024', tag='b')
        e.wait_lg('a')
        for j in (0, 2):
            e(f'v_pk_add_f32 {v(acc+j,2)}, {v(acc+j,2)}, {v(recv+j,2)}')
        e.wait_lg('b')
        for j in (4, 6):
            e(f'v_pk_add_f32 {v(acc+j,2)}, {v(acc+j,2)}, {v(recv+j,2)}')

    def exchange_addr(self):
        e = self.e
        e(f's_lshl_b32 {T0}, {s_w}, 11')
        e(f's_add_u32 {T0}, {T0}, {L_EX}')
        e(f'v_lshl_add_u32 {v(self.vTMP)}, v0, 4, {T0}')
        e(f'v_xor_b32 {v(self.vTMP2)}, 8192, {v(self.vTMP)}')

    X1 = 16

    def a_extra(self, R, acc):
        e = self.e
        lab = e.newlabel('noax')
        e(f's_cmp_ge_u32 {s_w}, 6')
        e(f's_cbranch_scc1 {lab}')
        lgsave = list(e.lg)
        e(f's_and_b32 {T0}, {s_w}, 1')
        e(f's_lshl_b32 {T1}, {T0}, 4')
        e(f'v_xor_b32 v36, {T1}, v0')
        e(f's_lshl_b32 {T2}, {s_w}, 14')
        e(f'v_lshl_add_u32 v36, v36, 3, {T2}')
        e(f'v_and_b32 v37, 48, v0')
        e(f'v_and_b32 v38, 1, v0')
        e(f'v_xor_b32 v38, 1, v38')
        e(f'v_lshl_add_u32 v37, v38, 10, v37')
        e(f'v_add_u32 v37, {L_STG16}, v37')

        def rd(nb):
            r = R + 8 * (nb % 4)
            e(f'ds_read_b128 {v(r,4)}, v37 offset:{nb*64}')
            e(f'ds_read_b64_tr_b16 {v(r+4,2)}, v36 offset:{nb*1024}')
            e(f'ds_read_b64_tr_b16 {v(r+6,2)}, v36 offset:{nb*1024+512}', tag=f'ax{nb}')
        for nb in range(4):
            rd(nb)
        for nb in range(16):
            r = R + 8 * (nb % 4)
            e.wait_lg(f'ax{nb}')
            e(f'v_mfma_f32_16x16x32_bf16 {v(acc,4)}, {v(r,4)}, {v(r+4,4)}, ' + ('0' if nb == 0 else v(acc, 4)))
            if nb + 4 < 16:
                rd(nb + 4)
        e('v_and_b32 v36, 16, v0')
        e('v_cmp_ne_u32 vcc, 0, v36')
        e('v_and_b32 v37, 15, v0')
        e('v_lshl_add_u32 v37, v36, 1, v37')
        e(f'v_add_u32 v37, {T1}, v37')
        e(f's_lshr_b32 {T2}, {s_w}, 1')
        e(f's_lshl_b32 {T2}, {T2}, 9')
        e(f's_add_u32 {T2}, {T2}, {L_AX}')
        e(f'v_lshl_add_u32 v37, v37, 3, {T2}')
        e(f'v_cndmask_b32 {v(acc)}, {v(acc)}, {v(acc+1)}, vcc')
        e(f'v_cvt_pk_bf16_f32 v39, {v(acc)}, 0')
        e(f'v_lshlrev_b32 {v(acc+1)}, 16, v39')
        e(f'v_sub_f32 {v(acc+1)}, {v(acc)}, {v(acc+1)}')
        e(f'v_cvt_pk_bf16_f32 v38, {v(acc)}, {v(acc+1)}')
        e('ds_write_b64 v37, v[38:39]')
        e.label(lab)
        e.lg = lgsave

    def phase_o(self):
        e = self.e; o = self.o
        GB = self.GB; X1 = self.X1
        WB, OF, ACC, RECV, GA, CB = 104, 40, 72, 88, 240, 248
        e(f's_lshr_b32 {T0}, {s_w}, 1')
        e(f's_cmp_eq_u32 {T0}, 2')
        e(f's_cselect_b32 {s_one}, 1.0, 0')
        self.tr64_addr(96, L_WOB)
        for i in range(2):
            self.tr64(WB + 16 * i, i * 8192, 96)
        self.gather_check(GB, 2, 14, self.gb_loads, 'gb')
        self.round_mod(GB, GB + 4)
        e(f'v_add_u32 v36, {L_STGB}, v36')
        e(f'ds_write_b128 v36, {v(GB,4)}')
        lab = e.newlabel('no16')
        e(f's_sub_u32 {T0}, {s_w}, 2')
        e(f's_cmp_ge_u32 {T0}, 4')
        e(f's_cbranch_scc1 {lab}')
        e(f's_lshl_b32 {T0}, {T0}, 9')
        e(f's_add_u32 {T0}, {T0}, {L_STG16}')
        e(f'v_lshrrev_b32 v15, 3, v0')
        e(f'v_lshl_add_u32 v15, v15, 6, {T0}')
        e(f'v_and_b32 v14, 3, v0')
        e(f'v_lshl_add_u32 v15, v14, 4, v15')
        e(f'v_bfe_u32 v14, v0, 2, 1')
        e(f'v_lshl_add_u32 v15, v14, 3, v15')
        e(f'ds_write_b64 v15, {v(GB+4,2)}', count=False)
        e.label(lab)
        for i in range(2, 4):
            self.tr64(WB + 16 * i, i * 8192, 96)
        for j in range(4):
            self.unpack(self.XRES + j, X1 + 2 * j, X1 + 2 * j + 1)
        self.exchange_addr()
        e(f's_lshl_b32 {T0}, {s_nb}, 1')
        e(f's_add_u32 {T0}, {T0}, {s_kh}')
        e(f's_lshl_b32 {T0}, {T0}, 7')
        e(f's_add_u32 {T0}, {T0}, {L_STGB}')
        e(f'v_lshrrev_b32 v15, 4, v0')
        e(f'v_lshl_add_u32 v15, v15, 4, {T0}')
        e(f's_lshl_b32 {T0}, {s_kh}, 13')
        e(f's_add_u32 {s_act}, {s_act}, {T0}')
        e(f's_add_u32 {s_act}, {s_act}, {WS_O}')
        e(f's_add_u32 {T6}, {s_act}, 4096')
        e(f'v_lshlrev_b32 v1, 4, v0')
        self.w64_bases(704)
        e('s_waitcnt vmcnt(0) lgkmcnt(0)')
        self.sleep(o['dly_o'])
        e('s_barrier')
        self.stamp('BO1')
        ol = [f'buffer_load_dwordx4 {v(OF+4*k,4)}, v1, {srd(SWS)}, {s_act if k < 4 else T6} offen offset:{(k%4)*1024} sc1' for k in range(8)]
        for k in range(4):
            e(ol[k], tag=f'o{k}')
        lab = e.newlabel('noep')
        e(f's_or_b32 {T0}, s2, {s_w}')
        e(f's_cmp_lg_u32 {T0}, 0')
        e(f's_cbranch_scc1 {lab}')
        e(f'v_mov_b32 v14, {s_nonce}')
        e(f'buffer_store_dword v14, off, {srd(SWS)}, 0 sc1', count=False)
        e.label(lab)
        self.a_extra(72, 168)
        for base, sec in ((GA, 0), (CB, 2), (GB, 3)):
            e(f'ds_read_b128 {v(base,4)}, v15 offset:{sec*2048}')
            e(f'ds_read_b128 {v(base+4,4)}, v15 offset:{sec*2048+64}')
        self.stamp('ax')
        for k in range(8):
            if k % 2 == 0:
                e.wait_vm(f'o{k+1}')
                if k == 0:
                    self.stamp('oin')
                self.frag_check([OF + 4 * k, OF + 4 * k + 4], 14, ol[k:min(k + 4, 8)], 'o')
                if k < 4:
                    e(ol[k + 4], tag=f'o{k+4}')
                    e(ol[k + 5], tag=f'o{k+5}')
            W = (self.WOA + 16 * k) if k < 4 else (WB + 16 * (k - 4))
            for j in (2, 3, 0, 1):
                e(f'v_mfma_f32_16x16x32_bf16 {v(ACC+4*j,4)}, {v(W+4*j,4)}, {v(OF+4*k,4)}, ' + ('0' if k == 0 else v(ACC + 4 * j, 4)))
        self.stamp('omma')
        self.exchange(ACC, RECV)
        for j in range(0, 8, 2):
            e(f'v_pk_fma_f32 {v(X1+j,2)}, {v(ACC+j,2)}, {v(GA+j,2)}, {v(X1+j,2)}')
        for j in range(0, 8, 2):
            e(f'v_pk_mul_f32 {v(ACC+j,2)}, {v(X1+j,2)}, {v(CB+j,2)}')
        for j in range(4):
            e(f'v_cvt_pk_bf16_f32 {v(ACC+j)}, {v(ACC+2*j)}, {v(ACC+2*j+1)}')
        e(f'buffer_store_dwordx4 {v(ACC,4)}, {v(self.vYA)}, {srd(SWS)}, 0 offen sc1', tag='y')
        self.stamp('ypub')
        for i in range(4):
            self.w64_dma(SWD, i, 704, L_WD1 + i * 8192)
        a, b = 88, 89
        e(f'v_add_f32 {v(a)}, {v(X1)}, {v(X1+1)}')
        e(f'v_mul_f32 {v(b)}, {v(X1)}, {v(X1)}')
        for j in range(1, 8):
            if j > 1:
                e(f'v_add_f32 {v(a)}, {v(a)}, {v(X1+j)}')
            e(f'v_fmac_f32 {v(b)}, {v(X1+j)}, {v(X1+j)}')
        e(f'v_permlane32_swap_b32 {v(a)}, {v(b)}')
        e(f'v_add_f32 {v(a)}, {v(a)}, {v(b)}')
        e(f'v_mov_b32 {v(b)}, {v(a)}')
        e(f'v_permlane16_swap_b32 {v(a)}, {v(b)}')
        e(f'v_add_f32 {v(a)}, {v(a)}, {v(b)}')
        e(f's_lshl_b32 {T0}, {s_w}, 7')
        e(f's_add_u32 {T0}, {T0}, {L_ST}')
        e(f'v_and_b32 v14, 15, v0')
        e(f'v_lshl_add_u32 v14, v14, 3, {T0}')
        e(f'v_lshrrev_b32 v15, 5, v0')
        e(f'v_lshl_add_u32 v14, v15, 2, v14')
        e(f'ds_write_b32 v14, {v(a)}')

    def phase_g(self):
        e = self.e; o = self.o
        Y, ACC, AF, ST, AX, BX = 128, 40, 88, 32, 112, 118
        vA, vA2 = 124, 125
        LA = o['la_y']
        e('v_bfe_u32 v14, v0, 4, 1')
        e('v_xor_b32 v36, v14, v15')
        e(f'v_and_b32 {v(vA)}, 15, v0')
        e(f'v_lshlrev_b32 {v(vA)}, 3, {v(vA)}')
        e(f'v_lshl_add_u32 {v(vA)}, v36, 7, {v(vA)}')
        e(f'v_lshl_add_u32 {v(vA)}, v14, 14, {v(vA)}')
        e(f'v_add_u32 {v(vA2)}, 65536, {v(vA)}')
        e(f's_lshl_b32 {T0}, {s_x}, 3')
        e(f's_add_u32 {T0}, {T0}, {s_w}')
        e(f's_lshl_b32 {T5}, {T0}, 11')
        e(f's_add_u32 {T5}, {T5}, {WS_STATS}')
        e('v_and_b32 v14, 31, v0')
        e('v_lshlrev_b32 v14, 3, v14')
        e('v_lshl_add_u32 v126, v15, 10, v14')
        e(f's_lshl_b32 {s_act}, {T0}, 15')
        e(f's_add_u32 {s_act}, {s_act}, {WS_Y}')
        e(f's_cmp_ge_u32 {s_c}, 29')
        e(f's_cselect_b32 {s_act}, {OOB}, {s_act}')
        e('v_lshlrev_b32 v127, 3, v0')
        e(f'v_add_u32 v15, {L_ST}, v127')
        e(f'v_add_u32 v127, {L_AX}, v127')
        self.tr64_addr(120, L_WD1)
        e('s_waitcnt vmcnt(0) lgkmcnt(0)')
        self.sleep(o['dly_y'])
        e('s_barrier')
        self.stamp('BO3')

        def yreg(k):
            return Y + 4 * (k % 16)

        def ylines(k):
            return [f's_add_u32 {T7}, {s_act}, {(k//4)*4096}',
                    f'buffer_load_dwordx4 {v(yreg(k),4)}, v1, {srd(SWS)}, {T7} offen offset:{(k%4)*1024} sc1']
        issued = [0]

        def yload():
            k = issued[0]
            if k < 32:
                for l in ylines(k):
                    e(l, tag=f'y{k}')
                issued[0] += 1
        for k in range(4):
            yload()
        lab = e.newlabel('nost')
        e(f's_cmp_lg_u32 {s_w}, 7')
        e(f's_cbranch_scc1 {lab}')
        e(f'ds_read_b64 v[88:89], v15')
        e(f'ds_read_b64 v[90:91], v15 offset:512')
        e('s_waitcnt lgkmcnt(0)')
        e('v_pk_add_f32 v[88:89], v[88:89], v[90:91]')
        e(f'buffer_store_dwordx2 v[88:89], {v(self.vSTA)}, {srd(SWS)}, 0 offen sc1', count=False)
        e.label(lab)
        for i in range(4):
            self.tr64(192 + 16 * i, i * 8192, 120)
        for tl in range(3):
            e(f'ds_read_b64 {v(AX+2*tl,2)}, v127 offset:{tl*512}')
        e('s_waitcnt lgkmcnt(0)')
        e('s_barrier')
        self.stamp('BG0')
        e(f's_cmp_ge_u32 {s_c}, 29')
        e('s_cbranch_scc1 L_g_skip')
        sl = [f'buffer_load_dwordx2 {v(ST+2*i,2)}, v126, {srd(SWS)}, {T5} offen offset:{i*256} sc1' for i in range(4)]

        def areads(ks):
            r = AF + 12 * (ks % 2)
            nb, jj = ks // 2, ks % 2
            for tl in range(3):
                base = vA if tl < 2 else vA2
                off = (tl % 2) * 32768 + nb * 1024 + jj * 256
                e(f'ds_read_b64_tr_b16 {v(r+4*tl,2)}, {v(base)} offset:{off}')
                e(f'ds_read_b64_tr_b16 {v(r+4*tl+2,2)}, {v(base)} offset:{off+512}', tag=f'a{ks}_{tl}')
        areads(0)
        areads(1)
        for ks in range(32):
            if ks % 4 == 0:
                e.wait_vm(f'y{ks+3}')
                if ks == 0:
                    self.stamp('yin')
                rl = []
                for k in range(ks, issued[0]):
                    rl += ylines(k)
                self.frag_check([yreg(ks + k) for k in range(4)], 14, rl, 'y')
            r = AF + 12 * (ks % 2)
            for tl in range(3):
                e.wait_lg(f'a{ks}_{tl}')
                e(f'v_mfma_f32_32x32x16_bf16 {v(ACC+16*tl,16)}, {v(r+4*tl,4)}, {v(yreg(ks),4)}, ' + ('0' if ks == 0 else v(ACC + 16 * tl, 16)))
                if tl < 2 and issued[0] < ks + 1 + LA:
                    yload()
            if ks + 2 < 32:
                areads(ks + 2)
            if ks % 3 == 0 and 6 <= ks <= 24:
                i = 4 + (ks - 6) // 3
                self.w64_dma(SWD, i, 704, L_WD1 + (i - 4) * 8192)
            if ks == 25:
                for l in sl:
                    e(l, tag='st')
            if ks == 30:
                e.wait_vm('st')
                self.frag_check([ST + 2 * i for i in range(4)], 14, sl, 'st')
                e(f'v_pk_add_f32 {v(ST,2)}, {v(ST,2)}, {v(ST+2,2)}')
                e(f'v_pk_add_f32 {v(ST+4,2)}, {v(ST+4,2)}, {v(ST+6,2)}')
                e(f'v_pk_add_f32 {v(ST,2)}, {v(ST,2)}, {v(ST+4,2)}')
                e(f'v_mov_b32 {v(ST+2)}, {v(ST)}')
                e(f'v_mov_b32 {v(ST+3)}, {v(ST+1)}')
                e(f'v_cmp_gt_u32 vcc, 32, v0')
                e(f'v_permlane32_swap_b32 {v(ST)}, {v(ST+2)}')
                e(f'v_permlane32_swap_b32 {v(ST+1)}, {v(ST+3)}')
                e(f'v_pk_add_f32 {v(ST,2)}, {v(ST,2)}, {v(ST+2,2)}')
                e(f'v_mul_f32 {v(ST)}, {fbits(-1.0/512)}, {v(ST)}')
                e(f'v_mul_f32 {v(ST+1)}, {fbits(1.0/512)}, {v(ST+1)}')
                e(f'v_fma_f32 {v(ST+1)}, -{v(ST)}, {v(ST)}, {v(ST+1)}')
                e(f'v_max_f32 {v(ST+1)}, 0, {v(ST+1)}')
                e(f'v_add_f32 {v(ST+1)}, {fbits(1e-5)}, {v(ST+1)}')
                e(f'v_sqrt_f32 {v(ST+2)}, {v(ST+1)}')
                e(f'v_rcp_f32 {v(ST+4)}, {v(ST+1)}')
                e(f'v_cndmask_b32 {v(ST)}, {v(ST+2)}, {v(ST)}, vcc')
                e(f'v_cvt_pk_bf16_f32 {v(BX)}, {v(ST)}, {v(ST)}')
                e(f'v_lshlrev_b32 {v(ST+1)}, 16, {v(BX)}')
                e(f'v_sub_f32 {v(ST+1)}, {v(ST)}, {v(ST+1)}')
                e(f'v_cvt_pk_bf16_f32 {v(BX+1)}, {v(ST+1)}, 0')
                e(f'v_mov_b32 {v(ST+5)}, {v(ST+4)}')
        for tl in range(3):
            e(f'v_mfma_f32_32x32x8_bf16 {v(ACC+16*tl,16)}, {v(AX+2*tl,2)}, {v(BX,2)}, {v(ACC+16*tl,16)}')
        self.stamp('gmma')
        e(f's_cmp_eq_u32 {s_c}, 28')
        e(f's_cselect_b32 {T4}, {OOB}, 0')
        for tl in range(3):
            a = ACC + 16 * tl
            for j in range(8):
                e(f'v_max_f32 {v(a+j)}, 0, {v(a+j)}')
            for j in range(0, 8, 2):
                e(f'v_pk_mul_f32 {v(a+8+j,2)}, {v(a+8+j,2)}, {v(ST+4,2)}')
            for j in range(0, 8, 2):
                e(f'v_pk_mul_f32 {v(a+j,2)}, {v(a+j,2)}, {v(a+8+j,2)}')
            for j in range(4):
                e(f'v_cvt_pk_bf16_f32 {v(a+j)}, {v(a+2*j)}, {v(a+2*j+1)}')
            e(f'buffer_store_dwordx4 {v(a,4)}, {v(self.vHA)}, {srd(SWS)}, {T4 if tl == 2 else 0} offen offset:{tl*512} sc1')
        e('s_branch L_g_done')
        e.label('L_g_skip')
        e.flush_hist()
        for i in range(4, 11):
            self.w64_dma(SWD, i, 704, L_WD1 + (i - 4) * 8192)
        e('s_waitcnt vmcnt(0)')
        e.label('L_g_done')
        e.flush_hist()
        e.vm = []; e.lg = []
        self.stamp('hhpub')

    def phase_d(self):
        e = self.e; o = self.o
        WP, HF, ACC, RECV = 96, 56, 40, 56
        NH = 10
        LA = o['la_h']
        X1, GB = self.X1, self.GB
        A1, A2 = 32, 36
        self.tr64_addr(A1, L_WD1)
        self.tr64_addr(A2, L_WD2)
        e(f's_lshl_b32 {T0}, {s_x}, 2')
        e(f's_add_u32 {T0}, {T0}, {s_oct}')
        e(f's_lshl_b32 {T0}, {T0}, 2')
        e(f's_add_u32 {T0}, {T0}, {s_m}')
        e(f's_mul_i32 {s_act}, {T0}, 44032')
        e(f's_mul_i32 {T0}, {s_kh}, {22*1024}')
        e(f's_add_u32 {s_act}, {s_act}, {T0}')
        e(f's_add_u32 {s_act}, {s_act}, {WS_HH}')
        e(f's_cmp_eq_u32 {s_kh}, 0')
        e(f's_cselect_b32 {T5}, {s_act}, {OOB}')
        e('s_barrier')
        self.stamp('BG1')

        def wreg(ks):
            return WP + 16 * ((ks + 6) % 10)

        def wread(ks):
            if ks < 11:
                self.tr64(wreg(ks), (ks - 4) * 8192, A1)
            elif ks < 19:
                self.tr64(wreg(ks), (ks - 11) * 8192, A2)
            else:
                if ks == 19:
                    self.tr64_addr(A2, L_WD2 + 65536)
                self.tr64(wreg(ks), (ks - 19) * 8192, A2)

        def hreg(k):
            return HF + 4 * (k % NH)

        def hlines(k):
            return [f's_add_u32 {T7}, {T5 if k == 21 else s_act}, {(k//4)*4096}',
                    f'buffer_load_dwordx4 {v(hreg(k),4)}, v1, {srd(SWS)}, {T7} offen offset:{(k%4)*1024} sc1']
        issued = [0]

        def hload():
            k = issued[0]
            if k < 22:
                for l in hlines(k):
                    e(l, tag=f'h{k}')
                issued[0] += 1
        for ks in range(11, 22):
            self.w64_dma(SWD, ks, 704, L_WD2 + (ks - 11) * 8192)
            if ks % 2 == 1:
                wread(4 + (ks - 11) // 2)
        self.stamp('wdis')
        lab = e.newlabel('nopoll'); top = e.newlabel('poll')
        e(f's_cmp_lt_u32 {s_c}, 29')
        e(f's_cbranch_scc1 {lab}')
        e.label(top)
        e('s_sleep 4')
        e(f'buffer_load_dword v14, off, {srd(SWS)}, {s_act} sc1', count=False)
        e(f's_sub_u32 {s_budget}, {s_budget}, 1')
        e(f's_max_i32 {s_budget}, {s_budget}, 0')
        e('s_waitcnt vmcnt(0)')
        e(f's_cmp_eq_u32 {s_budget}, 0')
        e(f's_cbranch_scc1 {lab}')
        e('v_cmp_eq_u32 vcc, -1, v14')
        e(f's_cbranch_vccnz {top}')
        e('s_sleep 4')
        e.label(lab)
        e.vm = []
        self.sleep(o['dly_hh'])
        for k in range(4):
            hload()
        sched = {}
        for st in range(10, 22):
            sched[int(round(1.6 * (st - 10))) + 1] = st
        for ks in range(22):
            if ks % 2 == 0:
                e.wait_vm(f'h{ks+1}')
                if ks == 0:
                    self.stamp('hin')
                    e('s_waitcnt lgkmcnt(0)')
                    e('s_barrier')
                rl = []
                for k in range(ks, issued[0]):
                    rl += hlines(k)
                self.frag_check([hreg(ks), hreg(ks + 1)], 14, rl, 'h')
            W = wreg(ks)
            for j in (2, 3, 0, 1):
                if j == 2:
                    e.wait_lg(f'w{W+4*3}')
                e(f'v_mfma_f32_16x16x32_bf16 {v(ACC+4*j,4)}, {v(W+4*j,4)}, {v(hreg(ks),4)}, ' + ('0' if ks == 0 else v(ACC + 4 * j, 4)))
                if j in (2, 0) and issued[0] < ks + 1 + LA:
                    hload()
            if ks in sched:
                wread(sched[ks])
        self.stamp('Dmma')
        self.exchange(ACC, RECV)
        for j in range(0, 8, 2):
            e(f'v_pk_fma_f32 {v(X1+j,2)}, {v(ACC+j,2)}, {v(GB+j,2)}, {v(X1+j,2)}')
        for j in range(4):
            e(f'v_cvt_pk_bf16_f32 {v(X1+j)}, {v(X1+2*j)}, {v(X1+2*j+1)}')
        e('v_bfe_u32 v14, v0, 4, 1')
        e('v_lshl_add_u32 v4, v14, 5, v4')
        e('v_lshrrev_b32 v14, 5, v0')
        e('v_lshl_add_u32 v4, v14, 4, v4')
        e(f'v_permlane16_swap_b32 {v(X1)}, {v(X1+2)}')
        e(f'v_permlane16_swap_b32 {v(X1+1)}, {v(X1+3)}')
        e(f'buffer_store_dwordx4 {v(X1,4)}, v4, {srd(SOUT)}, 0 offen {o["out_flags"]}'.rstrip())

    def finish(self):
        e = self.e
        if self.o['prof']:
            e('s_waitcnt vmcnt(0)')
            self.stamp('end')
            e('s_memrealtime s[100:101]')
            e('s_waitcnt lgkmcnt(0)')
            e(f's_lshl_b32 {T0}, s2, 3')
            e(f's_add_u32 {T0}, {T0}, {s_w}')
            e(f's_lshl_b32 {T0}, {T0}, 7')
            e(f's_add_u32 {T0}, {T0}, {WS_PROF}')
            e('v_mov_b32 v1, 0')
            vals = [f's{S_STAMP+i}' for i in range(16)] + ['s3', 's100', s_budget]
            for i, r in enumerate(vals):
                e(f'v_writelane_b32 v1, {r}, {i}')
            e('v_lshlrev_b32 v2, 2, v0')
            e('s_mov_b64 exec, 0xffffffff')
            e(f'buffer_store_dword v1, v2, {srd(SWS)}, {T0} offen')
            if self.o['prof'] >= 2:
                e(f's_cmp_lg_u32 s2, {self.o["prof"]-2}')
                e('s_cbranch_scc1 L_end')
                e(f's_cmp_lg_u32 {s_w}, 0')
                e('s_cbranch_scc1 L_end')
                e(f's_load_dwordx2 {s(SC,2)}, s[0:1], 96')
                e(f's_sub_u32 s100, s100, s3')
                e(f'v_subrev_u32 v1, s{S_STAMP}, v1')
                e(f'v_writelane_b32 v1, s100, 15')
                e(f's_sub_u32 s100, {self.o["budget"]}, {s_budget}')
                e(f'v_writelane_b32 v1, s100, 0')
                e(f's_mov_b32 s{SC+2}, 64')
                e('s_waitcnt lgkmcnt(0)')
                e(f'buffer_store_dword v1, v2, {srd(SC)}, 0 offen')
        e.label('L_end')
        e('s_endpgm')

    def build(self):
        e = self.e
        self.prologue()
        if self.o['prof']:
            e('s_waitcnt lgkmcnt(0)')
            e('s_mov_b32 s3, s98')
            for i in range(16):
                e(f's_mov_b32 s{S_STAMP+i}, 0')
        self.front()
        self.attention()
        self.att_epilogue()
        self.phase_o()
        self.phase_g()
        self.phase_d()
        self.finish()
        self.emit_stubs()
        e.label('L_code_end')
        head = open('adaLN_cond__grouped_kv_mqa__glu_gated_reglu__prompt.s.ref').read().split('; Override launch')[0]
        txt = head + '; @launch grid=(256,1,1) block=(512,1,1) lds=163840\n'
        txt += f'''.amdgcn_target "amdgcn-amd-amdhsa--gfx950"
.text
.globl {NAME}
.p2align 8
.type {NAME},@function
{NAME}:
'''
        txt += e.text()
        txt += f'''    s_endpgm
.section .rodata,"a"
.p2align 6
.amdhsa_kernel {NAME}
  .amdhsa_next_free_vgpr 256
  .amdhsa_next_free_sgpr 102
  .amdhsa_accum_offset 256
  .amdhsa_group_segment_fixed_size 0
  .amdhsa_kernarg_size 112
  .amdhsa_user_sgpr_count 2
  .amdhsa_user_sgpr_kernarg_segment_ptr 1
  .amdhsa_system_sgpr_workgroup_id_x 1
.end_amdhsa_kernel
'''
        return txt


if __name__ == '__main__':
    kw = {}
    out = sys.argv[1]
    for a in sys.argv[2:]:
        k, val = a.split('=')
        try:
            val = int(val)
        except ValueError:
            pass
        kw[k] = val
    g = Gen(**kw)
    txt = g.build()
    open(out, 'w').write(txt)
    print('nops inserted', g.e.nops, 'lines', txt.count('\n'), getattr(g, 'stamp_names', ''))
    for n, l in g.e.nop_log:
        if n >= 4:
            print('  nop', n, l)
```

```python
import sys, struct, math
from emit import Emitter, v, s

NAME = 'adaLN_cond__grouped_kv_mqa__glu_gated_reglu__prompt_kernel'


def fbits(x):
    return '0x%08x' % struct.unpack('<I', struct.pack('<f', x))[0]


DEFAULTS = dict(stamps='kernarg,B1,B2,B3,Bw2,att0,att1,opub,BO1,ypub,BG0,hhpub,BG1,Dmma,end', kvsc1=0, enc=-1, tb1=12, la_y=10, la_h=8, prof=0, rt=0, noside=0, stop=99, D=6, nchk=10, force_slow=0,
                dly_moda=0, dly_kv=0, dly_o=0, dly_y=0, dly_hh=0, codepf=1, out_flags='', budget=60000)

WS_EPOCH = 0
WS_MODA = 0x1000
WS_MODB = 0x8000
WS_STATS = 0x10000
WS_KV = 0x40000
WS_PROF = 0x80000
WS_O = 0x200000
WS_Y = 0x400000
WS_HH = 0x600000
WS_DBG = 0x1000000
WS_SIZE = 0x10000000
OOB = 0x40000000

L_WQ = 0
L_H = 131072
L_WKV = L_H
L_MW = L_H + 16384
L_SB = L_H + 20480
L_STGA = 7 * 16384
L_QX = 0
L_WGU = 0
L_WOB = 98304
L_WOA = 131072
L_MBW = 98304
L_SB2 = 98304 + 8192
L_EX = 131072
L_STGB = 149504
L_STG16 = 157696
L_AX = 159744
L_ST = 161280
L_WD1 = 98304
L_WD2 = 0

SX, SWQ, SWKV, SWO, SWG, SWU, SWD, SC, SWM, SOUT, SWS = (4, 8, 12, 16, 20, 24, 28, 32, 36, 40, 44)
s_x, s_c, s_w, s_tb, s_cb, s_oct, s_nb, s_m, s_kh = ('s48', 's49', 's50', 's51', 's52', 's53', 's54', 's55', 's56')
s_nonce = 's57'
S_NB = 58
s_budget = 's62'
s_one = 's63'
S_RET = 64
S_VM = 66
T0, T1, T2, T3, T4, T5, T6, T7 = ('s68', 's69', 's70', 's71', 's72', 's73', 's74', 's75')
s_kvb = 's76'
s_dl = 's77'
s_ds = 's78'
s_act = 's79'
S_MU = 80
S_STAMP = 84


def srd(n):
    return s(n, 4)


class Gen:
    def __init__(self, **kw):
        self.o = dict(DEFAULTS); self.o.update(kw)
        self.e = Emitter()
        self.stubs = []
        self.stamp_names = self.o['stamps'].split(',')
        assert len(self.stamp_names) <= 15

    def stamp(self, name):
        if not self.o['prof']:
            return
        names = self.stamp_names
        if name not in names:
            return
        e = self.e
        i = names.index(name)
        e('s_memrealtime s[100:101]' if self.o['rt'] else 's_memtime s[100:101]')
        e('s_waitcnt lgkmcnt(0)')
        e(f's_mov_b32 s{S_STAMP+i}, s100')

    def dma(self, rs, voff, soff_base, soff_imm, lds_base, lds_imm, tag=None, count=True, flags=''):
        e = self.e
        if lds_base is None:
            e(f's_mov_b32 m0, {lds_imm}')
        else:
            e(f's_add_u32 m0, {lds_base}, {lds_imm}')
        if soff_base is None:
            e(f's_mov_b32 {T7}, {soff_imm}'); so = T7
        elif soff_imm:
            e(f's_add_u32 {T7}, {soff_base}, {soff_imm}'); so = T7
        else:
            so = soff_base
        e(f'buffer_load_dwordx4 {v(voff)}, {srd(rs)}, {so} offen lds {flags}'.rstrip(), tag=tag, count=count)

    def sleep(self, n):
        if n:
            self.e(f's_sleep {n}')

    def silu(self, r, t):
        e = self.e
        e(f'v_mul_f32 {v(t)}, {fbits(-1.4426950408889634)}, {v(r)}')
        e(f'v_exp_f32 {v(t)}, {v(t)}')
        e(f'v_add_f32 {v(t)}, 1.0, {v(t)}')
        e(f'v_rcp_f32 {v(t)}, {v(t)}')
        e(f'v_mul_f32 {v(r)}, {v(r)}, {v(t)}')

    def unpack(self, src, lo, hi):
        e = self.e
        if hi == src:
            e(f'v_lshlrev_b32 {v(lo)}, 16, {v(src)}')
            e(f'v_and_b32 {v(hi)}, 0xffff0000, {v(src)}')
        else:
            e(f'v_and_b32 {v(hi)}, 0xffff0000, {v(src)}')
            e(f'v_lshlrev_b32 {v(lo)}, 16, {v(src)}')

    def red4(self, a, b, c, d):
        e = self.e
        e(f'v_permlane32_swap_b32 {v(a)}, {v(b)}')
        e(f'v_permlane32_swap_b32 {v(c)}, {v(d)}')
        e(f'v_add_f32 {v(a)}, {v(a)}, {v(b)}')
        e(f'v_add_f32 {v(c)}, {v(c)}, {v(d)}')
        e(f'v_permlane16_swap_b32 {v(a)}, {v(c)}')
        e(f'v_add_f32 {v(a)}, {v(a)}, {v(c)}')
        for r in (8, 4, 2, 1):
            e(f'v_add_f32_dpp {v(a)}, {v(a)}, {v(a)} row_ror:{r} row_mask:0xf bank_mask:0xf')

    def tag_and_store(self, val, tmp, addr, soff):
        e = self.e
        e(f'v_and_b32 {v(tmp)}, 3, v0')
        e(f'v_lshlrev_b32 {v(tmp)}, 3, {v(tmp)}')
        e(f'v_lshrrev_b32 {v(tmp)}, {v(tmp)}, {s_nonce}')
        e(f'v_and_b32 {v(tmp)}, 0xff, {v(tmp)}')
        e(f'v_and_b32 {v(val)}, 0xffffff00, {v(val)}')
        e(f'v_or_b32 {v(val)}, {v(val)}, {v(tmp)}')
        e(f'v_lshlrev_b32 {v(addr)}, 2, v0')
        e('s_mov_b64 exec, 0xffff')
        e(f'buffer_store_dword {v(val)}, {v(addr)}, {srd(SWS)}, {soff} offen sc1', count=False)
        e('s_mov_b64 exec, -1')

    def gather_check(self, base, npart, tmp, loads, name):
        e = self.e
        chk = e.newlabel(name + '_chk'); ok = e.newlabel(name + '_ok'); stub = e.newlabel(name + '_stub')
        e.label(chk)
        for p in range(npart):
            for j in range(4):
                e(f'v_xor_b32 {v(base+4*p+j)}, s{S_NB+j}, {v(base+4*p+j)}')
        regs = list(range(base, base + 4 * npart))
        e(f'v_or3_b32 {v(tmp)}, {v(regs[0])}, {v(regs[1])}, {v(regs[2])}')
        i = 3
        while i < len(regs):
            if i + 1 < len(regs):
                e(f'v_or3_b32 {v(tmp)}, {v(tmp)}, {v(regs[i])}, {v(regs[i+1])}'); i += 2
            else:
                e(f'v_or_b32 {v(tmp)}, {v(tmp)}, {v(regs[i])}'); i += 1
        e(f'v_and_b32 {v(tmp)}, 0xff, {v(tmp)}')
        e(f'v_cmp_ne_u32 vcc, 0, {v(tmp)}')
        e(f's_cbranch_vccnz {stub}')
        e.label(ok)
        self.stubs.append(('reload', stub, chk, ok, loads))
        for j in range(4):
            if npart == 4:
                e(f'v_add_f32 {v(base+j)}, {v(base+j)}, {v(base+4+j)}')
                e(f'v_add_f32 {v(base+8+j)}, {v(base+8+j)}, {v(base+12+j)}')
            else:
                e(f'v_add_f32 {v(base+j)}, {v(base+j)}, {v(base+4+j)}')
        if npart == 4:
            for j in range(4):
                e(f'v_add_f32 {v(base+j)}, {v(base+j)}, {v(base+8+j)}')

    def round_mod(self, base, p0):
        e = self.e
        for rep in range(2):
            e(f'v_cvt_pk_bf16_f32 {v(p0)}, {v(base)}, {v(base+1)}')
            e(f'v_cvt_pk_bf16_f32 {v(p0+1)}, {v(base+2)}, {v(base+3)}')
            self.unpack(p0, base, base + 1)
            self.unpack(p0 + 1, base + 2, base + 3)
            if rep == 0:
                for j in range(4):
                    e(f'v_add_f32 {v(base+j)}, {s_one}, {v(base+j)}')

    def frag_check(self, regs, tmp, reissue, name):
        e = self.e
        chk = e.newlabel(name + '_chk'); ok = e.newlabel(name + '_ok'); stub = e.newlabel(name + '_stub')
        e.label(chk)
        if len(regs) == 1:
            e(f'v_cmp_eq_u32 vcc, -1, {v(regs[0])}')
        else:
            if len(regs) == 2:
                e(f'v_max_u32 {v(tmp)}, {v(regs[0])}, {v(regs[1])}')
            else:
                e(f'v_max3_u32 {v(tmp)}, {v(regs[0])}, {v(regs[1])}, {v(regs[2])}')
                for r in regs[3:]:
                    e(f'v_max_u32 {v(tmp)}, {v(tmp)}, {v(r)}')
            e(f'v_cmp_eq_u32 vcc, -1, {v(tmp)}')
        e(f's_cbranch_vccnz {stub}')
        e.label(ok)
        if isinstance(reissue, str):
            self.stubs.append(('call', stub, chk, ok, reissue))
        else:
            self.stubs.append(('reload', stub, chk, ok, reissue))

    def emit_stubs(self):
        e = self.e
        for st in self.stubs:
            kind = st[0]
            e.flush_hist()
            if kind in ('reload', 'call'):
                _, stub, chk, ok, arg = st
                e.label(stub)
                e(f's_cmp_eq_u32 {s_budget}, 0')
                e(f's_cbranch_scc1 {ok}')
                e(f's_sub_u32 {s_budget}, {s_budget}, 1')
                if kind == 'reload':
                    e('s_waitcnt vmcnt(0)')
                    e('s_sleep 2')
                    for l in arg:
                        e(l, count=False)
                    e('s_waitcnt vmcnt(0)')
                else:
                    e('s_waitcnt vmcnt(0)')
                    e('s_sleep 2')
                    e(f's_call_b64 {s(S_RET,2)}, {arg}')
                e(f's_branch {chk}')
            elif kind == 'seq':
                _, entries = st
                for lab, lines in entries:
                    e.label(lab)
                    for l in lines:
                        e(l, count=False)
                e('s_waitcnt vmcnt(0)')
                e(f's_setpc_b64 {s(S_RET,2)}')
            elif kind == 'code':
                st[1]()

    def dump(self, regs, slot, stride_regs):
        e = self.e
        e('s_nop 7'); e('s_nop 7')
        e(f's_lshl_b32 {T6}, s2, 3')
        e(f's_add_u32 {T6}, {T6}, {s_w}')
        e(f's_mul_i32 {T6}, {T6}, {stride_regs*256}')
        e(f's_add_u32 {T6}, {T6}, {WS_DBG + slot*0x1000000}')
        e('v_lshlrev_b32 v0, 2, v0')
        for i, r in enumerate(regs):
            e(f'buffer_store_dword {v(r)}, v0, {srd(SWS)}, {T6} offen', count=False)
            e(f's_add_u32 {T6}, {T6}, 256')
        e('s_waitcnt vmcnt(0)')
        e('v_lshrrev_b32 v0, 2, v0')

    def prologue(self):
        e = self.e
        e('s_cmp_ge_u32 s2, 256')
        e('s_cbranch_scc1 L_end')
        e(f's_lshr_b32 {s_c}, s2, 3')
        e(f's_and_b32 {T0}, {s_c}, 1')
        e(f's_lshl_b32 {T0}, {T0}, 3')
        e(f's_add_u32 {T0}, {T0}, 16')
        for r, off in ((SWS, 104), (SC, 72), (SWM, 80), (SX, 0), (SWQ, 8), (SWO, 32), (SWG, 48), (SWU, 56), (SWD, 64), (SOUT, 88)):
            e(f's_load_dwordx2 {s(r,2)}, s[0:1], {off}')
        e(f's_load_dwordx2 {s(SWKV,2)}, s[0:1], {T0}')
        if self.o['prof']:
            e('s_memrealtime s[98:99]')
        e('v_lshrrev_b32 v1, 6, v0')
        e('v_and_b32 v0, 63, v0')
        e(f'v_readfirstlane_b32 {s_w}, v1')
        e(f's_and_b32 {s_x}, s2, 7')
        e(f's_lshr_b32 {s_tb}, {s_c}, 2')
        e(f's_and_b32 {s_cb}, {s_c}, 3')
        e(f's_lshr_b32 {s_oct}, {s_c}, 3')
        e(f's_and_b32 {s_nb}, {s_c}, 7')
        e(f's_and_b32 {s_m}, {s_w}, 3')
        e(f's_lshr_b32 {s_kh}, {s_w}, 2')
        if self.o['codepf']:
            lab = e.newlabel('nopf')
            e(f's_cmp_lg_u32 {s_w}, 7')
            e(f's_cbranch_scc1 {lab}')
            e(f's_cmp_ge_u32 {s_c}, (L_code_end-L_pc0)/1024')
            e(f's_cbranch_scc1 {lab}')
            e('s_getpc_b64 s[74:75]')
            e.label('L_pc0')
            e(f's_lshl_b32 {T0}, {s_c}, 10')
            e(f'v_lshl_add_u32 v2, v0, 4, {T0}')
            e('global_load_dword v255, v2, s[74:75]', count=False)
            e.label(lab)
        for r, n in ((SX, 2097152), (SWQ, 524288), (SWKV, 16384), (SWO, 524288), (SWG, 1409024), (SWU, 1409024),
                     (SWD, 1409024), (SC, 1024), (SWM, 3145728), (SOUT, 2097152), (SWS, WS_SIZE)):
            e(f's_mov_b32 s{r+2}, {n}')
            e(f's_mov_b32 s{r+3}, 0x20000')
        e(f's_mov_b32 {s_budget}, {self.o["budget"]}')
        e(f's_mov_b32 s{S_VM}, 0xffff')
        e(f's_mov_b32 s{S_VM+1}, 0xffff')

    def front(self):
        e = self.e; o = self.o
        vL16, vWQ, vW32, vT, vT2, vEP, vC, vHW = 1, 2, 4, 5, 6, 7, 8, 9
        XR, N, SA, CA, G = 16, 32, 64, 72, 80
        e(f'v_lshlrev_b32 {v(vL16)}, 4, v0')
        e(f'v_lshrrev_b32 {v(vT)}, 4, v0')
        e(f'v_lshlrev_b32 {v(vT2)}, 2, {v(vT)}')
        e(f'v_xor_b32 {v(vT2)}, {v(vT2)}, v0')
        e(f'v_and_b32 {v(vT2)}, 15, {v(vT2)}')
        e(f'v_lshlrev_b32 {v(vT2)}, 4, {v(vT2)}')
        e(f'v_lshl_add_u32 {v(vWQ)}, {v(vT)}, 10, {v(vT2)}')
        e(f's_lshl_b32 {T0}, {s_cb}, 8')
        e(f'v_add_u32 {v(vWQ)}, {T0}, {v(vWQ)}')
        e(f'v_lshrrev_b32 {v(vT)}, 1, v0')
        e(f'v_mul_u32_u24 {v(vT)}, 6144, {v(vT)}')
        e(f'v_and_b32 {v(vT2)}, 1, v0')
        e(f'v_lshl_add_u32 {v(vW32)}, {v(vT2)}, 4, {v(vT)}')
        e(f's_lshl_b32 {T0}, {s_x}, 8')
        e(f's_lshl_b32 {T1}, {s_tb}, 5')
        e(f's_add_u32 {T0}, {T0}, {T1}')
        e(f's_lshl_b32 {T1}, {s_w}, 2')
        e(f's_add_u32 {T0}, {T0}, {T1}')
        for i in range(4):
            e(f's_add_u32 {T1}, {s_cb}, {i}')
            e(f's_and_b32 {T1}, {T1}, 3')
            e(f's_add_u32 {T1}, {T1}, {T0}')
            e(f's_lshl_b32 s{S_MU+i}, {T1}, 10')
        e(f's_lshl_b32 {T0}, {s_x}, 3')
        e(f's_add_u32 {T3}, {T0}, {s_tb}')
        e(f's_lshl_b32 {T0}, {T3}, 11')
        e(f's_and_b32 {T1}, {s_cb}, 1')
        e(f's_lshl_b32 {T1}, {T1}, 10')
        e(f's_add_u32 {T0}, {T0}, {T1}')
        e(f's_lshr_b32 {T1}, {s_cb}, 1')
        e(f's_lshl_b32 {T1}, {T1}, 9')
        e(f's_add_u32 {T0}, {T0}, {T1}')
        e(f's_add_u32 {s_act}, {T0}, {WS_KV}')
        e(f's_lshl_b32 {T0}, {s_w}, 10')
        e(f'v_add_u32 v3, {T0}, {v(vL16)}')
        e(f's_lshl_b32 {s_dl}, {s_m}, 12')
        e(f's_lshl_b32 {s_ds}, {s_m}, 14')

        def xload(i):
            e(f'buffer_load_dwordx4 {v(XR+4*i,4)}, {v(vL16)}, {srd(SX)}, s{S_MU+i} offen', tag=f'x{i}')

        def wq_eighth(i, count=True):
            e(f's_add_u32 {T6}, {s_tb}, {i}')
            e(f's_and_b32 {T6}, {T6}, 7')
            e(f's_lshl_b32 {T6}, {T6}, 16')
            e(f's_add_u32 {T6}, {T6}, {s_ds}')
            for j in range(4):
                self.dma(SWQ, vWQ, T6, j * 4096, s_dl, L_WQ + i * 16384 + j * 1024, tag=f'wq{i}', count=count)

        def nonce():
            e(f'v_readfirstlane_b32 {s_nonce}, {v(vEP)}')
            e(f's_mul_i32 {s_nonce}, {s_nonce}, 0x9e3779b1')
            e(f's_add_u32 {s_nonce}, {s_nonce}, 0x7f4a7c15')
            for j in range(4):
                e(f's_bfe_u32 s{S_NB+j}, {s_nonce}, {hex((8<<16)|(8*j))}')

        e('s_waitcnt lgkmcnt(0)')
        self.stamp('kernarg')
        e(f'buffer_load_dword {v(vEP)}, off, {srd(SWS)}, 0 sc1', tag='ep')
        e(f's_cmp_eq_u32 {s_w}, 0')
        e('s_cbranch_scc1 L_w0')
        xload(0)
        e(f's_cmp_lt_u32 {s_w}, 4')
        e('s_cbranch_scc1 L_w123')
        wq_eighth(0, count=False)
        e.label('L_w123')
        for i in (1, 2, 3):
            xload(i)
        e(f's_cmp_lg_u32 {s_w}, 4')
        e('s_cbranch_scc1 L_not4a')
        e(f's_lshl_b32 {T5}, {s_tb}, 11')
        for j in range(16):
            self.dma(SWKV, vL16, T5, 0, None, L_WKV + j * 1024, count=False)
            e(f's_add_u32 {T5}, {T5}, 1024')
            e(f's_and_b32 {T5}, {T5}, 16383')
        e.label('L_not4a')
        e(f's_cmp_lg_u32 {s_w}, 5')
        e('s_cbranch_scc1 L_not5a')
        e(f's_and_b32 {T5}, {T3}, 1')
        e(f's_lshl_b32 {T5}, {T5}, 9')
        e(f'v_lshlrev_b32 {v(vT)}, 3, v0')
        e(f'buffer_load_dwordx2 v[14:15], {v(vT)}, {srd(SC)}, {T5} offen', count=False)
        e.label('L_not5a')
        e('s_branch L_b1')
        e.label('L_w0')
        e.flush_hist()
        e.vm = ['ep']
        e(f's_and_b32 {T4}, {T3}, 3')
        e(f's_lshl_b32 {T5}, {T4}, 8')
        e(f'v_lshlrev_b32 {v(vT)}, 2, v0')
        e(f'buffer_load_dword {v(vC)}, {v(vT)}, {srd(SC)}, {T5} offen', tag='c')
        e(f's_lshr_b32 {T2}, {T3}, 2')
        e(f's_lshl_b32 {T2}, {T2}, 2')
        e(f's_add_u32 {T2}, {T2}, {s_cb}')
        e(f's_mul_i32 {T5}, {T4}, {128*6144}')
        e(f's_lshl_b32 {T1}, {T2}, 5')
        e(f's_add_u32 {T5}, {T5}, {T1}')
        for j in range(4):
            self.dma(SWM, vW32, T5, j * 32 * 6144, None, L_MW + j * 1024, tag='mw')
        e('v_mov_b32 v10, -1')
        e('v_mov_b32 v11, -1')
        e(f'v_lshlrev_b32 {v(vT2)}, 3, v0')
        e(f'buffer_store_dwordx2 v[10:11], {v(vT2)}, {srd(SWS)}, {s_act} offen sc1', tag='clr')
        xload(0)
        e(f's_lshl_b32 {T4}, {T4}, 12')
        e(f's_lshl_b32 {T2}, {T2}, 6')
        e(f's_add_u32 {T4}, {T4}, {T2}')
        e(f's_add_u32 {T4}, {T4}, {WS_MODA}')
        e(f'v_lshrrev_b32 v12, 4, v0')
        e(f'v_and_b32 v13, 15, v0')
        e(f'v_lshlrev_b32 v13, 3, v13')
        e(f'v_lshl_add_u32 v13, v12, 8, v13')
        e(f'v_add_u32 v13, {L_MW}, v13')
        e(f'v_lshlrev_b32 v12, 4, v12')
        e(f'v_add_u32 v12, {L_SB}, v12')
        e(f'v_add_u32 {v(vT)}, {L_SB}, {v(vT)}')
        e.wait_vm('c')
        self.stamp('w0c')
        nonce()
        self.unpack(vC, 10, 11)
        self.silu(10, 14); self.silu(11, 15)
        e('v_cvt_pk_bf16_f32 v10, v10, v11')
        e(f'ds_write_b32 {v(vT)}, v10')
        for ks in range(4):
            e(f'ds_read_b128 {v(96+4*ks,4)}, v12 offset:{ks*64}')
        e.wait_vm('clr')
        self.stamp('w0w')
        for ks in range(4):
            e(f'ds_read_b64_tr_b16 {v(112+4*ks,2)}, v13 offset:{ks*1024}')
            e(f'ds_read_b64_tr_b16 {v(114+4*ks,2)}, v13 offset:{ks*1024+128}', tag=f'mw{ks}')
        for ks in range(4):
            e.wait_lg(f'mw{ks}')
            e(f'v_mfma_f32_16x16x32_bf16 v[128:131], {v(96+4*ks,4)}, {v(112+4*ks,4)}, ' + ('0' if ks == 0 else 'v[128:131]'))
        self.tag_and_store(128, 10, 11, T4)
        self.stamp('w0st')
        for i in (1, 2, 3):
            xload(i)
        e('s_waitcnt vmcnt(3)')
        self.sleep(o['dly_moda'])
        e.label('L_b1')
        e.flush_hist()
        e.vm = ['x0', 'x1', 'x2', 'x3']
        e('s_barrier')
        self.stamp('B1')
        gl = [f'buffer_load_dwordx4 {v(G+4*p,4)}, v3, {srd(SWS)}, {T4} offen sc1' for p in range(4)]
        gloads = []
        for p in range(4):
            gloads += [f's_mov_b32 {T4}, {WS_MODA + p*4096}', gl[p]]
        e(f's_cmp_ge_u32 {s_w}, 4')
        e('s_cbranch_scc1 L_nog')
        for l in gloads:
            e(l, count=False)
        e('s_waitcnt vmcnt(4)')
        e('s_branch L_g1')
        e.label('L_nog')
        e('s_waitcnt vmcnt(0)')
        e.label('L_g1')
        e.vm = []
        self.stamp('xin')
        nonce()
        for i in range(4):
            for j in range(4):
                self.unpack(XR + 4 * i + j, N + 8 * i + 2 * j, N + 8 * i + 2 * j + 1)
        for i in range(4):
            e(f'v_add_f32 {v(XR+i)}, {v(N+8*i)}, {v(N+8*i+1)}')
        for j in range(2, 8):
            for i in range(4):
                e(f'v_add_f32 {v(XR+i)}, {v(XR+i)}, {v(N+8*i+j)}')
        e(f's_cmp_lt_u32 {s_w}, 4')
        e('s_cbranch_scc1 L_nl1')
        wq_eighth(1, count=False)
        wq_eighth(2, count=False)
        e.label('L_nl1')
        self.red4(XR, XR + 1, XR + 2, XR + 3)
        e(f'v_mul_f32 {v(XR)}, {fbits(1.0/512)}, {v(XR)}')
        for i, ln in enumerate((0, 32, 16, 48)):
            e(f'v_readlane_b32 s{S_MU+i}, {v(XR)}, {ln}')
        for i in range(4):
            for j in range(8):
                e(f'v_subrev_f32 {v(N+8*i+j)}, s{S_MU+i}, {v(N+8*i+j)}')
        for i in range(4):
            e(f'v_mul_f32 {v(XR+i)}, {v(N+8*i)}, {v(N+8*i)}')
        for j in range(1, 8):
            for i in range(4):
                e(f'v_fmac_f32 {v(XR+i)}, {v(N+8*i+j)}, {v(N+8*i+j)}')
        self.red4(XR, XR + 1, XR + 2, XR + 3)
        e(f'v_mov_b32 {v(XR+1)}, {fbits(1e-5)}')
        e(f'v_fmac_f32 {v(XR+1)}, {fbits(1.0/512)}, {v(XR)}')
        e(f'v_rsq_f32 {v(XR)}, {v(XR+1)}')
        for i, ln in enumerate((0, 32, 16, 48)):
            e(f'v_readlane_b32 s{S_MU+i}, {v(XR)}, {ln}')
        for i in range(4):
            for j in range(8):
                e(f'v_mul_f32 {v(N+8*i+j)}, s{S_MU+i}, {v(N+8*i+j)}')
        e(f's_lshl_b32 {T0}, {s_tb}, 3')
        e(f'v_subrev_u32 {v(vHW)}, {T0}, v0')
        e(f'v_and_b32 {v(vHW)}, 63, {v(vHW)}')
        e(f'v_lshlrev_b32 {v(vHW)}, 9, {v(vHW)}')
        e(f'v_add_u32 {v(vHW)}, {L_H}, {v(vHW)}')
        e(f'v_and_b32 {v(vT)}, 7, v0')
        e(f's_lshl_b32 {T0}, {s_w}, 2')
        for i in range(4):
            e(f's_add_u32 {T1}, {s_cb}, {i}')
            e(f's_and_b32 {T1}, {T1}, 3')
            e(f's_add_u32 {T1}, {T1}, {T0}')
            e(f'v_xor_b32 {v(vT2)}, {T1}, {v(vT)}')
            e(f'v_lshl_add_u32 {v(XR+i)}, {v(vT2)}, 4, {v(vHW)}')
        e(f'v_lshlrev_b32 {v(vT)}, 5, v0')
        e(f'v_add_u32 {v(vT)}, {L_STGA}, {v(vT)}')
        self.stamp('ln')
        e(f's_cmp_ge_u32 {s_w}, 4')
        e('s_cbranch_scc1 L_ld2')
        e(f's_cmp_ge_u32 {s_w}, 2')
        e(f's_cselect_b32 {s_one}, 1.0, 0')
        e('s_waitcnt vmcnt(0)')
        self.stamp('gin')
        self.gather_check(G, 4, vT2, gloads, 'ga')
        self.stamp('gok')
        self.round_mod(G, G + 4)
        e(f'v_add_u32 v3, {L_STGA}, v3')
        e(f'ds_write_b128 v3, {v(G,4)}')
        e('s_branch L_b2')
        e.label('L_ld2')
        e.flush_hist()
        wq_eighth(3, count=False)
        e(f's_cmp_lg_u32 {s_w}, 4')
        e('s_cbranch_scc1 L_not4b')
        e(f'v_lshrrev_b32 v12, 4, v0')
        e(f'v_and_b32 v13, 15, v0')
        e(f'v_lshlrev_b32 v13, 3, v13')
        e(f'v_lshl_add_u32 v13, v12, 8, v13')
        e(f'v_add_u32 v13, {L_WKV}, v13')
        for ks in range(16):
            e(f'ds_read_b64_tr_b16 {v(176+4*ks,2)}, v13 offset:{ks*1024}')
            e(f'ds_read_b64_tr_b16 {v(178+4*ks,2)}, v13 offset:{ks*1024+128}')
        e('s_branch L_b2')
        e.label('L_not4b')
        e(f's_cmp_lg_u32 {s_w}, 5')
        e('s_cbranch_scc1 L_b2')
        self.unpack(14, 10, 11); self.unpack(15, 12, 13)
        for r in (10, 11, 12, 13):
            self.silu(r, 14)
        e('v_cvt_pk_bf16_f32 v14, v10, v11')
        e('v_cvt_pk_bf16_f32 v15, v12, v13')
        e.label('L_b2')
        e.flush_hist()
        e('s_waitcnt lgkmcnt(0)')
        e('s_barrier')
        self.stamp('B2')
        e(f'ds_read_b128 {v(SA,4)}, {v(vT)}')
        e(f'ds_read_b128 {v(CA,4)}, {v(vT)} offset:2048', tag='m0')
        e(f'ds_read_b128 {v(SA+4,4)}, {v(vT)} offset:16')
        e(f'ds_read_b128 {v(CA+4,4)}, {v(vT)} offset:2064', tag='m1')
        e.wait_lg('m1')
        for i in range(4):
            for j in range(0, 8, 2):
                e(f'v_pk_fma_f32 {v(N+8*i+j,2)}, {v(N+8*i+j,2)}, {v(CA+j,2)}, {v(SA+j,2)}')
            for j in range(4):
                e(f'v_cvt_pk_bf16_f32 {v(N+8*i+j)}, {v(N+8*i+2*j)}, {v(N+8*i+2*j+1)}')
            e(f'ds_write_b128 {v(XR+i)}, {v(N+8*i,4)}')
        e('s_waitcnt vmcnt(0) lgkmcnt(0)')
        e('s_barrier')
        self.stamp('B3')
        e(f's_cmp_lt_u32 {s_w}, 4')
        e('s_cbranch_scc1 L_qw')
        e(f's_cmp_lg_u32 {s_w}, 4')
        e('s_cbranch_scc1 L_not4c')
        e('s_setprio 3')
        e(f's_lshr_b32 {T0}, {s_cb}, 1')
        e(f's_lshl_b32 {T0}, {T0}, 4')
        e(f'v_and_b32 v10, 15, v0')
        e(f'v_add_u32 v10, {T0}, v10')
        e(f'v_lshrrev_b32 v12, 4, v0')
        e(f'v_xor_b32 v10, v10, v12')
        e(f'v_lshlrev_b32 v10, 4, v10')
        e(f'v_lshl_add_u32 v10, v12, 9, v10')
        e(f'v_add_u32 v10, {L_H}, v10')
        e(f'v_xor_b32 v11, 64, v10')
        for ks in range(16):
            e(f'ds_read_b128 {v(104+4*ks,4)}, v{10+ks%2} offset:{ks*2048}', tag=f'h{ks}')
        e(f'v_and_b32 v13, 15, v0')
        e(f'v_lshlrev_b32 v13, 4, v13')
        e(f'v_and_b32 v10, 1, v12')
        e(f'v_lshrrev_b32 v11, 1, v12')
        e(f's_bitcmp1_b32 {s_cb}, 0')
        e('s_cbranch_scc1 L_isv')
        lgsave = list(e.lg)
        for isv in (0, 1):
            if isv:
                e.label('L_isv'); e.flush_hist(); e.lg = list(lgsave)
            a, b = (11, 10) if isv else (10, 11)
            e(f'v_lshl_add_u32 v13, v{a}, 8, v13')
            e(f'v_lshl_add_u32 v13, v{b}, 3, v13')
            for ks in range(16):
                e.wait_lg(f'h{ks}')
                acc = 240 + 4 * (ks % 2)
                W, H = v(176 + 4 * ks, 4), v(104 + 4 * ks, 4)
                A, B = (H, W) if isv else (W, H)
                e(f'v_mfma_f32_16x16x32_bf16 {v(acc,4)}, {A}, {B}, ' + ('0' if ks < 2 else v(acc, 4)))
            e(f'v_pk_add_f32 v[240:241], v[240:241], v[244:245]')
            e(f'v_pk_add_f32 v[242:243], v[242:243], v[246:247]')
            if not isv:
                for j in range(4):
                    e(f'v_mul_f32 {v(240+j)}, {fbits(0.25*1.4426950408889634)}, {v(240+j)}')
                e('s_branch L_kvst')
        e.label('L_kvst')
        e('v_cvt_pk_bf16_f32 v240, v240, v241')
        e('v_cvt_pk_bf16_f32 v241, v242, v243')
        e(f'buffer_store_dwordx2 v[240:241], v13, {srd(SWS)}, {s_act} offen sc1', count=False)
        e('s_setprio 0')
        self.stamp('kvst')
        e.label('L_not4c')
        e.flush_hist()
        for i in (4, 5, 6, 7):
            wq_eighth(i, count=False)
        self.att_setup()
        e('s_waitcnt vmcnt(0)')
        self.sleep(o['dly_kv'])
        e('s_barrier')
        self.stamp('Bw2')
        e.vm = []
        e('s_sleep 3')
        self.kv_load(0); self.kv_load(1)
        e(f's_lshl_b32 {T0}, {s_m}, 11')
        e(f'v_lshl_add_u32 v40, v0, 4, {T0}')
        e('s_barrier')
        e(f'ds_read_b128 v[16:19], v40 offset:{L_QX+1024}')
        e(f'ds_read_b128 v[20:23], v40 offset:{L_QX}')
        for t in range(2, o['D']):
            self.kv_load(t)
        vmsave = list(e.vm)
        e('s_waitcnt lgkmcnt(0)')
        e('s_branch L_att')
        e.label('L_qw')
        e.flush_hist(); e.vm = []; e.lg = []
        vA, vA2, vH = 240, 241, 242
        e('v_bfe_u32 v10, v0, 2, 2')
        e('v_lshrrev_b32 v11, 5, v0')
        e('v_lshl_add_u32 v11, v11, 3, v10')
        e(f'v_lshlrev_b32 {v(vA)}, 8, v11')
        e(f'v_xor_b32 v10, {s_m}, v10')
        e(f'v_lshl_add_u32 {v(vA)}, v10, 6, {v(vA)}')
        e('v_bfe_u32 v10, v0, 4, 1')
        e(f'v_lshl_add_u32 {v(vA)}, v10, 5, {v(vA)}')
        e('v_and_b32 v10, 3, v0')
        e(f'v_lshl_add_u32 {v(vA)}, v10, 3, {v(vA)}')
        e(f'v_add_u32 {v(vA2)}, 65536, {v(vA)}')
        e('v_and_b32 v10, 31, v0')
        e('v_lshrrev_b32 v11, 5, v0')
        e('v_xor_b32 v10, v10, v11')
        e('v_lshlrev_b32 v10, 4, v10')
        e('v_lshl_add_u32 v10, v11, 9, v10')
        e(f'v_add_u32 {v(vH)}, {L_H}, v10')
        for j in (1, 2, 3):
            e(f'v_xor_b32 {v(vH+j)}, {32*j}, {v(vH)}')
        RING = 4

        def qreads(ks):
            r = 176 + 8 * (ks % RING)
            base = vA if ks < 16 else vA2
            off = (ks % 16) * 4096
            e(f'ds_read_b64_tr_b16 {v(r,2)}, {v(base)} offset:{off}')
            e(f'ds_read_b64_tr_b16 {v(r+2,2)}, {v(base)} offset:{off+1024}')
            e(f'ds_read_b128 {v(r+4,4)}, {v(vH+ks%4)} offset:{ks*1024}', tag=f'q{ks}')

        def qseg(k0, k1, hook=None):
            for ks in range(k0, min(k0 + RING - 1, k1)):
                qreads(ks)
            for ks in range(k0, k1):
                if ks + RING - 1 < k1:
                    qreads(ks + RING - 1)
                e.wait_lg(f'q{ks}')
                r = 176 + 8 * (ks % RING)
                e(f'v_mfma_f32_32x32x16_bf16 v[40:55], {v(r,4)}, {v(r+4,4)}, ' + ('0' if ks == 0 else 'v[40:55]'))
                if hook:
                    hook(ks)
        qseg(0, 16)
        self.att_setup()
        e('s_barrier')
        self.stamp('Bw2')
        e.vm = []
        self.kv_load(0)
        pend = list(range(1, o['D']))

        def hook(ks):
            if ks % 3 == 1 and pend:
                self.kv_load(pend.pop(0))
        qseg(16, 32, hook)
        while pend:
            self.kv_load(pend.pop(0))
        assert e.vm == vmsave
        for j in range(8):
            e(f'v_cvt_pk_bf16_f32 {v(16+j)}, {v(40+2*j)}, {v(41+2*j)}')
        e(f's_lshl_b32 {T0}, {s_m}, 11')
        e(f'v_lshl_add_u32 v40, v0, 4, {T0}')
        e(f'ds_write_b128 v40, v[16:19] offset:{L_QX}')
        e(f'ds_write_b128 v40, v[20:23] offset:{L_QX+1024}')
        e('s_waitcnt lgkmcnt(0)')
        e('s_barrier')
        e.label('L_att')
        e.flush_hist()

    vKV, vIDX, vOA, vW32, vYA, vHA, vSTA, vWO, vWG, vWU = 1, 2, 3, 4, 5, 6, 7, 8, 9, 10
    vTR = 11
    vTMP = 12
    vTMP2 = 13
    Q0, Q1 = 16, 20
    GB, XRES = 24, 32
    S0, S1, O0, O1, KVB, WOA = 40, 56, 72, 88, 104, 176

    def att_setup(self):
        e = self.e; D = self.o['D']
        t, t2, t3 = 24, 25, 26
        e(f'v_and_b32 {v(t)}, 15, v0')
        e(f'v_lshlrev_b32 {v(t)}, 4, {v(t)}')
        e(f'v_lshrrev_b32 {v(t2)}, 5, v0')
        e(f'v_lshl_add_u32 {v(t2)}, {v(t2)}, 8, {v(t)}')
        e(f'v_bfe_u32 {v(t3)}, v0, 4, 1')
        e(f'v_lshl_add_u32 {v(self.vKV)}, {v(t3)}, 9, {v(t2)}')
        e(f's_lshl_b32 {s_kvb}, {s_kh}, 16')
        e(f's_add_u32 {s_kvb}, {s_kvb}, {WS_KV}')
        e(f'v_mov_b32 {v(self.vIDX)}, 0xdddddddd')
        e(f's_lshl_b32 {T0}, {s_x}, 3')
        e(f's_add_u32 {T0}, {T0}, {s_tb}')
        e(f's_lshl_b32 {T0}, {T0}, 15')
        e(f's_lshl_b32 {T1}, {s_cb}, 2')
        e(f's_add_u32 {T1}, {T1}, {s_m}')
        e(f's_lshl_b32 {T1}, {T1}, 1')
        e(f's_add_u32 {T1}, {T1}, {s_kh}')
        e(f's_lshl_b32 {T1}, {T1}, 9')
        e(f's_add_u32 {T0}, {T0}, {T1}')
        e(f's_add_u32 {T0}, {T0}, {WS_O}')
        e(f'v_lshl_add_u32 {v(self.vOA)}, {v(t3)}, 14, {v(t2)}')
        e(f'v_add_u32 {v(self.vOA)}, {T0}, {v(self.vOA)}')
        e(f's_lshl_b32 {T0}, {s_x}, 3')
        e(f's_add_u32 {T0}, {T0}, {s_w}')
        e(f's_mul_i32 {T0}, {T0}, {2*44032}')
        e(f's_mul_i32 {T1}, {s_c}, 1536')
        e(f's_add_u32 {T0}, {T0}, {T1}')
        e(f's_add_u32 {T0}, {T0}, {WS_HH}')
        e(f's_cmp_ge_u32 {s_c}, 29')
        e(f's_cselect_b32 {T0}, {OOB}, {T0}')
        e(f'v_mul_u32_u24 {v(self.vHA)}, 44032, {v(t3)}')
        e(f'v_add3_u32 {v(self.vHA)}, {v(self.vHA)}, {v(t2)}, {T0}')
        e(f's_lshl_b32 {T0}, {s_x}, 2')
        e(f's_add_u32 {T0}, {T0}, {s_oct}')
        e(f's_lshl_b32 {T0}, {T0}, 1')
        e(f's_lshr_b32 {T1}, {s_m}, 1')
        e(f's_add_u32 {T1}, {T1}, {T0}')
        e(f's_lshl_b32 {T1}, {T1}, 15')
        e(f's_lshl_b32 {T2}, {s_nb}, 1')
        e(f's_add_u32 {T2}, {T2}, {s_kh}')
        e(f's_lshl_b32 {T2}, {T2}, 11')
        e(f's_add_u32 {T1}, {T1}, {T2}')
        e(f's_and_b32 {T2}, {s_m}, 1')
        e(f's_lshl_b32 {T2}, {T2}, 8')
        e(f's_add_u32 {T1}, {T1}, {T2}')
        e(f's_add_u32 {T1}, {T1}, {WS_Y}')
        e(f'v_lshrrev_b32 {v(t3)}, 4, v0')
        e(f'v_lshl_add_u32 {v(self.vYA)}, {v(t3)}, 9, {v(t)}')
        e(f'v_add_u32 {v(self.vYA)}, {T1}, {v(self.vYA)}')
        e(f's_lshl_b32 {T0}, {T0}, 11')
        e(f's_lshl_b32 {T1}, {s_nb}, 8')
        e(f's_add_u32 {T0}, {T0}, {T1}')
        e(f's_add_u32 {T0}, {T0}, {WS_STATS}')
        e(f's_cmp_eq_u32 {s_w}, 7')
        e(f's_cselect_b32 {T0}, {T0}, {OOB}')
        e(f'v_and_b32 {v(t)}, 31, v0')
        e(f'v_lshlrev_b32 {v(t)}, 3, {v(t)}')
        e(f'v_lshrrev_b32 {v(t2)}, 5, v0')
        e(f'v_lshl_add_u32 {v(t)}, {v(t2)}, 11, {v(t)}')
        e(f'v_add_u32 {v(self.vSTA)}, {T0}, {v(t)}')
        e(f'v_bfe_u32 {v(t)}, v0, 1, 2')
        e(f'v_xor_b32 {v(t)}, {v(t)}, {v(t3)}')
        e(f'v_lshlrev_b32 {v(t)}, 5, {v(t)}')
        e(f'v_lshrrev_b32 {v(t2)}, 3, v0')
        e(f'v_lshl_add_u32 {v(t)}, {v(t2)}, 10, {v(t)}')
        e(f'v_and_b32 {v(t2)}, 1, v0')
        e(f'v_lshl_add_u32 {v(t)}, {v(t2)}, 4, {v(t)}')
        e(f's_lshl_b32 {T0}, {s_nb}, 7')
        e(f'v_add_u32 {v(self.vWO)}, {T0}, {v(t)}')
        e(f's_mul_i32 {T0}, {s_c}, 96')
        e(f'v_lshl_add_u32 {v(t2)}, {v(t2)}, 4, {T0}')
        e(f'v_lshrrev_b32 {v(t)}, 1, v0')
        e(f'v_mul_u32_u24 {v(self.vWG)}, 2752, {v(t)}')
        e(f'v_add_u32 {v(self.vWG)}, {v(self.vWG)}, {v(t2)}')
        e(f'v_xor_b32 {v(t)}, 4, {v(t)}')
        e(f'v_mul_u32_u24 {v(self.vWU)}, 2752, {v(t)}')
        e(f'v_add_u32 {v(self.vWU)}, {v(self.vWU)}, {v(t2)}')
        e(f'v_bfe_u32 {v(t)}, v0, 2, 3')
        e(f'v_lshrrev_b32 {v(t2)}, 5, v0')
        e(f'v_lshl_add_u32 {v(t2)}, {v(t2)}, 4, {v(t)}')
        e(f'v_lshlrev_b32 {v(t2)}, 7, {v(t2)}')
        e(f'v_lshrrev_b32 {v(t)}, 1, {v(t)}')
        e(f's_lshl_b32 {T0}, {s_kh}, 1')
        e(f'v_xor_b32 {v(t)}, {T0}, {v(t)}')
        e(f'v_lshl_add_u32 {v(t2)}, {v(t)}, 5, {v(t2)}')
        e(f'v_and_b32 {v(t)}, 3, v0')
        e(f'v_lshl_add_u32 {v(t2)}, {v(t)}, 3, {v(t2)}')
        e(f's_lshl_b32 {T0}, {s_kh}, 12')
        e(f'v_add_u32 {v(self.vTR)}, {T0}, {v(t2)}')
        e(f'v_and_b32 {v(t)}, 27, v0')
        e(f'v_cmp_eq_u32 vcc, 16, {v(t)}')
        e(f'v_mov_b32 {v(t2)}, 0x3f803f80')
        e(f'v_cndmask_b32 {v(t)}, 0, {v(t2)}, vcc')
        for b in range(D):
            for j in range(8):
                e(f'v_mov_b32 {v(self.KVB+12*b+4+j)}, {v(t)}')
        for j in range(32):
            e(f'v_mov_b32 {v(self.O0+j)}, 0')
        for j in range(4):
            e(f'v_mov_b32 {v(self.GB+j)}, -1')

    def kv_lines(self, t, buf=None, soff=None, fl='sc1'):
        b = self.KVB + 12 * ((t % self.o['D']) if buf is None else buf)
        L = []
        if soff is None:
            L.append(f's_add_u32 {T7}, {s_kvb}, {t*2048}'); soff = T7
        L.append(f'buffer_load_dwordx4 {v(b,4)}, {v(self.vKV)}, {srd(SWS)}, {soff} offen {fl}')
        L.append(f's_mov_b64 exec, {s(S_VM,2)}')
        L.append(f'buffer_load_dwordx4 {v(b+4,4)}, {v(self.vKV)}, {srd(SWS)}, {soff} offen offset:1024 {fl}')
        L.append(f'buffer_load_dwordx4 {v(b+8,4)}, {v(self.vKV)}, {srd(SWS)}, {soff} offen offset:1536 {fl}')
        L.append('s_mov_b64 exec, -1')
        return L

    def kv_load(self, t):
        for l in self.kv_lines(t, fl='sc1' if (self.o['kvsc1'] or t < self.o['nchk']) else ''):
            self.e(l, tag=f'kv{t}')

    def kv_prologue(self):
        self.e.vm = []
        for t in range(self.o['D']):
            self.kv_load(t)

    def kv_ready(self, t):
        e = self.e
        e.wait_vm(f'kv{t}')
        if t < self.o['nchk']:
            b = self.KVB + 12 * (t % self.o['D'])
            self.frag_check([b, b + 4, b + 8], self.vTMP, self.kv_lines(t), 'kv')

    def tr64(self, dst, step_off, region_reg_base):
        e = self.e
        for j in range(4):
            e(f'ds_read_b64_tr_b16 {v(dst+4*j,2)}, {v(region_reg_base+j)} offset:{step_off}')
            e(f'ds_read_b64_tr_b16 {v(dst+4*j+2,2)}, {v(region_reg_base+j)} offset:{step_off+1024}', tag=f'w{dst+4*j}')

    def tr64_addr(self, base, region):
        e = self.e
        e(f'v_add_u32 {v(base)}, {region}, {v(self.vTR)}')
        for j in (1, 2, 3):
            e(f'v_xor_b32 {v(base+j)}, {32*j}, {v(base)}')

    def w64_dma(self, rs, step, halfrows, lds_addr, tag=None):
        self.dma(rs, self.vWO, s_ds, step * 32768, s_dl, lds_addr, tag=tag)

    def w64_bases(self, halfrows):
        e = self.e
        e(f's_lshl_b32 {s_dl}, {s_w}, 10')
        e(f's_mul_i32 {s_ds}, {s_kh}, {halfrows*1024}')
        e(f's_lshl_b32 {T0}, {s_m}, 13')
        e(f's_add_u32 {s_ds}, {s_ds}, {T0}')

    def attention(self):
        e = self.e; o = self.o; D = o['D']
        S = (self.S0, self.S1); O = (self.O0, self.O1); Q = (self.Q0, self.Q1)
        NT = 32
        kb = lambda t: self.KVB + 12 * (t % D)
        QK = lambda d, t, q: e(f'v_mfma_f32_32x32x16_bf16 {v(d,16)}, {v(kb(t),4)}, {v(q,4)}, 0')
        SM = lambda d, a, b: e(f'v_smfmac_f32_32x32x32_bf16 {v(d,16)}, {v(a,4)}, {v(b,8)}, {v(self.vIDX)}')
        self.stamp('att0')
        e('s_setprio 3')
        self.w64_bases(256)
        GB = self.GB
        gloads = []
        for p in range(2):
            gloads += [f's_mov_b32 {T7}, {WS_MODB + p*8192}',
                       f'buffer_load_dwordx4 {v(GB+4*p,4)}, v36, {srd(SWS)}, {T7} offen sc1']
        self.gb_loads = gloads

        def triple(mat, rb):
            e(f's_lshl_b32 {T1}, {s_w}, 11')
            e(f's_mul_i32 {T0}, {s_w}, {64*2752}')
            for tl in range(3):
                self.dma(SWU if mat else SWG, self.vWU if mat else self.vWG, T0, rb * 32 * 2752 + 32 * tl,
                         T1, L_WGU + tl * 32768 + mat * 16384 + rb * 1024)

        def clear(i):
            if i == 0:
                e(f'buffer_store_dwordx4 {v(GB,4)}, {v(self.vOA)}, {srd(SWS)}, 0 offen sc1')
            elif i == 1:
                e(f'buffer_store_dwordx4 {v(GB,4)}, {v(self.vYA)}, {srd(SWS)}, 0 offen sc1')
            elif i == 2:
                e(f'buffer_store_dwordx4 {v(GB,4)}, {v(self.vHA)}, {srd(SWS)}, 0 offen sc1')
            elif i == 3:
                e(f'buffer_store_dwordx4 {v(GB,4)}, {v(self.vHA)}, {srd(SWS)}, 0 offen offset:512 sc1')
            elif i == 4:
                e(f's_cmp_eq_u32 {s_c}, 28')
                e(f's_cselect_b32 {T4}, {OOB}, 0')
                e(f'buffer_store_dwordx4 {v(GB,4)}, {v(self.vHA)}, {srd(SWS)}, {T4} offen offset:1024 sc1')
            else:
                e(f'buffer_store_dwordx2 {v(GB,2)}, {v(self.vSTA)}, {srd(SWS)}, 0 offen sc1', tag='clr')

        TB1 = o['tb1']

        def side(t):
            if o['noside'] and t not in (29,):
                return
            if 1 <= t <= 4:
                self.w64_dma(SWO, t - 1, 256, L_WOA + (t - 1) * 8192)
            if t == 5:
                e(f's_lshl_b32 {T0}, {s_x}, 3')
                e(f's_add_u32 {T0}, {T0}, {s_tb}')
                e(f's_and_b32 {T1}, {T0}, 1')
                e(f's_lshr_b32 {T0}, {T0}, 1')
                e(f's_lshl_b32 {T0}, {T0}, 2')
                e(f's_add_u32 {T0}, {T0}, {s_cb}')
                e(f's_lshl_b32 {T2}, {T1}, 3')
                e(f's_add_u32 {T2}, {T2}, {s_w}')
                e(f's_mul_i32 {T2}, {T2}, {32*6144}')
                e(f's_lshl_b32 {T3}, {T0}, 5')
                e(f's_add_u32 {T2}, {T2}, {T3}')
                self.dma(SWM, self.vW32, T2, 2048, s_dl, L_MBW)
                e(f's_lshl_b32 {T1}, {T1}, 13')
                e(f's_lshl_b32 {T0}, {T0}, 6')
                e(f's_add_u32 {T0}, {T0}, {T1}')
                e(f's_add_u32 {T5}, {T0}, {WS_MODB}')
            if 2 <= t <= 7:
                clear(t - 2)
            if t == 8:
                triple(1, 0)
            if t == TB1 - 1:
                e('s_setprio 2')
            if t == TB1:
                e.wait_vm('clr')
                e('s_barrier')
                lab = e.newlabel('nomb')
                e(f's_cmp_lg_u32 {s_w}, 5')
                e(f's_cbranch_scc1 {lab}')
                W = self.WOA
                e(f'v_lshlrev_b32 {v(self.vTMP)}, 3, v0')
                e(f'v_add_u32 {v(self.vTMP)}, {L_SB2}, {v(self.vTMP)}')
                e(f'ds_write_b64 {v(self.vTMP)}, v[14:15]')
                e(f'v_lshrrev_b32 v14, 4, v0')
                e(f'v_and_b32 v15, 15, v0')
                e(f'v_lshlrev_b32 v15, 3, v15')
                e(f'v_lshl_add_u32 v15, v14, 8, v15')
                e(f'v_add_u32 v15, {L_MBW}, v15')
                e(f'v_lshlrev_b32 v14, 4, v14')
                e(f'v_add_u32 v14, {L_SB2}, v14')
                for ks in range(8):
                    e(f'ds_read_b128 {v(W+8*ks,4)}, v14 offset:{ks*64}')
                    e(f'ds_read_b64_tr_b16 {v(W+8*ks+4,2)}, v15 offset:{ks*1024}')
                    e(f'ds_read_b64_tr_b16 {v(W+8*ks+6,2)}, v15 offset:{ks*1024+128}')
                e('s_waitcnt lgkmcnt(0)')
                for ks in range(8):
                    e(f'v_mfma_f32_16x16x32_bf16 v[240:243], {v(W+8*ks,4)}, {v(W+8*ks+4,4)}, ' + ('0' if ks == 0 else 'v[240:243]'))
                self.tag_and_store(240, 14, 15, T5)
                e.label(lab)
                self.tr64_addr(240, L_WOA)
                for i in range(2):
                    self.tr64(self.WOA + 16 * i, i * 8192, 240)
            if t == TB1 + 1:
                for i in range(2, 4):
                    self.tr64(self.WOA + 16 * i, i * 8192, 240)
                triple(1, 1)
            if t == TB1 + 2:
                e('s_waitcnt lgkmcnt(0)')
                e('s_barrier')
                e('s_setprio 1')
            if TB1 + 3 <= t <= TB1 + 6:
                i = t - TB1 - 3
                self.w64_dma(SWO, 4 + i, 256, L_WOB + i * 8192)
            if t == 19:
                triple(0, 0)
            if t == 23:
                triple(0, 1)
            if t in (21, 26):
                e(f's_mul_i32 {T0}, {s_c}, {43*1024}')
                e(f's_lshl_b32 {T1}, {s_w}, 7')
                e(f's_add_u32 {T0}, {T0}, {T1}')
                if t == 21:
                    e(f'v_min_u32 {v(self.vTMP2)}, 21, v0')
                    e(f'v_lshlrev_b32 {v(self.vTMP2)}, 10, {v(self.vTMP2)}')
                else:
                    e(f's_add_u32 {T0}, {T0}, {21*1024}')
                e(f'buffer_load_dword v37, {v(self.vTMP2)}, {srd(SWD)}, {T0} offen')
            if t == 27:
                e(f's_lshl_b32 {T0}, {s_w}, 10')
                e(f'v_lshl_add_u32 v36, v0, 4, {T0}')
                for l in gloads:
                    e(l, tag='gb')
                e(f's_lshl_b32 {T0}, {s_x}, 2')
                e(f's_add_u32 {T0}, {T0}, {s_oct}')
                e(f's_lshl_b32 {T0}, {T0}, 2')
                e(f's_add_u32 {T0}, {T0}, {s_m}')
                e(f's_lshl_b32 {s_act}, {T0}, 14')
                e(f's_lshl_b32 {T1}, {s_nb}, 1')
                e(f's_add_u32 {T1}, {T1}, {s_kh}')
                e(f's_lshl_b32 {T1}, {T1}, 6')
                e(f's_add_u32 {T1}, {T1}, {s_act}')
                e(f'v_and_b32 v4, 15, v0')
                e(f'v_lshl_add_u32 v4, v4, 10, {T1}')
                e(f'v_lshrrev_b32 {v(self.vTMP2)}, 4, v0')
                e(f'v_lshl_add_u32 {v(self.vTMP2)}, {v(self.vTMP2)}, 3, v4')
                e(f'buffer_load_dwordx2 {v(self.XRES,2)}, {v(self.vTMP2)}, {srd(SX)}, 0 offen')
                e(f'buffer_load_dwordx2 {v(self.XRES+2,2)}, {v(self.vTMP2)}, {srd(SX)}, 0 offen offset:32')
            if t == 29:
                e('s_setprio 0')
            if t in (4, 8, 12, 16, 20, 24, 28):
                self.stamp(f't{t}')

        self.kv_ready(0)
        QK(S[0], 0, Q[0])
        for t in range(NT):
            for a in range(2):
                cur, oth = S[a], S[1 - a]
                for r in range(16):
                    if r == 2:
                        if a == 0 and t > 0:
                            SM(O[1], kb(t - 1) + 8, oth + 8)
                            if t - 1 + D < NT:
                                self.kv_load(t - 1 + D)
                        if a == 1:
                            SM(O[0], kb(t) + 8, oth + 8)
                            if t + 1 < NT:
                                self.kv_ready(t + 1)
                    if r == 5:
                        if a == 0:
                            QK(oth, t, Q[1])
                        elif t + 1 < NT:
                            QK(oth, t + 1, Q[0])
                    if r == 10:
                        SM(O[a], kb(t) + 4, cur)
                        if a == 0:
                            side(t)
                    e(f'v_exp_f32 {v(cur+r)}, {v(cur+r)}')
        SM(O[1], kb(NT - 1) + 8, S[1] + 8)
        self.stamp('att1')

    def att_epilogue(self):
        e = self.e; o = self.o
        O0, O1, S0 = self.O0, self.O1, self.S0
        t, t2 = self.vTMP, self.vTMP2
        e(f's_mul_i32 {T0}, {s_w}, 2304')
        e(f's_add_u32 {T0}, {T0}, {L_EX}')
        e(f'v_lshl_add_u32 {v(t)}, v0, 4, {T0}')
        e(f'v_lshl_add_u32 {v(t2)}, v0, 2, {T0}')
        e(f's_xor_b32 {T1}, {s_w}, 4')
        e(f's_mul_i32 {T1}, {T1}, 2304')
        e(f's_add_u32 {T1}, {T1}, {L_EX}')
        e(f'v_lshl_add_u32 v14, v0, 4, {T1}')
        e(f'v_lshl_add_u32 v15, v0, 2, {T1}')
        e(f'ds_write_b128 {v(t)}, {v(O1,4)}')
        e(f'ds_write_b128 {v(t)}, {v(O1+4,4)} offset:1024')
        e(f'ds_write_b32 {v(t2)}, {v(O1+8)} offset:2048')
        e('s_waitcnt vmcnt(0) lgkmcnt(0)')
        e('s_barrier')
        e(f'ds_read_b32 {v(S0+8)}, v15 offset:2048', tag='l')
        e(f'ds_read_b128 {v(S0,4)}, v14', tag='a')
        e(f'ds_read_b128 {v(S0+4,4)}, v14 offset:1024', tag='b')
        e(f's_mov_b32 {T0}, {fbits(2.0**-90)}')
        e(f'v_mov_b32 {v(t2)}, {fbits(2.0**120)}')
        e.wait_lg('l')
        e(f'v_add_f32 {v(O0+8)}, {v(O0+8)}, {v(S0+8)}')
        e(f'v_med3_f32 {v(t)}, {v(O0+8)}, {T0}, {v(t2)}')
        e(f'v_cmp_neq_f32 {s(72,2)}, {v(t)}, {v(O0+8)}')
        e(f'v_rcp_f32 {v(O0+8)}, {v(O0+8)}')
        e.wait_lg('b')
        for j in range(0, 8, 2):
            e(f'v_pk_add_f32 {v(O0+j,2)}, {v(O0+j,2)}, {v(S0+j,2)}')
        for j in range(8):
            e(f'v_mul_f32 {v(O0+j)}, {v(O0+j)}, {v(O0+8)}')
        e(f'v_pk_add_f32 {v(S0,2)}, {v(O0,2)}, {v(O0+2,2)}')
        e(f'v_pk_add_f32 {v(S0+2,2)}, {v(O0+4,2)}, {v(O0+6,2)}')
        e(f'v_pk_add_f32 {v(S0,2)}, {v(S0,2)}, {v(S0+2,2)}')
        e(f'v_add_f32 {v(S0)}, {v(S0)}, {v(S0+1)}')
        e(f'v_mov_b32 {v(t)}, 0x207')
        e(f'v_cmp_class_f32 vcc, {v(S0)}, {v(t)}')
        e(f's_or_b64 vcc, vcc, {s(72,2)}')
        if o['force_slow']:
            e('s_branch L_slow')
        else:
            e('s_cbranch_vccnz L_slow')
        e.label('L_slow_ret')
        for j in range(4):
            e(f'v_cvt_pk_bf16_f32 {v(O0+j)}, {v(O0+2*j)}, {v(O0+2*j+1)}')
        e(f'buffer_store_dwordx4 {v(O0,4)}, {v(self.vOA)}, {srd(SWS)}, 0 offen sc1', tag='o')
        self.stubs.append(('code', self.slow_path))
        self.stamp('opub')

    def slow_path(self):
        e = self.e
        O0, S0, S1, K = self.O0, self.S0, self.S1, self.KVB
        t, m = self.vTMP, self.vTMP2
        e.label('L_slow')
        e('s_nop 7')

        def fetch(name):
            top = e.newlabel(name); go = e.newlabel(name + 'go')
            e.label(top)
            for l in self.kv_lines(0, buf=0, soff=T0):
                e(l, count=False)
            e('s_waitcnt vmcnt(0)')
            e(f'v_max3_u32 {v(t)}, {v(K)}, {v(K+4)}, {v(K+8)}')
            e(f'v_cmp_eq_u32 vcc, -1, {v(t)}')
            e(f's_cbranch_vccz {go}')
            e(f's_cmp_eq_u32 {s_budget}, 0')
            e(f's_cbranch_scc1 {go}')
            e(f's_sub_u32 {s_budget}, {s_budget}, 1')
            e(f's_branch {top}')
            e.label(go)
            return top
        e(f'v_mov_b32 {v(m)}, 0xff800000')
        e(f's_mov_b32 {T0}, {WS_KV}')
        top = fetch('sl1')
        e(f'v_mfma_f32_32x32x16_bf16 {v(S0,16)}, {v(K,4)}, {v(self.Q0,4)}, 0')
        for j in range(0, 16, 2):
            e(f'v_max3_f32 {v(m)}, {v(m)}, {v(S0+j)}, {v(S0+j+1)}')
        e(f's_add_u32 {T0}, {T0}, 2048')
        e(f's_cmp_lt_u32 {T0}, {WS_KV+64*2048}')
        e(f's_cbranch_scc1 {top}')
        e(f'v_mov_b32 {v(t)}, {v(m)}')
        e(f'v_permlane32_swap_b32 {v(m)}, {v(t)}')
        e(f'v_max_f32 {v(m)}, {v(m)}, {v(t)}')
        for j in range(16):
            e(f'v_sub_f32 {v(S1+j)}, 0, {v(m)}')
            e(f'v_mov_b32 {v(O0+j)}, 0')
        e(f's_mov_b32 {T0}, {WS_KV}')
        top = fetch('sl2')
        e(f'v_mfma_f32_32x32x16_bf16 {v(S0,16)}, {v(K,4)}, {v(self.Q0,4)}, {v(S1,16)}')
        for j in range(16):
            e(f'v_exp_f32 {v(S0+j)}, {v(S0+j)}')
        e(f'v_smfmac_f32_32x32x32_bf16 {v(O0,16)}, {v(K+4,4)}, {v(S0,8)}, {v(self.vIDX)}')
        e(f'v_smfmac_f32_32x32x32_bf16 {v(O0,16)}, {v(K+8,4)}, {v(S0+8,8)}, {v(self.vIDX)}')
        e('s_nop 7')
        e(f's_add_u32 {T0}, {T0}, 2048')
        e(f's_cmp_lt_u32 {T0}, {WS_KV+64*2048}')
        e(f's_cbranch_scc1 {top}')
        e('s_nop 7')
        e(f'v_rcp_f32 {v(O0+8)}, {v(O0+8)}')
        for j in range(8):
            e(f'v_mul_f32 {v(O0+j)}, {v(O0+j)}, {v(O0+8)}')
        e('s_branch L_slow_ret')

    def exchange(self, acc, recv):
        e = self.e
        t, t2 = self.vTMP, self.vTMP2
        e(f'ds_write_b128 {v(t)}, {v(acc+8,4)}')
        e(f'ds_write_b128 {v(t)}, {v(acc+12,4)} offset:1024')
        e('s_waitcnt lgkmcnt(0)')
        e('s_barrier')
        e(f'ds_read_b128 {v(recv,4)}, {v(t2)}', tag='a')
        e(f'ds_read_b128 {v(recv+4,4)}, {v(t2)} offset:1024', tag='b')
        e.wait_lg('a')
        for j in (0, 2):
            e(f'v_pk_add_f32 {v(acc+j,2)}, {v(acc+j,2)}, {v(recv+j,2)}')
        e.wait_lg('b')
        for j in (4, 6):
            e(f'v_pk_add_f32 {v(acc+j,2)}, {v(acc+j,2)}, {v(recv+j,2)}')

    def exchange_addr(self):
        e = self.e
        e(f's_lshl_b32 {T0}, {s_w}, 11')
        e(f's_add_u32 {T0}, {T0}, {L_EX}')
        e(f'v_lshl_add_u32 {v(self.vTMP)}, v0, 4, {T0}')
        e(f'v_xor_b32 {v(self.vTMP2)}, 8192, {v(self.vTMP)}')

    X1 = 16

    def a_extra(self, R, acc):
        e = self.e
        lab = e.newlabel('noax')
        e(f's_cmp_ge_u32 {s_w}, 6')
        e(f's_cbranch_scc1 {lab}')
        lgsave = list(e.lg)
        e(f's_and_b32 {T0}, {s_w}, 1')
        e(f's_lshl_b32 {T1}, {T0}, 4')
        e(f'v_xor_b32 v36, {T1}, v0')
        e(f's_lshl_b32 {T2}, {s_w}, 14')
        e(f'v_lshl_add_u32 v36, v36, 3, {T2}')
        e(f'v_and_b32 v37, 48, v0')
        e(f'v_and_b32 v38, 1, v0')
        e(f'v_xor_b32 v38, 1, v38')
        e(f'v_lshl_add_u32 v37, v38, 10, v37')
        e(f'v_add_u32 v37, {L_STG16}, v37')

        def rd(nb):
            r = R + 8 * (nb % 4)
            e(f'ds_read_b128 {v(r,4)}, v37 offset:{nb*64}')
            e(f'ds_read_b64_tr_b16 {v(r+4,2)}, v36 offset:{nb*1024}')
            e(f'ds_read_b64_tr_b16 {v(r+6,2)}, v36 offset:{nb*1024+512}', tag=f'ax{nb}')
        for nb in range(4):
            rd(nb)
        for nb in range(16):
            r = R + 8 * (nb % 4)
            e.wait_lg(f'ax{nb}')
            e(f'v_mfma_f32_16x16x32_bf16 {v(acc,4)}, {v(r,4)}, {v(r+4,4)}, ' + ('0' if nb == 0 else v(acc, 4)))
            if nb + 4 < 16:
                rd(nb + 4)
        e('v_and_b32 v36, 16, v0')
        e('v_cmp_ne_u32 vcc, 0, v36')
        e('v_and_b32 v37, 15, v0')
        e('v_lshl_add_u32 v37, v36, 1, v37')
        e(f'v_add_u32 v37, {T1}, v37')
        e(f's_lshr_b32 {T2}, {s_w}, 1')
        e(f's_lshl_b32 {T2}, {T2}, 9')
        e(f's_add_u32 {T2}, {T2}, {L_AX}')
        e(f'v_lshl_add_u32 v37, v37, 3, {T2}')
        e(f'v_cndmask_b32 {v(acc)}, {v(acc)}, {v(acc+1)}, vcc')
        e(f'v_cvt_pk_bf16_f32 v39, {v(acc)}, 0')
        e(f'v_lshlrev_b32 {v(acc+1)}, 16, v39')
        e(f'v_sub_f32 {v(acc+1)}, {v(acc)}, {v(acc+1)}')
        e(f'v_cvt_pk_bf16_f32 v38, {v(acc)}, {v(acc+1)}')
        e('ds_write_b64 v37, v[38:39]')
        e.label(lab)
        e.lg = lgsave

    def phase_o(self):
        e = self.e; o = self.o
        GB = self.GB; X1 = self.X1
        WB, OF, ACC, RECV, GA, CB = 104, 40, 72, 88, 240, 248
        e(f's_lshr_b32 {T0}, {s_w}, 1')
        e(f's_cmp_eq_u32 {T0}, 2')
        e(f's_cselect_b32 {s_one}, 1.0, 0')
        self.tr64_addr(96, L_WOB)
        for i in range(2):
            self.tr64(WB + 16 * i, i * 8192, 96)
        self.gather_check(GB, 2, 14, self.gb_loads, 'gb')
        self.round_mod(GB, GB + 4)
        e(f'v_add_u32 v36, {L_STGB}, v36')
        e(f'ds_write_b128 v36, {v(GB,4)}')
        lab = e.newlabel('no16')
        e(f's_sub_u32 {T0}, {s_w}, 2')
        e(f's_cmp_ge_u32 {T0}, 4')
        e(f's_cbranch_scc1 {lab}')
        e(f's_lshl_b32 {T0}, {T0}, 9')
        e(f's_add_u32 {T0}, {T0}, {L_STG16}')
        e(f'v_lshrrev_b32 v15, 3, v0')
        e(f'v_lshl_add_u32 v15, v15, 6, {T0}')
        e(f'v_and_b32 v14, 3, v0')
        e(f'v_lshl_add_u32 v15, v14, 4, v15')
        e(f'v_bfe_u32 v14, v0, 2, 1')
        e(f'v_lshl_add_u32 v15, v14, 3, v15')
        e(f'ds_write_b64 v15, {v(GB+4,2)}', count=False)
        e.label(lab)
        for i in range(2, 4):
            self.tr64(WB + 16 * i, i * 8192, 96)
        for j in range(4):
            self.unpack(self.XRES + j, X1 + 2 * j, X1 + 2 * j + 1)
        self.exchange_addr()
        e(f's_lshl_b32 {T0}, {s_nb}, 1')
        e(f's_add_u32 {T0}, {T0}, {s_kh}')
        e(f's_lshl_b32 {T0}, {T0}, 7')
        e(f's_add_u32 {T0}, {T0}, {L_STGB}')
        e(f'v_lshrrev_b32 v15, 4, v0')
        e(f'v_lshl_add_u32 v15, v15, 4, {T0}')
        e(f's_lshl_b32 {T0}, {s_kh}, 13')
        e(f's_add_u32 {s_act}, {s_act}, {T0}')
        e(f's_add_u32 {s_act}, {s_act}, {WS_O}')
        e(f's_add_u32 {T6}, {s_act}, 4096')
        e(f'v_lshlrev_b32 v1, 4, v0')
        self.w64_bases(704)
        e('s_waitcnt vmcnt(0) lgkmcnt(0)')
        self.sleep(o['dly_o'])
        e('s_barrier')
        self.stamp('BO1')
        ol = [f'buffer_load_dwordx4 {v(OF+4*k,4)}, v1, {srd(SWS)}, {s_act if k < 4 else T6} offen offset:{(k%4)*1024} sc1' for k in range(8)]
        for k in range(4):
            e(ol[k], tag=f'o{k}')
        lab = e.newlabel('noep')
        e(f's_or_b32 {T0}, s2, {s_w}')
        e(f's_cmp_lg_u32 {T0}, 0')
        e(f's_cbranch_scc1 {lab}')
        e(f'v_mov_b32 v14, {s_nonce}')
        e(f'buffer_store_dword v14, off, {srd(SWS)}, 0 sc1', count=False)
        e.label(lab)
        self.a_extra(72, 168)
        for base, sec in ((GA, 0), (CB, 2), (GB, 3)):
            e(f'ds_read_b128 {v(base,4)}, v15 offset:{sec*2048}')
            e(f'ds_read_b128 {v(base+4,4)}, v15 offset:{sec*2048+64}')
        self.stamp('ax')
        for k in range(8):
            if k % 2 == 0:
                e.wait_vm(f'o{k+1}')
                if k == 0:
                    self.stamp('oin')
                self.frag_check([OF + 4 * k, OF + 4 * k + 4], 14, ol[k:min(k + 4, 8)], 'o')
                if k < 4:
                    e(ol[k + 4], tag=f'o{k+4}')
                    e(ol[k + 5], tag=f'o{k+5}')
            W = (self.WOA + 16 * k) if k < 4 else (WB + 16 * (k - 4))
            for j in (2, 3, 0, 1):
                e(f'v_mfma_f32_16x16x32_bf16 {v(ACC+4*j,4)}, {v(W+4*j,4)}, {v(OF+4*k,4)}, ' + ('0' if k == 0 else v(ACC + 4 * j, 4)))
        self.stamp('omma')
        self.exchange(ACC, RECV)
        for j in range(0, 8, 2):
            e(f'v_pk_fma_f32 {v(X1+j,2)}, {v(ACC+j,2)}, {v(GA+j,2)}, {v(X1+j,2)}')
        for j in range(0, 8, 2):
            e(f'v_pk_mul_f32 {v(ACC+j,2)}, {v(X1+j,2)}, {v(CB+j,2)}')
        for j in range(4):
            e(f'v_cvt_pk_bf16_f32 {v(ACC+j)}, {v(ACC+2*j)}, {v(ACC+2*j+1)}')
        e(f'buffer_store_dwordx4 {v(ACC,4)}, {v(self.vYA)}, {srd(SWS)}, 0 offen sc1', tag='y')
        self.stamp('ypub')
        for i in range(4):
            self.w64_dma(SWD, i, 704, L_WD1 + i * 8192)
        a, b = 88, 89
        e(f'v_add_f32 {v(a)}, {v(X1)}, {v(X1+1)}')
        e(f'v_mul_f32 {v(b)}, {v(X1)}, {v(X1)}')
        for j in range(1, 8):
            if j > 1:
                e(f'v_add_f32 {v(a)}, {v(a)}, {v(X1+j)}')
            e(f'v_fmac_f32 {v(b)}, {v(X1+j)}, {v(X1+j)}')
        e(f'v_permlane32_swap_b32 {v(a)}, {v(b)}')
        e(f'v_add_f32 {v(a)}, {v(a)}, {v(b)}')
        e(f'v_mov_b32 {v(b)}, {v(a)}')
        e(f'v_permlane16_swap_b32 {v(a)}, {v(b)}')
        e(f'v_add_f32 {v(a)}, {v(a)}, {v(b)}')
        e(f's_lshl_b32 {T0}, {s_w}, 7')
        e(f's_add_u32 {T0}, {T0}, {L_ST}')
        e(f'v_and_b32 v14, 15, v0')
        e(f'v_lshl_add_u32 v14, v14, 3, {T0}')
        e(f'v_lshrrev_b32 v15, 5, v0')
        e(f'v_lshl_add_u32 v14, v15, 2, v14')
        e(f'ds_write_b32 v14, {v(a)}')

    def phase_g(self):
        e = self.e; o = self.o
        Y, ACC, AF, ST, AX, BX = 128, 40, 88, 32, 112, 118
        vA, vA2 = 124, 125
        LA = o['la_y']
        e('v_bfe_u32 v14, v0, 4, 1')
        e('v_xor_b32 v36, v14, v15')
        e(f'v_and_b32 {v(vA)}, 15, v0')
        e(f'v_lshlrev_b32 {v(vA)}, 3, {v(vA)}')
        e(f'v_lshl_add_u32 {v(vA)}, v36, 7, {v(vA)}')
        e(f'v_lshl_add_u32 {v(vA)}, v14, 14, {v(vA)}')
        e(f'v_add_u32 {v(vA2)}, 65536, {v(vA)}')
        e(f's_lshl_b32 {T0}, {s_x}, 3')
        e(f's_add_u32 {T0}, {T0}, {s_w}')
        e(f's_lshl_b32 {T5}, {T0}, 11')
        e(f's_add_u32 {T5}, {T5}, {WS_STATS}')
        e('v_and_b32 v14, 31, v0')
        e('v_lshlrev_b32 v14, 3, v14')
        e('v_lshl_add_u32 v126, v15, 10, v14')
        e(f's_lshl_b32 {s_act}, {T0}, 15')
        e(f's_add_u32 {s_act}, {s_act}, {WS_Y}')
        e(f's_cmp_ge_u32 {s_c}, 29')
        e(f's_cselect_b32 {s_act}, {OOB}, {s_act}')
        e('v_lshlrev_b32 v127, 3, v0')
        e(f'v_add_u32 v15, {L_ST}, v127')
        e(f'v_add_u32 v127, {L_AX}, v127')
        self.tr64_addr(120, L_WD1)
        e('s_waitcnt vmcnt(0) lgkmcnt(0)')
        self.sleep(o['dly_y'])
        e('s_barrier')
        self.stamp('BO3')

        def yreg(k):
            return Y + 4 * (k % 16)

        def ylines(k):
            return [f's_add_u32 {T7}, {s_act}, {(k//4)*4096}',
                    f'buffer_load_dwordx4 {v(yreg(k),4)}, v1, {srd(SWS)}, {T7} offen offset:{(k%4)*1024} sc1']
        issued = [0]

        def yload():
            k = issued[0]
            if k < 32:
                for l in ylines(k):
                    e(l, tag=f'y{k}')
                issued[0] += 1
        for k in range(4):
            yload()
        lab = e.newlabel('nost')
        e(f's_cmp_lg_u32 {s_w}, 7')
        e(f's_cbranch_scc1 {lab}')
        e(f'ds_read_b64 v[88:89], v15')
        e(f'ds_read_b64 v[90:91], v15 offset:512')
        e('s_waitcnt lgkmcnt(0)')
        e('v_pk_add_f32 v[88:89], v[88:89], v[90:91]')
        e(f'buffer_store_dwordx2 v[88:89], {v(self.vSTA)}, {srd(SWS)}, 0 offen sc1', count=False)
        e.label(lab)
        for i in range(4):
            self.tr64(192 + 16 * i, i * 8192, 120)
        for tl in range(3):
            e(f'ds_read_b64 {v(AX+2*tl,2)}, v127 offset:{tl*512}')
        e('s_waitcnt lgkmcnt(0)')
        e('s_barrier')
        self.stamp('BG0')
        e(f's_cmp_ge_u32 {s_c}, 29')
        e('s_cbranch_scc1 L_g_skip')
        sl = [f'buffer_load_dwordx2 {v(ST+2*i,2)}, v126, {srd(SWS)}, {T5} offen offset:{i*256} sc1' for i in range(4)]

        def areads(ks):
            r = AF + 12 * (ks % 2)
            nb, jj = ks // 2, ks % 2
            for tl in range(3):
                base = vA if tl < 2 else vA2
                off = (tl % 2) * 32768 + nb * 1024 + jj * 256
                e(f'ds_read_b64_tr_b16 {v(r+4*tl,2)}, {v(base)} offset:{off}')
                e(f'ds_read_b64_tr_b16 {v(r+4*tl+2,2)}, {v(base)} offset:{off+512}', tag=f'a{ks}_{tl}')
        areads(0)
        areads(1)
        for ks in range(32):
            if ks % 4 == 0:
                e.wait_vm(f'y{ks+3}')
                if ks == 0:
                    self.stamp('yin')
                rl = []
                for k in range(ks, issued[0]):
                    rl += ylines(k)
                self.frag_check([yreg(ks + k) for k in range(4)], 14, rl, 'y')
            r = AF + 12 * (ks % 2)
            for tl in range(3):
                e.wait_lg(f'a{ks}_{tl}')
                e(f'v_mfma_f32_32x32x16_bf16 {v(ACC+16*tl,16)}, {v(r+4*tl,4)}, {v(yreg(ks),4)}, ' + ('0' if ks == 0 else v(ACC + 16 * tl, 16)))
                if tl < 2 and issued[0] < ks + 1 + LA:
                    yload()
            if ks + 2 < 32:
                areads(ks + 2)
            if ks % 3 == 0 and 6 <= ks <= 24:
                i = 4 + (ks - 6) // 3
                self.w64_dma(SWD, i, 704, L_WD1 + (i - 4) * 8192)
            if ks == 25:
                for l in sl:
                    e(l, tag='st')
            if ks == 30:
                e.wait_vm('st')
                self.frag_check([ST + 2 * i for i in range(4)], 14, sl, 'st')
                e(f'v_pk_add_f32 {v(ST,2)}, {v(ST,2)}, {v(ST+2,2)}')
                e(f'v_pk_add_f32 {v(ST+4,2)}, {v(ST+4,2)}, {v(ST+6,2)}')
                e(f'v_pk_add_f32 {v(ST,2)}, {v(ST,2)}, {v(ST+4,2)}')
                e(f'v_mov_b32 {v(ST+2)}, {v(ST)}')
                e(f'v_mov_b32 {v(ST+3)}, {v(ST+1)}')
                e(f'v_cmp_gt_u32 vcc, 32, v0')
                e(f'v_permlane32_swap_b32 {v(ST)}, {v(ST+2)}')
                e(f'v_permlane32_swap_b32 {v(ST+1)}, {v(ST+3)}')
                e(f'v_pk_add_f32 {v(ST,2)}, {v(ST,2)}, {v(ST+2,2)}')
                e(f'v_mul_f32 {v(ST)}, {fbits(-1.0/512)}, {v(ST)}')
                e(f'v_mul_f32 {v(ST+1)}, {fbits(1.0/512)}, {v(ST+1)}')
                e(f'v_fma_f32 {v(ST+1)}, -{v(ST)}, {v(ST)}, {v(ST+1)}')
                e(f'v_max_f32 {v(ST+1)}, 0, {v(ST+1)}')
                e(f'v_add_f32 {v(ST+1)}, {fbits(1e-5)}, {v(ST+1)}')
                e(f'v_sqrt_f32 {v(ST+2)}, {v(ST+1)}')
                e(f'v_rcp_f32 {v(ST+4)}, {v(ST+1)}')
                e(f'v_cndmask_b32 {v(ST)}, {v(ST+2)}, {v(ST)}, vcc')
                e(f'v_cvt_pk_bf16_f32 {v(BX)}, {v(ST)}, {v(ST)}')
                e(f'v_lshlrev_b32 {v(ST+1)}, 16, {v(BX)}')
                e(f'v_sub_f32 {v(ST+1)}, {v(ST)}, {v(ST+1)}')
                e(f'v_cvt_pk_bf16_f32 {v(BX+1)}, {v(ST+1)}, 0')
                e(f'v_mov_b32 {v(ST+5)}, {v(ST+4)}')
        for tl in range(3):
            e(f'v_mfma_f32_32x32x8_bf16 {v(ACC+16*tl,16)}, {v(AX+2*tl,2)}, {v(BX,2)}, {v(ACC+16*tl,16)}')
        self.stamp('gmma')
        e(f's_cmp_eq_u32 {s_c}, 28')
        e(f's_cselect_b32 {T4}, {OOB}, 0')
        for tl in range(3):
            a = ACC + 16 * tl
            for j in range(8):
                e(f'v_max_f32 {v(a+j)}, 0, {v(a+j)}')
            for j in range(0, 8, 2):
                e(f'v_pk_mul_f32 {v(a+8+j,2)}, {v(a+8+j,2)}, {v(ST+4,2)}')
            for j in range(0, 8, 2):
                e(f'v_pk_mul_f32 {v(a+j,2)}, {v(a+j,2)}, {v(a+8+j,2)}')
            for j in range(4):
                e(f'v_cvt_pk_bf16_f32 {v(a+j)}, {v(a+2*j)}, {v(a+2*j+1)}')
            e(f'buffer_store_dwordx4 {v(a,4)}, {v(self.vHA)}, {srd(SWS)}, {T4 if tl == 2 else 0} offen offset:{tl*512} sc1')
        e('s_branch L_g_done')
        e.label('L_g_skip')
        e.flush_hist()
        for i in range(4, 11):
            self.w64_dma(SWD, i, 704, L_WD1 + (i - 4) * 8192)
        e('s_waitcnt vmcnt(0)')
        e.label('L_g_done')
        e.flush_hist()
        e.vm = []; e.lg = []
        self.stamp('hhpub')

    def phase_d(self):
        e = self.e; o = self.o
        WP, HF, ACC, RECV = 96, 56, 40, 56
        NH = 10
        LA = o['la_h']
        X1, GB = self.X1, self.GB
        A1, A2 = 32, 36
        self.tr64_addr(A1, L_WD1)
        self.tr64_addr(A2, L_WD2)
        e(f's_lshl_b32 {T0}, {s_x}, 2')
        e(f's_add_u32 {T0}, {T0}, {s_oct}')
        e(f's_lshl_b32 {T0}, {T0}, 2')
        e(f's_add_u32 {T0}, {T0}, {s_m}')
        e(f's_mul_i32 {s_act}, {T0}, 44032')
        e(f's_mul_i32 {T0}, {s_kh}, {22*1024}')
        e(f's_add_u32 {s_act}, {s_act}, {T0}')
        e(f's_add_u32 {s_act}, {s_act}, {WS_HH}')
        e(f's_cmp_eq_u32 {s_kh}, 0')
        e(f's_cselect_b32 {T5}, {s_act}, {OOB}')
        e('s_barrier')
        self.stamp('BG1')

        def wreg(ks):
            return WP + 16 * ((ks + 6) % 10)

        def wread(ks):
            if ks < 11:
                self.tr64(wreg(ks), (ks - 4) * 8192, A1)
            elif ks < 19:
                self.tr64(wreg(ks), (ks - 11) * 8192, A2)
            else:
                if ks == 19:
                    self.tr64_addr(A2, L_WD2 + 65536)
                self.tr64(wreg(ks), (ks - 19) * 8192, A2)

        def hreg(k):
            return HF + 4 * (k % NH)

        def hlines(k):
            return [f's_add_u32 {T7}, {T5 if k == 21 else s_act}, {(k//4)*4096}',
                    f'buffer_load_dwordx4 {v(hreg(k),4)}, v1, {srd(SWS)}, {T7} offen offset:{(k%4)*1024} sc1']
        issued = [0]

        def hload():
            k = issued[0]
            if k < 22:
                for l in hlines(k):
                    e(l, tag=f'h{k}')
                issued[0] += 1
        for ks in range(11, 22):
            self.w64_dma(SWD, ks, 704, L_WD2 + (ks - 11) * 8192)
            if ks % 2 == 1:
                wread(4 + (ks - 11) // 2)
        self.stamp('wdis')
        lab = e.newlabel('nopoll'); top = e.newlabel('poll')
        e(f's_cmp_lt_u32 {s_c}, 29')
        e(f's_cbranch_scc1 {lab}')
        e.label(top)
        e('s_sleep 4')
        e(f'buffer_load_dword v14, off, {srd(SWS)}, {s_act} sc1', count=False)
        e(f's_sub_u32 {s_budget}, {s_budget}, 1')
        e(f's_max_i32 {s_budget}, {s_budget}, 0')
        e('s_waitcnt vmcnt(0)')
        e(f's_cmp_eq_u32 {s_budget}, 0')
        e(f's_cbranch_scc1 {lab}')
        e('v_cmp_eq_u32 vcc, -1, v14')
        e(f's_cbranch_vccnz {top}')
        e('s_sleep 4')
        e.label(lab)
        e.vm = []
        self.sleep(o['dly_hh'])
        for k in range(4):
            hload()
        sched = {}
        for st in range(10, 22):
            sched[int(round(1.6 * (st - 10))) + 1] = st
        for ks in range(22):
            if ks % 2 == 0:
                e.wait_vm(f'h{ks+1}')
                if ks == 0:
                    self.stamp('hin')
                    e('s_waitcnt lgkmcnt(0)')
                    e('s_barrier')
                rl = []
                for k in range(ks, issued[0]):
                    rl += hlines(k)
                self.frag_check([hreg(ks), hreg(ks + 1)], 14, rl, 'h')
            W = wreg(ks)
            for j in (2, 3, 0, 1):
                if j == 2:
                    e.wait_lg(f'w{W+4*3}')
                e(f'v_mfma_f32_16x16x32_bf16 {v(ACC+4*j,4)}, {v(W+4*j,4)}, {v(hreg(ks),4)}, ' + ('0' if ks == 0 else v(ACC + 4 * j, 4)))
                if j in (2, 0) and issued[0] < ks + 1 + LA:
                    hload()
            if ks in sched:
                wread(sched[ks])
        self.stamp('Dmma')
        self.exchange(ACC, RECV)
        for j in range(0, 8, 2):
            e(f'v_pk_fma_f32 {v(X1+j,2)}, {v(ACC+j,2)}, {v(GB+j,2)}, {v(X1+j,2)}')
        for j in range(4):
            e(f'v_cvt_pk_bf16_f32 {v(X1+j)}, {v(X1+2*j)}, {v(X1+2*j+1)}')
        e('v_bfe_u32 v14, v0, 4, 1')
        e('v_lshl_add_u32 v4, v14, 5, v4')
        e('v_lshrrev_b32 v14, 5, v0')
        e('v_lshl_add_u32 v4, v14, 4, v4')
        e(f'v_permlane16_swap_b32 {v(X1)}, {v(X1+2)}')
        e(f'v_permlane16_swap_b32 {v(X1+1)}, {v(X1+3)}')
        e(f'buffer_store_dwordx4 {v(X1,4)}, v4, {srd(SOUT)}, 0 offen {o["out_flags"]}'.rstrip())

    def finish(self):
        e = self.e
        if self.o['prof']:
            e('s_waitcnt vmcnt(0)')
            self.stamp('end')
            e('s_memrealtime s[100:101]')
            e('s_waitcnt lgkmcnt(0)')
            e(f's_lshl_b32 {T0}, s2, 3')
            e(f's_add_u32 {T0}, {T0}, {s_w}')
            e(f's_lshl_b32 {T0}, {T0}, 7')
            e(f's_add_u32 {T0}, {T0}, {WS_PROF}')
            e('v_mov_b32 v1, 0')
            vals = [f's{S_STAMP+i}' for i in range(16)] + ['s3', 's100', s_budget]
            for i, r in enumerate(vals):
                e(f'v_writelane_b32 v1, {r}, {i}')
            e('v_lshlrev_b32 v2, 2, v0')
            e('s_mov_b64 exec, 0xffffffff')
            e(f'buffer_store_dword v1, v2, {srd(SWS)}, {T0} offen')
            if self.o['enc'] >= 0:
                if self.o['enc'] == 0:
                    e('s_add_u32 s3, s3, 6000')
                else:
                    e(f's_add_u32 s3, s{S_STAMP+self.o["enc"]-1}, 6000')
                e.label('L_spin')
                e('s_sleep 1')
                e('s_memrealtime s[100:101]')
                e('s_waitcnt lgkmcnt(0)')
                e('s_sub_u32 s100, s100, s3')
                e('s_cmp_lt_i32 s100, 0')
                e('s_cbranch_scc1 L_spin')
            if self.o['prof'] >= 2:
                e(f's_cmp_lg_u32 s2, {self.o["prof"]-2}')
                e('s_cbranch_scc1 L_end')
                e(f's_cmp_lg_u32 {s_w}, 0')
                e('s_cbranch_scc1 L_end')
                e(f's_load_dwordx2 {s(SC,2)}, s[0:1], 96')
                e(f's_sub_u32 s100, s100, s3')
                e(f'v_subrev_u32 v1, s{S_STAMP}, v1')
                e(f'v_writelane_b32 v1, s100, 15')
                e(f's_sub_u32 s100, {self.o["budget"]}, {s_budget}')
                e(f'v_writelane_b32 v1, s100, 0')
                e(f's_mov_b32 s{SC+2}, 64')
                e('s_waitcnt lgkmcnt(0)')
                e(f'buffer_store_dword v1, v2, {srd(SC)}, 0 offen')
        e.label('L_end')
        e('s_endpgm')

    def build(self):
        e = self.e
        self.prologue()
        if self.o['prof']:
            e('s_waitcnt lgkmcnt(0)')
            e('s_mov_b32 s3, s98')
            for i in range(16):
                e(f's_mov_b32 s{S_STAMP+i}, 0')
        self.front()
        self.attention()
        self.att_epilogue()
        self.phase_o()
        self.phase_g()
        self.phase_d()
        self.finish()
        self.emit_stubs()
        e.label('L_code_end')
        head = open('adaLN_cond__grouped_kv_mqa__glu_gated_reglu__prompt.s.ref').read().split('; Override launch')[0]
        txt = head + '; @launch grid=(256,1,1) block=(512,1,1) lds=163840\n'
        txt += f'''.amdgcn_target "amdgcn-amd-amdhsa--gfx950"
.text
.globl {NAME}
.p2align 8
.type {NAME},@function
{NAME}:
'''
        txt += e.text()
        txt += f'''    s_endpgm
.section .rodata,"a"
.p2align 6
.amdhsa_kernel {NAME}
  .amdhsa_next_free_vgpr 256
  .amdhsa_next_free_sgpr 102
  .amdhsa_accum_offset 256
  .amdhsa_group_segment_fixed_size 0
  .amdhsa_kernarg_size 112
  .amdhsa_user_sgpr_count 2
  .amdhsa_user_sgpr_kernarg_segment_ptr 1
  .amdhsa_system_sgpr_workgroup_id_x 1
.end_amdhsa_kernel
'''
        return txt


if __name__ == '__main__':
    kw = {}
    out = sys.argv[1]
    for a in sys.argv[2:]:
        k, val = a.split('=')
        try:
            val = int(val)
        except ValueError:
            pass
        kw[k] = val
    g = Gen(**kw)
    txt = g.build()
    open(out, 'w').write(txt)
    print('nops inserted', g.e.nops, 'lines', txt.count('\n'), getattr(g, 'stamp_names', ''))
    for n, l in g.e.nop_log:
        if n >= 4:
            print('  nop', n, l)
```

```python
import sys, struct, math
from emit import Emitter, v, s

NAME = 'adaLN_cond__grouped_kv_mqa__glu_gated_reglu__prompt_kernel'


def fbits(x):
    return '0x%08x' % struct.unpack('<I', struct.pack('<f', x))[0]


DEFAULTS = dict(stamps='kernarg,B0,B2,B3,Bw2,att0,att1,opub,BO1,ypub,BO3,hhpub,BG1,Dmma,end', kvsc1=0, gskew=1, dprio=1, xp=0, rot=11, sched=2, ladder=521, gpos=0, ne_b2=4, dly_x=2, dly_q=2, ns1=10, dbar=3, pdrop=2, skip=0, enc=-1, tb1=12, la_y=12, la_h=8, prof=0, rt=0, noside=0, stop=99, D=6, nchk=10, force_slow=0,
                dly_moda=0, dly_kv=0, dly_o=0, dly_y=0, dly_hh=0, codepf=1, out_flags='', budget=60000)

WS_EPOCH = 0
WS_MODA = 0x1000
WS_MODB = 0x8000
WS_STATS = 0x10000
WS_KV = 0x40000
WS_PROF = 0x80000
WS_O = 0x200000
WS_Y = 0x400000
WS_HH = 0x600000
WS_DBG = 0x1000000
WS_SIZE = 0x10000000
OOB = 0x40000000

L_WQ = 0
L_H = 131072
L_WKV = L_H
L_MW = L_H + 16384
L_SB = L_H + 20480
L_STGA = 7 * 16384
L_QX = 65536
L_KVA = 0
L_KVB = 98304
L_WO012 = 65536 + 8192
L_WO3 = 0
L_MBW = 8192
L_WGU = 0
L_WOB = 98304
L_EX = 131072
L_STGB = 149504
L_STG16 = 157696
L_AX = 159744
L_ST = 162816
L_WD1 = 98304
L_WD2 = 0

SX, SWQ, SWKV, SWO, SWG, SWU, SWD, SC, SWM, SOUT, SWS = (4, 8, 12, 16, 20, 24, 28, 32, 36, 40, 44)
s_x, s_c, s_w, s_tb, s_cb, s_oct, s_nb, s_m, s_kh = ('s48', 's49', 's50', 's51', 's52', 's53', 's54', 's55', 's56')
s_nonce = 's57'
S_NB = 58
s_budget = 's62'
s_one = 's63'
S_RET = 64
s_hb = 's64'
s_ro = 's65'
s_wa, s_wb, s_wn, s_hb2 = 's80', 's81', 's82', 's83'
S_VM = 66
T0, T1, T2, T3, T4, T5, T6, T7 = ('s68', 's69', 's70', 's71', 's72', 's73', 's74', 's75')
s_kvb = 's76'
s_dl = 's77'
s_ds = 's78'
s_act = 's79'
S_MU = 80
S_STAMP = 84


def srd(n):
    return s(n, 4)


class Gen:
    def __init__(self, **kw):
        self.o = dict(DEFAULTS); self.o.update(kw)
        self.e = Emitter()
        self.stubs = []
        self.stamp_names = self.o['stamps'].split(',')
        assert len(self.stamp_names) <= 15

    def stamp(self, name):
        if not self.o['prof']:
            return
        names = self.stamp_names
        if name not in names:
            return
        e = self.e
        i = names.index(name)
        e('s_memrealtime s[100:101]' if self.o['rt'] else 's_memtime s[100:101]')
        e('s_waitcnt lgkmcnt(0)')
        e(f's_mov_b32 s{S_STAMP+i}, s100')

    def dma(self, rs, voff, soff_base, soff_imm, lds_base, lds_imm, tag=None, count=True, flags='', op='add'):
        e = self.e
        if lds_base is None:
            e(f's_mov_b32 m0, {lds_imm}')
        else:
            e(f's_add_u32 m0, {lds_base}, {lds_imm}')
        if soff_base is None:
            e(f's_mov_b32 {T7}, {soff_imm}'); so = T7
        elif soff_imm:
            e(f'{"s_add_u32" if op == "add" else "s_xor_b32"} {T7}, {soff_base}, {soff_imm}'); so = T7
        else:
            so = soff_base
        e(f'buffer_load_dwordx4 {v(voff)}, {srd(rs)}, {so} offen {flags} lds', tag=tag, count=count)

    def sleep(self, n):
        if n:
            self.e(f's_sleep {n}')

    def silu(self, r, t):
        e = self.e
        e(f'v_mul_f32 {v(t)}, {fbits(-1.4426950408889634)}, {v(r)}')
        e(f'v_exp_f32 {v(t)}, {v(t)}')
        e(f'v_add_f32 {v(t)}, 1.0, {v(t)}')
        e(f'v_rcp_f32 {v(t)}, {v(t)}')
        e(f'v_mul_f32 {v(r)}, {v(r)}, {v(t)}')

    def unpack(self, src, lo, hi):
        e = self.e
        if hi == src:
            e(f'v_lshlrev_b32 {v(lo)}, 16, {v(src)}')
            e(f'v_and_b32 {v(hi)}, 0xffff0000, {v(src)}')
        else:
            e(f'v_and_b32 {v(hi)}, 0xffff0000, {v(src)}')
            e(f'v_lshlrev_b32 {v(lo)}, 16, {v(src)}')

    def red4(self, a, b, c, d):
        e = self.e
        e(f'v_permlane32_swap_b32 {v(a)}, {v(b)}')
        e(f'v_permlane32_swap_b32 {v(c)}, {v(d)}')
        e(f'v_add_f32 {v(a)}, {v(a)}, {v(b)}')
        e(f'v_add_f32 {v(c)}, {v(c)}, {v(d)}')
        e(f'v_permlane16_swap_b32 {v(a)}, {v(c)}')
        e(f'v_add_f32 {v(a)}, {v(a)}, {v(c)}')
        for r in (8, 4, 2, 1):
            e(f'v_add_f32_dpp {v(a)}, {v(a)}, {v(a)} row_ror:{r} row_mask:0xf bank_mask:0xf')

    def tag_prep(self, tmp):
        e = self.e
        e(f'v_and_b32 {v(tmp)}, 3, v0')
        e(f'v_lshlrev_b32 {v(tmp)}, 3, {v(tmp)}')
        e(f'v_lshrrev_b32 {v(tmp)}, {v(tmp)}, {s_nonce}')
        e(f's_movk_i32 {T7}, 0xff')

    def tag_store(self, val, tmp, addr, soff):
        e = self.e
        e('s_mov_b64 exec, 0xffff')
        e(f'v_bfi_b32 {v(val)}, {T7}, {v(tmp)}, {v(val)}')
        e(f'buffer_store_dword {v(val)}, {v(addr)}, {srd(SWS)}, {soff} offen sc1', count=False)
        e('s_mov_b64 exec, -1')

    def gather_check(self, base, npart, tmp, loads, name):
        e = self.e
        chk = e.newlabel(name + '_chk'); ok = e.newlabel(name + '_ok'); stub = e.newlabel(name + '_stub')
        e.label(chk)
        for p in range(npart):
            for j in range(4):
                e(f'v_xor_b32 {v(base+4*p+j)}, s{S_NB+j}, {v(base+4*p+j)}')
        regs = list(range(base, base + 4 * npart))
        e(f'v_or3_b32 {v(tmp)}, {v(regs[0])}, {v(regs[1])}, {v(regs[2])}')
        i = 3
        while i < len(regs):
            if i + 1 < len(regs):
                e(f'v_or3_b32 {v(tmp)}, {v(tmp)}, {v(regs[i])}, {v(regs[i+1])}'); i += 2
            else:
                e(f'v_or_b32 {v(tmp)}, {v(tmp)}, {v(regs[i])}'); i += 1
        e(f'v_and_b32 {v(tmp)}, 0xff, {v(tmp)}')
        e(f'v_cmp_ne_u32 vcc, 0, {v(tmp)}')
        e(f's_cbranch_vccnz {stub}')
        e.label(ok)
        self.stubs.append(('reload', stub, chk, ok, loads))
        for j in range(4):
            if npart == 4:
                e(f'v_add_f32 {v(base+j)}, {v(base+j)}, {v(base+4+j)}')
                e(f'v_add_f32 {v(base+8+j)}, {v(base+8+j)}, {v(base+12+j)}')
            else:
                e(f'v_add_f32 {v(base+j)}, {v(base+j)}, {v(base+4+j)}')
        if npart == 4:
            for j in range(4):
                e(f'v_add_f32 {v(base+j)}, {v(base+j)}, {v(base+8+j)}')

    def round_mod(self, base, p0):
        e = self.e
        for rep in range(2):
            e(f'v_cvt_pk_bf16_f32 {v(p0)}, {v(base)}, {v(base+1)}')
            e(f'v_cvt_pk_bf16_f32 {v(p0+1)}, {v(base+2)}, {v(base+3)}')
            self.unpack(p0, base, base + 1)
            self.unpack(p0 + 1, base + 2, base + 3)
            if rep == 0:
                for j in range(4):
                    e(f'v_add_f32 {v(base+j)}, {s_one}, {v(base+j)}')

    def frag_check(self, regs, tmp, reissue, name):
        e = self.e
        chk = e.newlabel(name + '_chk'); ok = e.newlabel(name + '_ok'); stub = e.newlabel(name + '_stub')
        e.label(chk)
        if len(regs) == 1:
            e(f'v_cmp_eq_u32 vcc, -1, {v(regs[0])}')
        else:
            if len(regs) == 2:
                e(f'v_max_u32 {v(tmp)}, {v(regs[0])}, {v(regs[1])}')
            else:
                e(f'v_max3_u32 {v(tmp)}, {v(regs[0])}, {v(regs[1])}, {v(regs[2])}')
                for r in regs[3:]:
                    e(f'v_max_u32 {v(tmp)}, {v(tmp)}, {v(r)}')
            e(f'v_cmp_eq_u32 vcc, -1, {v(tmp)}')
        e(f's_cbranch_vccnz {stub}')
        e.label(ok)
        if isinstance(reissue, str):
            self.stubs.append(('call', stub, chk, ok, reissue))
        else:
            self.stubs.append(('reload', stub, chk, ok, reissue))

    def chk_pre(self, regs, tmp):
        e = self.e
        if len(regs) == 2:
            e(f'v_max_u32 {v(tmp)}, {v(regs[0])}, {v(regs[1])}')
        else:
            e(f'v_max3_u32 {v(tmp)}, {v(regs[0])}, {v(regs[1])}, {v(regs[2])}')
            for r in regs[3:]:
                e(f'v_max_u32 {v(tmp)}, {v(tmp)}, {v(r)}')
        e(f'v_cmp_eq_u32 vcc, -1, {v(tmp)}')

    def chk_post(self, regs, tmp, lines, name):
        e = self.e
        ok = e.newlabel(name + '_ok'); stub = e.newlabel(name + '_stub')
        e(f's_cbranch_vccnz {stub}')
        e.label(ok)

        def code():
            e.label(stub)
            e(f's_cmp_eq_u32 {s_budget}, 0')
            e(f's_cbranch_scc1 {ok}')
            e(f's_sub_u32 {s_budget}, {s_budget}, 1')
            e('s_waitcnt vmcnt(0)')
            e('s_sleep 2')
            for l in lines:
                e(l, count=False)
            e('s_waitcnt vmcnt(0)')
            self.chk_pre(regs, tmp)
            e(f's_cbranch_vccnz {stub}')
            e(f's_branch {ok}')
        self.stubs.append(('code', code))

    def emit_stubs(self):
        e = self.e
        for st in self.stubs:
            kind = st[0]
            e.flush_hist()
            if kind in ('reload', 'call'):
                _, stub, chk, ok, arg = st
                e.label(stub)
                e(f's_cmp_eq_u32 {s_budget}, 0')
                e(f's_cbranch_scc1 {ok}')
                e(f's_sub_u32 {s_budget}, {s_budget}, 1')
                if kind == 'reload':
                    e('s_waitcnt vmcnt(0)')
                    e('s_sleep 2')
                    for l in arg:
                        e(l, count=False)
                    e('s_waitcnt vmcnt(0)')
                else:
                    e('s_waitcnt vmcnt(0)')
                    e('s_sleep 2')
                    e(f's_call_b64 {s(S_RET,2)}, {arg}')
                e(f's_branch {chk}')
            elif kind == 'seq':
                _, entries = st
                for lab, lines in entries:
                    e.label(lab)
                    for l in lines:
                        e(l, count=False)
                e('s_waitcnt vmcnt(0)')
                e(f's_setpc_b64 {s(S_RET,2)}')
            elif kind == 'code':
                st[1]()

    def dump(self, regs, slot, stride_regs):
        e = self.e
        e('s_nop 7'); e('s_nop 7')
        e(f's_lshl_b32 {T6}, s2, 3')
        e(f's_add_u32 {T6}, {T6}, {s_w}')
        e(f's_mul_i32 {T6}, {T6}, {stride_regs*256}')
        e(f's_add_u32 {T6}, {T6}, {WS_DBG + slot*0x1000000}')
        e('v_lshlrev_b32 v0, 2, v0')
        for i, r in enumerate(regs):
            e(f'buffer_store_dword {v(r)}, v0, {srd(SWS)}, {T6} offen', count=False)
            e(f's_add_u32 {T6}, {T6}, 256')
        e('s_waitcnt vmcnt(0)')
        e('v_lshrrev_b32 v0, 2, v0')

    def prologue(self):
        e = self.e
        e('s_cmp_ge_u32 s2, 256')
        e('s_cbranch_scc1 L_end')
        e(f's_lshr_b32 {s_c}, s2, 3')
        e(f's_and_b32 {T0}, {s_c}, 1')
        e(f's_lshl_b32 {T0}, {T0}, 3')
        e(f's_add_u32 {T0}, {T0}, 16')
        for r, off in ((SWS, 104), (SC, 72), (SWM, 80), (SX, 0), (SWQ, 8), (SWO, 32), (SWG, 48), (SWU, 56), (SWD, 64), (SOUT, 88)):
            e(f's_load_dwordx2 {s(r,2)}, s[0:1], {off}')
        e(f's_load_dwordx2 {s(SWKV,2)}, s[0:1], {T0}')
        if self.o['prof']:
            e('s_memrealtime s[98:99]')
        e('v_lshrrev_b32 v1, 6, v0')
        e('v_and_b32 v0, 63, v0')
        e(f'v_readfirstlane_b32 {s_w}, v1')
        e(f's_and_b32 {s_x}, s2, 7')
        e(f's_lshr_b32 {s_tb}, {s_c}, 2')
        e(f's_and_b32 {s_cb}, {s_c}, 3')
        e(f's_lshr_b32 {s_oct}, {s_c}, 3')
        e(f's_and_b32 {s_nb}, {s_c}, 7')
        e(f's_and_b32 {s_m}, {s_w}, 3')
        e(f's_lshr_b32 {s_kh}, {s_w}, 2')
        if self.o['codepf']:
            lab = e.newlabel('nopf')
            e(f's_cmp_lg_u32 {s_w}, 7')
            e(f's_cbranch_scc1 {lab}')
            e(f's_cmp_ge_u32 {s_c}, (L_code_end-L_pc0)/1024')
            e(f's_cbranch_scc1 {lab}')
            e('s_getpc_b64 s[74:75]')
            e.label('L_pc0')
            e(f's_lshl_b32 {T0}, {s_c}, 10')
            e(f'v_lshl_add_u32 v2, v0, 4, {T0}')
            e('global_load_dword v255, v2, s[74:75]', count=False)
            e.label(lab)
        for r, n in ((SX, 2097152), (SWQ, 524288), (SWKV, 16384), (SWO, 524288), (SWG, 1409024), (SWU, 1409024),
                     (SWD, 1409024), (SC, 1024), (SWM, 3145728), (SOUT, 2097152), (SWS, WS_SIZE)):
            e(f's_mov_b32 s{r+2}, {n}')
            e(f's_mov_b32 s{r+3}, 0x20000')
        e(f's_mov_b32 {s_budget}, {self.o["budget"]}')
        e(f's_mov_b32 s{S_VM}, 0xffff')
        e(f's_mov_b32 s{S_VM+1}, 0xffff')

    def front(self):
        e = self.e; o = self.o
        vL16, vT16, vW32 = self.vL16, self.vT16, self.vW32
        vWQ, vT, vT2, vEP, vC, vHW = 246, 247, 248, 249, 250, 251
        XR, N, SA, CA, G = 40, 128, 56, 64, 160
        vA, vA2, vH = 240, 241, 242
        e(f'v_lshlrev_b32 {v(vL16)}, 4, v0')
        e(f'v_lshrrev_b32 {v(vT)}, 1, v0')
        e(f'v_mul_u32_u24 {v(vT)}, 6144, {v(vT)}')
        e(f'v_and_b32 {v(vT2)}, 1, v0')
        e(f'v_lshl_add_u32 {v(vW32)}, {v(vT2)}, 4, {v(vT)}')
        e(f's_lshl_b32 {T0}, {s_x}, 3')
        e(f's_add_u32 {T3}, {T0}, {s_tb}')
        e(f's_and_b32 {T4}, {T3}, 3')
        e(f's_and_b32 {T2}, {T3}, 0x3c')
        e(f's_add_u32 {T2}, {T2}, {s_cb}')
        e(f's_mul_i32 {T5}, {T4}, {128*6144}')
        e(f's_lshl_b32 {T1}, {T2}, 5')
        e(f's_add_u32 {T5}, {T5}, {T1}')
        e(f's_lshl_b32 {T6}, {T4}, 8')
        e(f'v_lshlrev_b32 v120, 2, v0')
        e(f's_lshl_b32 {T0}, {T3}, 11')
        e(f's_and_b32 {T1}, {s_cb}, 1')
        e(f's_lshl_b32 {T1}, {T1}, 10')
        e(f's_add_u32 {T0}, {T0}, {T1}')
        e(f's_lshr_b32 {T1}, {s_cb}, 1')
        e(f's_lshl_b32 {T1}, {T1}, 9')
        e(f's_add_u32 {T0}, {T0}, {T1}')
        e(f's_add_u32 {s_act}, {T0}, {WS_KV}')
        e(f's_lshl_b32 {T0}, {T3}, 5')
        e(f's_lshl_b32 {T1}, {s_w}, 2')
        e(f's_add_u32 {T0}, {T0}, {T1}')
        for i in range(4):
            e(f's_add_u32 {T1}, {s_cb}, {i}')
            e(f's_and_b32 {T1}, {T1}, 3')
            e(f's_add_u32 {T1}, {T1}, {T0}')
            e(f's_lshl_b32 s{S_MU+i}, {T1}, 10')
        e('v_mov_b32 v13, 0')

        def xload(i):
            e(f'buffer_load_dwordx4 {v(XR+4*i,4)}, {v(vL16)}, {srd(SX)}, s{S_MU+i} offen', tag=f'x{i}')

        def wq_eighth(i):
            e(f's_add_u32 {T6}, {s_tb}, {i}')
            e(f's_and_b32 {T6}, {T6}, 7')
            e(f's_lshl_b32 {T6}, {T6}, 16')
            e(f's_add_u32 {T6}, {T6}, {s_ds}')
            for j in range(4):
                self.dma(SWQ, vWQ, T6, j * 4096, s_dl, L_WQ + i * 16384 + j * 1024, count=False)

        def wkv(j0, j1):
            for j in range(j0, j1):
                self.dma(SWKV, vL16, T5, 0, None, L_WKV + j * 1024, count=False)
                e(f's_add_u32 {T5}, {T5}, 1024')
                e(f's_and_b32 {T5}, {T5}, 16383')

        def nonce():
            e(f'v_readfirstlane_b32 {s_nonce}, {v(vEP)}')
            e(f's_mul_i32 {s_nonce}, {s_nonce}, 0x9e3779b1')
            e(f's_add_u32 {s_nonce}, {s_nonce}, 0x7f4a7c15')
            for j in range(4):
                e(f's_bfe_u32 s{S_NB+j}, {s_nonce}, {hex((8<<16)|(8*j))}')

        e(f's_cmp_eq_u32 {s_w}, 0')
        e('s_cbranch_scc1 L_w0')
        e(f'v_lshrrev_b32 {v(vT)}, 4, v0')
        e(f'v_lshlrev_b32 {v(vT2)}, 2, {v(vT)}')
        e(f'v_xor_b32 {v(vT2)}, {v(vT2)}, v0')
        e(f'v_and_b32 {v(vT2)}, 15, {v(vT2)}')
        e(f'v_lshlrev_b32 {v(vT2)}, 4, {v(vT2)}')
        e(f'v_lshl_add_u32 {v(vWQ)}, {v(vT)}, 10, {v(vT2)}')
        e(f's_lshl_b32 {T0}, {s_cb}, 8')
        e(f'v_add_u32 {v(vWQ)}, {T0}, {v(vWQ)}')
        e(f's_lshl_b32 {s_dl}, {s_m}, 12')
        e(f's_lshl_b32 {s_ds}, {s_m}, 14')
        e('s_waitcnt lgkmcnt(0)')
        self.stamp('kernarg')
        self.sleep(o['dly_x'])
        e(f'buffer_load_dword {v(vEP)}, off, {srd(SWS)}, 0 sc1')
        xload(0)
        e(f's_cmp_lt_u32 {s_w}, 4')
        e('s_cbranch_scc1 L_w123')
        wq_eighth(0)
        e(f's_lshl_b32 {T5}, {s_tb}, 11')
        e(f's_cmp_lg_u32 {s_w}, 4')
        e('s_cbranch_scc1 L_not4a')
        wkv(0, 2)
        e.label('L_not4a')
        e(f's_cmp_lg_u32 {s_w}, 5')
        e('s_cbranch_scc1 L_w123')
        e(f's_and_b32 {T0}, {T3}, 1')
        e(f's_lshl_b32 {T0}, {T0}, 9')
        e(f'v_lshlrev_b32 {v(vT)}, 3, v0')
        e(f'buffer_load_dwordx2 v[14:15], {v(vT)}, {srd(SC)}, {T0} offen')
        e.label('L_w123')
        self.att_setup()
        e('s_barrier')
        self.stamp('B0')
        for i in (1, 2, 3):
            xload(i)
        e(f's_cmp_lg_u32 {s_w}, 4')
        e('s_cbranch_scc1 L_b1')
        wkv(2, 16)
        e('s_branch L_b1')
        e.label('L_w0')
        e.flush_hist()
        e.vm = []
        e(f'v_mov_b32 {v(vWQ)}, 0')
        e('v_mov_b32 v122, -1')
        e('v_mov_b32 v123, -1')
        e(f'v_lshlrev_b32 v121, 3, v0')
        e('s_setprio 3')
        e('s_waitcnt lgkmcnt(0)')
        self.stamp('kernarg')
        e(f'buffer_load_dword {v(vC)}, v120, {srd(SC)}, {T6} offen')
        e(f'buffer_load_dword {v(vEP)}, off, {srd(SWS)}, 0 sc1', tag='c')
        for j in range(4):
            self.dma(SWM, vW32, T5, j * 32 * 6144, None, L_MW + j * 1024, tag='mw')
        e(f'buffer_store_dwordx2 v[122:123], v121, {srd(SWS)}, {s_act} offen sc1', tag='clr')
        xload(0)
        e(f's_lshl_b32 {T4}, {T4}, 12')
        e(f's_lshl_b32 {T2}, {T2}, 6')
        e(f's_add_u32 {T4}, {T4}, {T2}')
        e(f's_add_u32 {T4}, {T4}, {WS_MODA}')
        e(f'v_lshrrev_b32 v124, 4, v0')
        e(f'v_and_b32 v125, 15, v0')
        e(f'v_lshlrev_b32 v125, 3, v125')
        e(f'v_lshl_add_u32 v125, v124, 8, v125')
        e(f'v_add_u32 v125, {L_MW}, v125')
        e(f'v_lshlrev_b32 v124, 4, v124')
        e(f'v_add_u32 v124, {L_SB}, v124')
        e(f'v_add_u32 v121, {L_SB}, v120')
        e.wait_vm('c')
        self.stamp('w0c')
        self.unpack(vC, 126, 127)
        self.silu(126, 122); self.silu(127, 123)
        e('v_cvt_pk_bf16_f32 v126, v126, v127')
        e(f'ds_write_b32 v121, v126')
        for ks in range(4):
            e(f'ds_read_b128 {v(176+4*ks,4)}, v124 offset:{ks*64}')
        nonce()
        self.tag_prep(122)
        e.wait_vm('mw')
        self.stamp('w0w')
        for ks in range(4):
            e(f'ds_read_b64_tr_b16 {v(192+4*ks,2)}, v125 offset:{ks*1024}')
            e(f'ds_read_b64_tr_b16 {v(194+4*ks,2)}, v125 offset:{ks*1024+128}', tag=f'mw{ks}')
        for ks in range(4):
            e.wait_lg(f'mw{ks}')
            e(f'v_mfma_f32_16x16x32_bf16 v[208:211], {v(176+4*ks,4)}, {v(192+4*ks,4)}, ' + ('0' if ks == 0 else 'v[208:211]'))
        e.wait_vm('clr')
        self.tag_store(208, 122, 120, T4)
        self.stamp('w0st')
        e('s_setprio 0')
        e('s_barrier')
        self.stamp('B0')
        for i in (1, 2, 3):
            xload(i)
        self.att_setup()
        e.label('L_b1')
        e.flush_hist()
        e('s_waitcnt vmcnt(0)')
        self.stamp('xin')
        gloads = []
        for p in range(4):
            gloads += [f's_mov_b32 {T4}, {WS_MODA + p*4096}',
                       f'buffer_load_dwordx4 {v(G+4*p,4)}, {v(vT16)}, {srd(SWS)}, {T4} offen sc1']

        def gissue():
            lab = e.newlabel('nog')
            e(f's_cmp_ge_u32 {s_w}, 4')
            e(f's_cbranch_scc1 {lab}')
            for l in gloads:
                e(l, count=False)
            e.label(lab)
        gp = o['gpos']
        if gp == 0:
            gissue()
        nonce()
        for i in range(4):
            for j in range(4):
                self.unpack(XR + 4 * i + j, N + 8 * i + 2 * j, N + 8 * i + 2 * j + 1)
        if gp == 1:
            gissue()
        for i in range(4):
            e(f'v_add_f32 {v(XR+i)}, {v(N+8*i)}, {v(N+8*i+1)}')
        for j in range(2, 8):
            for i in range(4):
                e(f'v_add_f32 {v(XR+i)}, {v(XR+i)}, {v(N+8*i+j)}')
        self.red4(XR, XR + 1, XR + 2, XR + 3)
        e(f'v_mul_f32 {v(XR)}, {fbits(1.0/512)}, {v(XR)}')
        for i, ln in enumerate((0, 32, 16, 48)):
            e(f'v_readlane_b32 s{S_MU+i}, {v(XR)}, {ln}')
        if gp == 2:
            gissue()
        for i in range(4):
            for j in range(8):
                e(f'v_subrev_f32 {v(N+8*i+j)}, s{S_MU+i}, {v(N+8*i+j)}')
        for i in range(4):
            e(f'v_mul_f32 {v(XR+i)}, {v(N+8*i)}, {v(N+8*i)}')
        for j in range(1, 8):
            for i in range(4):
                e(f'v_fmac_f32 {v(XR+i)}, {v(N+8*i+j)}, {v(N+8*i+j)}')
        if gp == 3:
            gissue()
        e(f's_cmp_lt_u32 {s_w}, 4')
        e('s_cbranch_scc1 L_nl1')
        wq_eighth(1)
        e.label('L_nl1')
        self.red4(XR, XR + 1, XR + 2, XR + 3)
        e(f'v_mov_b32 {v(XR+1)}, {fbits(1e-5)}')
        e(f'v_fmac_f32 {v(XR+1)}, {fbits(1.0/512)}, {v(XR)}')
        e(f'v_rsq_f32 {v(XR)}, {v(XR+1)}')
        for i, ln in enumerate((0, 32, 16, 48)):
            e(f'v_readlane_b32 s{S_MU+i}, {v(XR)}, {ln}')
        for i in range(4):
            for j in range(8):
                e(f'v_mul_f32 {v(N+8*i+j)}, s{S_MU+i}, {v(N+8*i+j)}')
        e(f's_lshl_b32 {T0}, {s_tb}, 3')
        e(f'v_subrev_u32 {v(vHW)}, {T0}, v0')
        e(f'v_and_b32 {v(vHW)}, 63, {v(vHW)}')
        e(f'v_lshlrev_b32 {v(vHW)}, 9, {v(vHW)}')
        e(f'v_add_u32 {v(vHW)}, {L_H}, {v(vHW)}')
        e(f'v_and_b32 {v(vT)}, 7, v0')
        e(f's_lshl_b32 {T0}, {s_w}, 2')
        for i in range(4):
            e(f's_add_u32 {T1}, {s_cb}, {i}')
            e(f's_and_b32 {T1}, {T1}, 3')
            e(f's_add_u32 {T1}, {T1}, {T0}')
            e(f'v_xor_b32 {v(vT2)}, {T1}, {v(vT)}')
            e(f'v_lshl_add_u32 {v(XR+i)}, {v(vT2)}, 4, {v(vHW)}')
        e(f'v_lshlrev_b32 {v(vT)}, 5, v0')
        e(f'v_add_u32 {v(vT)}, {L_STGA}, {v(vT)}')
        self.stamp('ln')
        e(f's_cmp_ge_u32 {s_w}, 4')
        e('s_cbranch_scc1 L_ld2')
        e(f's_cmp_ge_u32 {s_w}, 2')
        e(f's_cselect_b32 {s_one}, 1.0, 0')
        e('v_bfe_u32 v120, v0, 2, 2')
        e('v_lshrrev_b32 v121, 5, v0')
        e('v_lshl_add_u32 v121, v121, 3, v120')
        e(f'v_lshlrev_b32 {v(vA)}, 8, v121')
        e(f'v_xor_b32 v120, {s_m}, v120')
        e(f'v_lshl_add_u32 {v(vA)}, v120, 6, {v(vA)}')
        e('v_bfe_u32 v120, v0, 4, 1')
        e(f'v_lshl_add_u32 {v(vA)}, v120, 5, {v(vA)}')
        e('v_and_b32 v120, 3, v0')
        e(f'v_lshl_add_u32 {v(vA)}, v120, 3, {v(vA)}')
        e(f'v_add_u32 {v(vA2)}, 65536, {v(vA)}')
        e('v_and_b32 v120, 31, v0')
        e('v_lshrrev_b32 v121, 5, v0')
        e('v_xor_b32 v120, v120, v121')
        e('v_lshlrev_b32 v120, 4, v120')
        e('v_lshl_add_u32 v120, v121, 9, v120')
        e(f'v_add_u32 {v(vH)}, {L_H}, v120')
        for j in (1, 2, 3):
            e(f'v_xor_b32 {v(vH+j)}, {32*j}, {v(vH)}')
        e(f'v_add_u32 v120, {L_STGA}, {v(vT16)}')
        e('s_waitcnt vmcnt(0)')
        self.stamp('gin')
        self.gather_check(G, 4, vT2, gloads, 'ga')
        self.stamp('gok')
        self.round_mod(G, G + 4)
        e(f'ds_write_b128 v120, {v(G,4)}')
        e('s_branch L_b2')
        e.label('L_ld2')
        e.flush_hist()
        e(f's_cmp_lg_u32 {s_w}, 4')
        e('s_cbranch_scc1 L_not4b')
        e(f'v_lshrrev_b32 v122, 4, v0')
        e(f'v_and_b32 v13, 15, v0')
        e(f'v_lshlrev_b32 v13, 3, v13')
        e(f'v_lshl_add_u32 v13, v122, 8, v13')
        e(f'v_add_u32 v13, {L_WKV}, v13')
        for ks in range(16):
            e(f'ds_read_b64_tr_b16 {v(176+4*ks,2)}, v13 offset:{ks*1024}')
            e(f'ds_read_b64_tr_b16 {v(178+4*ks,2)}, v13 offset:{ks*1024+128}')
        e(f's_lshr_b32 {T0}, {s_cb}, 1')
        e(f's_lshl_b32 {T0}, {T0}, 4')
        e(f'v_and_b32 v120, 15, v0')
        e(f'v_add_u32 v120, {T0}, v120')
        e(f'v_xor_b32 v120, v120, v122')
        e(f'v_lshlrev_b32 v120, 4, v120')
        e(f'v_lshl_add_u32 v120, v122, 9, v120')
        e(f'v_add_u32 v120, {L_H}, v120')
        e(f'v_xor_b32 v121, 64, v120')
        e(f's_bitcmp1_b32 {s_cb}, 0')
        e(f's_cselect_b32 {T0}, 3, 8')
        e(f's_cselect_b32 {T1}, 8, 3')
        e(f'v_and_b32 v13, 15, v0')
        e(f'v_lshlrev_b32 v13, 4, v13')
        e(f'v_and_b32 v123, 1, v122')
        e(f'v_lshl_add_u32 v13, v123, {T0}, v13')
        e(f'v_lshrrev_b32 v123, 1, v122')
        e(f'v_lshl_add_u32 v13, v123, {T1}, v13')
        e('s_branch L_ld3')
        e.label('L_not4b')
        e(f's_cmp_lg_u32 {s_w}, 5')
        e('s_cbranch_scc1 L_ld3')
        self.unpack(14, 120, 121); self.unpack(15, 122, 123)
        for r in (120, 121, 122, 123):
            self.silu(r, 14)
        e('v_cvt_pk_bf16_f32 v14, v120, v121')
        e('v_cvt_pk_bf16_f32 v15, v122, v123')
        e.label('L_ld3')
        NE = o['ne_b2']
        for i in range(2, NE):
            wq_eighth(i)
        e.label('L_b2')
        e.flush_hist()
        e('s_waitcnt lgkmcnt(0)')
        e('s_barrier')
        self.stamp('B2')
        e(f'ds_read_b128 {v(SA,4)}, {v(vT)}')
        e(f'ds_read_b128 {v(CA,4)}, {v(vT)} offset:2048', tag='m0')
        e(f'ds_read_b128 {v(SA+4,4)}, {v(vT)} offset:16')
        e(f'ds_read_b128 {v(CA+4,4)}, {v(vT)} offset:2064', tag='m1')
        e.wait_lg('m1')
        for i in range(4):
            for j in range(0, 8, 2):
                e(f'v_pk_fma_f32 {v(N+8*i+j,2)}, {v(N+8*i+j,2)}, {v(CA+j,2)}, {v(SA+j,2)}')
            for j in range(4):
                e(f'v_cvt_pk_bf16_f32 {v(N+8*i+j)}, {v(N+8*i+2*j)}, {v(N+8*i+2*j+1)}')
            e(f'ds_write_b128 {v(XR+i)}, {v(N+8*i,4)}')
        e('s_waitcnt vmcnt(0) lgkmcnt(0)')
        e('s_barrier')
        self.stamp('B3')
        e(f's_cmp_lt_u32 {s_w}, 4')
        e('s_cbranch_scc1 L_qw')
        e(f's_cmp_lg_u32 {s_w}, 4')
        e('s_cbranch_scc1 L_not4c')
        e('s_setprio 3')
        hf = lambda ks: (40 + 4 * ks) if ks < 8 else (128 + 4 * (ks - 8))
        for ks in range(16):
            e(f'ds_read_b128 {v(hf(ks),4)}, v{120+ks%2} offset:{ks*2048}', tag=f'h{ks}')
        e(f's_bitcmp1_b32 {s_cb}, 0')
        e('s_cbranch_scc1 L_isv')
        lgsave = list(e.lg)
        for isv in (0, 1):
            if isv:
                e.label('L_isv'); e.flush_hist(); e.lg = list(lgsave)
            for ks in range(16):
                e.wait_lg(f'h{ks}')
                acc = 160 + 4 * (ks % 2)
                W, H = v(176 + 4 * ks, 4), v(hf(ks), 4)
                A, B = (H, W) if isv else (W, H)
                e(f'v_mfma_f32_16x16x32_bf16 {v(acc,4)}, {A}, {B}, ' + ('0' if ks < 2 else v(acc, 4)))
            e(f'v_pk_add_f32 v[160:161], v[160:161], v[164:165]')
            e(f'v_pk_add_f32 v[162:163], v[162:163], v[166:167]')
            if not isv:
                for j in range(4):
                    e(f'v_mul_f32 {v(160+j)}, {fbits(0.25*1.4426950408889634)}, {v(160+j)}')
                e('s_branch L_kvst')
        e.label('L_kvst')
        e('v_cvt_pk_bf16_f32 v160, v160, v161')
        e('v_cvt_pk_bf16_f32 v161, v162, v163')
        e(f'buffer_store_dwordx2 v[160:161], v13, {srd(SWS)}, {s_act} offen sc1', count=False)
        e('s_setprio 0')
        self.stamp('kvst')
        e.label('L_not4c')
        e.flush_hist()
        for i in range(NE, 8):
            wq_eighth(i)
        self.att_setup2()
        e('s_waitcnt vmcnt(0)')
        self.sleep(o['dly_kv'])
        e('s_barrier')
        self.stamp('Bw2')
        e.vm = []
        for r in range(4):
            self.kv_dma(r)
        self.kv_verify(0, 4)
        e('s_barrier')
        e(f'ds_read_b128 v[16:19], v39 offset:4096')
        e(f'ds_read_b128 v[20:23], v39')
        for r in range(4, 8):
            self.kv_dma(r)
        for i in range(3):
            self.w64_dma(SWO, i, 256, L_WO012 + i * 8192)
        e('s_branch L_att')
        e.label('L_qw')
        e.flush_hist(); e.vm = []; e.lg = []
        RING = 4

        def qreads(ks):
            r = 176 + 8 * (ks % RING)
            base = vA if ks < 16 else vA2
            off = (ks % 16) * 4096
            e(f'ds_read_b64_tr_b16 {v(r,2)}, {v(base)} offset:{off}')
            e(f'ds_read_b64_tr_b16 {v(r+2,2)}, {v(base)} offset:{off+1024}')
            e(f'ds_read_b128 {v(r+4,4)}, {v(vH+ks%4)} offset:{ks*1024}', tag=f'q{ks}')

        def qseg(k0, k1, hook=None):
            for ks in range(k0, min(k0 + RING - 1, k1)):
                qreads(ks)
            for ks in range(k0, k1):
                if ks + RING - 1 < k1:
                    qreads(ks + RING - 1)
                e.wait_lg(f'q{ks}')
                r = 176 + 8 * (ks % RING)
                e(f'v_mfma_f32_32x32x16_bf16 v[40:55], {v(r,4)}, {v(r+4,4)}, ' + ('0' if ks == 0 else 'v[40:55]'))
                if hook:
                    hook(ks)
        self.att_setup2()
        self.sleep(o['dly_q'])
        qseg(0, 4 * NE)
        e('s_barrier')
        self.stamp('Bw2')
        e.vm = []
        self.kv_dma(0)
        qseg(4 * NE, 32, lambda ks: self.kv_dma(ks - 4 * NE + 1) if ks - 4 * NE < 3 else None)
        for j in range(8):
            e(f'v_cvt_pk_bf16_f32 {v(16+j)}, {v(40+2*j)}, {v(41+2*j)}')
        e(f'ds_write_b128 v39, v[16:19]')
        e(f'ds_write_b128 v39, v[20:23] offset:4096')
        self.stamp('qdone')
        self.kv_verify(0, 4)
        e('s_barrier')
        e.label('L_att')
        e.flush_hist()
        e.vm = []

    vKV, vIDX, vOA, vW32, vYA, vHA, vSTA, vWO = 1, 2, 3, 4, 5, 6, 7, 8
    vWGU = ((9, 10, 116), (117, 118, 119))
    vT16, vKL, vL16, vQX = 36, 37, 38, 39
    vTR = 11
    vTMP = 12
    vTMP2 = 13
    Q0, Q1 = 16, 20
    GB, XRES = 24, 32
    S0, S1, O0, O1, KVB, WOA, STASH = 40, 56, 72, 88, 104, 128, 192

    def att_setup(self):
        e = self.e
        t, t2, t3 = 24, 25, 26
        e(f'v_and_b32 {v(t)}, 15, v0')
        e(f'v_lshlrev_b32 {v(t)}, 4, {v(t)}')
        e(f'v_lshrrev_b32 {v(t2)}, 5, v0')
        e(f'v_lshl_add_u32 {v(t2)}, {v(t2)}, 8, {v(t)}')
        e(f'v_bfe_u32 {v(t3)}, v0, 4, 1')
        e(f'v_lshl_add_u32 {v(self.vKV)}, {v(t3)}, 9, {v(t2)}')
        e(f's_lshl_b32 {T0}, {s_kh}, 11')
        e(f'v_add_u32 {v(self.vKL)}, {T0}, {v(self.vKV)}')
        e(f's_lshl_b32 {T0}, {s_w}, 10')
        e(f'v_add_u32 {v(self.vT16)}, {T0}, {v(self.vL16)}')
        e(f'v_mov_b32 {v(self.vIDX)}, 0xdddddddd')
        e(f's_lshl_b32 {T0}, {s_x}, 3')
        e(f's_add_u32 {T0}, {T0}, {s_tb}')
        e(f's_lshl_b32 {T0}, {T0}, 15')
        e(f's_lshl_b32 {T1}, {s_cb}, 2')
        e(f's_add_u32 {T1}, {T1}, {s_m}')
        e(f's_lshl_b32 {T1}, {T1}, 1')
        e(f's_add_u32 {T1}, {T1}, {s_kh}')
        e(f's_lshl_b32 {T1}, {T1}, 9')
        e(f's_add_u32 {T0}, {T0}, {T1}')
        e(f's_add_u32 {T0}, {T0}, {WS_O}')
        e(f'v_lshl_add_u32 {v(self.vOA)}, {v(t3)}, 14, {v(t2)}')
        e(f'v_add_u32 {v(self.vOA)}, {T0}, {v(self.vOA)}')
        e(f's_lshl_b32 {T0}, {s_x}, 3')
        e(f's_add_u32 {T0}, {T0}, {s_w}')
        e(f's_mul_i32 {T0}, {T0}, {2*44032}')
        e(f's_mul_i32 {T1}, {s_c}, 1536')
        e(f's_add_u32 {T0}, {T0}, {T1}')
        e(f's_add_u32 {T0}, {T0}, {WS_HH}')
        e(f's_cmp_ge_u32 {s_c}, 29')
        e(f's_cselect_b32 {T0}, {OOB}, {T0}')
        e(f'v_mul_u32_u24 {v(self.vHA)}, 44032, {v(t3)}')
        e(f'v_add3_u32 {v(self.vHA)}, {v(self.vHA)}, {v(t2)}, {T0}')
        e(f's_lshl_b32 {T0}, {s_x}, 2')
        e(f's_add_u32 {T0}, {T0}, {s_oct}')
        e(f's_lshl_b32 {T0}, {T0}, 1')
        e(f's_lshr_b32 {T1}, {s_m}, 1')
        e(f's_add_u32 {T1}, {T1}, {T0}')
        e(f's_lshl_b32 {T1}, {T1}, 15')
        e(f's_lshl_b32 {T2}, {s_nb}, 1')
        e(f's_add_u32 {T2}, {T2}, {s_kh}')
        e(f's_lshl_b32 {T2}, {T2}, 11')
        e(f's_add_u32 {T1}, {T1}, {T2}')
        e(f's_and_b32 {T2}, {s_m}, 1')
        e(f's_lshl_b32 {T2}, {T2}, 8')
        e(f's_add_u32 {T1}, {T1}, {T2}')
        e(f's_add_u32 {T1}, {T1}, {WS_Y}')
        e(f'v_lshrrev_b32 {v(t3)}, 4, v0')
        e(f'v_lshl_add_u32 {v(self.vYA)}, {v(t3)}, 9, {v(t)}')
        e(f'v_add_u32 {v(self.vYA)}, {T1}, {v(self.vYA)}')
        e(f's_lshl_b32 {T0}, {T0}, 11')
        e(f's_lshl_b32 {T1}, {s_nb}, 8')
        e(f's_add_u32 {T0}, {T0}, {T1}')
        e(f's_add_u32 {T0}, {T0}, {WS_STATS}')
        e(f's_cmp_eq_u32 {s_w}, 7')
        e(f's_cselect_b32 {T0}, {T0}, {OOB}')
        e(f'v_and_b32 {v(t)}, 31, v0')
        e(f'v_lshlrev_b32 {v(t)}, 3, {v(t)}')
        e(f'v_lshrrev_b32 {v(t2)}, 5, v0')
        e(f'v_lshl_add_u32 {v(t)}, {v(t2)}, 11, {v(t)}')
        e(f'v_add_u32 {v(self.vSTA)}, {T0}, {v(t)}')
        e(f'v_bfe_u32 {v(t)}, v0, 1, 2')
        e(f'v_xor_b32 {v(t)}, {v(t)}, {v(t3)}')
        e(f'v_lshlrev_b32 {v(t)}, 5, {v(t)}')
        e(f'v_lshrrev_b32 {v(t2)}, 3, v0')
        e(f'v_lshl_add_u32 {v(t)}, {v(t2)}, 10, {v(t)}')
        e(f'v_and_b32 {v(t2)}, 1, v0')
        e(f'v_lshl_add_u32 {v(t)}, {v(t2)}, 4, {v(t)}')
        e(f's_lshl_b32 {T0}, {s_nb}, 7')
        e(f'v_add_u32 {v(self.vWO)}, {T0}, {v(t)}')
        e(f's_mul_i32 {T0}, {s_c}, 96')
        e(f's_lshl_b32 {T1}, {s_w}, 6')
        e(f's_and_b32 {T2}, {s_nb}, 3')
        e(f's_lshl_b32 {T2}, {T2}, 6')
        e(f's_lshr_b32 {s_hb}, {s_nb}, 2')
        e(f's_mul_i32 {s_hb}, {s_hb}, {256*2752}')
        if not self.o['rot'] & 4:
            e(f's_mov_b32 {T2}, 0')
            e(f's_mov_b32 {s_hb}, 0')
        for u in range(3):
            e(f'v_add_u32 {v(t)}, {T1}, v0')
            e(f'v_mul_u32_u24 {v(t2)}, 43691, {v(t)}')
            e(f'v_lshrrev_b32 {v(t2)}, 18, {v(t2)}')
            e(f'v_mul_u32_u24 v27, 6, {v(t2)}')
            e(f'v_sub_u32 {v(t)}, {v(t)}, v27')
            e(f'v_lshl_add_u32 {v(t)}, {v(t)}, 4, {T0}')
            e(f'v_xor_b32 {v(t2)}, {T2}, {v(t2)}')
            e(f'v_mul_u32_u24 v27, 2752, {v(t2)}')
            e(f'v_add_u32 {v(self.vWGU[0][u])}, v27, {v(t)}')
            e(f'v_xor_b32 {v(t2)}, 4, {v(t2)}')
            e(f'v_mul_u32_u24 v27, 2752, {v(t2)}')
            e(f'v_add_u32 {v(self.vWGU[1][u])}, v27, {v(t)}')
            e(f's_add_u32 {T1}, {T1}, 512')
        e(f'v_lshrrev_b32 {v(t)}, 2, v0')
        e(f'v_xor_b32 {v(t2)}, {s_m}, {v(t)}')
        e(f'v_and_b32 {v(t2)}, 3, {v(t2)}')
        e(f'v_lshlrev_b32 {v(t2)}, 6, {v(t2)}')
        e(f'v_lshl_add_u32 {v(t2)}, {v(t)}, 8, {v(t2)}')
        e(f'v_and_b32 {v(t)}, 3, v0')
        e(f'v_lshl_add_u32 {v(t2)}, {v(t)}, 4, {v(t2)}')
        e(f'v_add_u32 {v(self.vQX)}, {L_QX}, {v(t2)}')
        e(f'v_bfe_u32 {v(t)}, v0, 2, 3')
        e(f'v_lshrrev_b32 {v(t2)}, 5, v0')
        e(f'v_lshl_add_u32 {v(t2)}, {v(t2)}, 4, {v(t)}')
        e(f'v_lshlrev_b32 {v(t2)}, 7, {v(t2)}')
        e(f'v_lshrrev_b32 {v(t)}, 1, {v(t)}')
        e(f's_lshl_b32 {T0}, {s_kh}, 1')
        e(f'v_xor_b32 {v(t)}, {T0}, {v(t)}')
        e(f'v_lshl_add_u32 {v(t2)}, {v(t)}, 5, {v(t2)}')
        e(f'v_and_b32 {v(t)}, 3, v0')
        e(f'v_lshl_add_u32 {v(t2)}, {v(t)}, 3, {v(t2)}')
        e(f's_lshl_b32 {T0}, {s_kh}, 12')
        e(f'v_add_u32 {v(self.vTR)}, {T0}, {v(t2)}')
        e(f'v_and_b32 {v(t)}, 27, v0')
        e(f'v_cmp_eq_u32 vcc, 16, {v(t)}')
        e(f'v_mov_b32 {v(t2)}, 0x3f803f80')
        e(f'v_cndmask_b32 {v(t)}, 0, {v(t2)}, vcc')
        for j in range(8):
            e(f'v_mov_b32 {v(self.KVB+4+j)}, {v(t)}')
        for j in range(32):
            e(f'v_mov_b32 {v(self.O0+j)}, 0')
        for j in range(4):
            e(f'v_mov_b32 {v(self.GB+j)}, -1')

    def att_setup2(self):
        e = self.e
        self.w64_bases(256)
        e(f's_bfe_u32 {T0}, {s_w}, 0x10001')
        e(f's_lshl_b32 {s_kvb}, {T0}, 16')
        e(f's_lshl_b32 {T0}, {s_kh}, 11')
        e(f's_add_u32 {s_kvb}, {s_kvb}, {T0}')
        e(f's_and_b32 {T0}, {s_w}, 1')
        e(f's_lshl_b32 {T0}, {T0}, 10')
        e(f's_add_u32 {s_kvb}, {s_kvb}, {T0}')
        e(f's_add_u32 {s_kvb}, {s_kvb}, {WS_KV}')
        if self.o['rot'] & 1:
            e(f's_lshl_b32 {T0}, {s_cb}, 14')
            e(f's_add_u32 {s_kvb}, {s_kvb}, {T0}')
        e(f's_lshl_b32 {T0}, {s_oct}, 1')
        e(f's_xor_b32 {s_ro}, {T0}, {s_nb}')
        if not self.o['rot'] & 2:
            e(f's_mov_b32 {s_ro}, 0')
        e(f's_lshl_b32 {T0}, {s_ro}, 15')
        e(f's_add_u32 {s_ds}, {s_ds}, {T0}')
        e(f's_lshl_b32 {T0}, {s_oct}, 1')
        e(f's_add_u32 {T0}, {T0}, {s_nb}')
        e(f's_and_b32 {T0}, {T0}, 7')
        e(f's_mul_i32 {T0}, {T0}, 11')
        e(f's_lshr_b32 {T0}, {T0}, 2')
        if not self.o['rot'] & 8:
            e(f's_mov_b32 {T0}, 0')
        e(f's_sub_u32 {T1}, 22, {s_kh}')
        e(f's_sub_u32 {s_wn}, {T1}, {T0}')
        e(f's_mul_i32 {T2}, {s_kh}, 22')
        e(f's_add_u32 {T2}, {T2}, {T0}')
        e(f's_lshl_b32 {s_wa}, {T2}, 15')
        e(f's_lshl_b32 {T0}, {s_m}, 13')
        e(f's_add_u32 {s_wa}, {s_wa}, {T0}')
        e(f's_lshl_b32 {T1}, {T1}, 15')
        e(f's_sub_u32 {s_wb}, {s_wa}, {T1}')

    def rot_lines(self, k, a, b, stride):
        L = [f's_cmp_gt_u32 {s_wn}, {k}', f's_cselect_b32 {T7}, {a}, {b}', f's_add_u32 {T7}, {T7}, {k*stride}']
        if k == 21:
            L += [f's_cmp_eq_u32 {s_kh}, 0', f's_cselect_b32 {T7}, {T7}, {OOB}']
        return L

    def wd_dma(self, k, lds_addr):
        for l in self.rot_lines(k, s_wa, s_wb, 32768):
            self.e(l)
        self.dma(SWD, self.vWO, T7, 0, s_dl, lds_addr)

    def kv_lines(self, soff):
        b = self.KVB
        L = []
        L.append(f'buffer_load_dwordx4 {v(b,4)}, {v(self.vKV)}, {srd(SWS)}, {soff} offen sc1')
        L.append(f's_mov_b64 exec, {s(S_VM,2)}')
        L.append(f'buffer_load_dwordx4 {v(b+4,4)}, {v(self.vKV)}, {srd(SWS)}, {soff} offen offset:1024 sc1')
        L.append(f'buffer_load_dwordx4 {v(b+8,4)}, {v(self.vKV)}, {srd(SWS)}, {soff} offen offset:1536 sc1')
        L.append('s_mov_b64 exec, -1')
        return L

    def kv_dma(self, r, count=True):
        self.dma(SWS, self.vL16, s_kvb, r * 4096, s_dl, (L_KVA + r * 8192) if r < 8 else (L_KVB + (r - 8) * 8192),
                 tag=f'kv{r}', count=count, flags='sc1', op='xor')

    def kv_verify(self, r0, r1):
        e = self.e
        T = 232
        chk = e.newlabel('kv_chk'); ok = e.newlabel('kv_ok'); stub = e.newlabel('kv_stub')
        if r1 > 8:
            e(f'v_add_u32 {v(self.vTMP2)}, {L_KVB}, {v(self.vT16)}')
        e.wait_vm(f'kv{r1-1}')
        e.label(chk)
        for r in range(r0, r1):
            if r < 8:
                e(f'ds_read_b32 {v(T+r-r0)}, {v(self.vT16)} offset:{L_KVA+r*8192}')
            else:
                e(f'ds_read_b32 {v(T+r-r0)}, {v(self.vTMP2)} offset:{(r-8)*8192}')
        e('s_waitcnt lgkmcnt(0)')
        n = r1 - r0
        e(f'v_max_u32 {v(T)}, {v(T)}, {v(T+1)}')
        for i in range(2, n, 2):
            e(f'v_max3_u32 {v(T)}, {v(T)}, {v(T+i)}, {v(T+i+1)}')
        e(f'v_cmp_eq_u32 vcc, -1, {v(T)}')
        e(f's_cbranch_vccnz {stub}')
        e.label(ok)

        def code():
            e.label(stub)
            e(f's_cmp_eq_u32 {s_budget}, 0')
            e(f's_cbranch_scc1 {ok}')
            e(f's_sub_u32 {s_budget}, {s_budget}, 1')
            e('s_sleep 2')
            for r in range(r0, r1):
                self.kv_dma(r, count=False)
            e('s_waitcnt vmcnt(0)')
            e(f's_branch {chk}')
        self.stubs.append(('code', code))

    def tr64(self, dst, step_off, region_reg_base, js=range(4)):
        e = self.e
        for j in js:
            e(f'ds_read_b64_tr_b16 {v(dst+4*j,2)}, {v(region_reg_base+j)} offset:{step_off}')
            e(f'ds_read_b64_tr_b16 {v(dst+4*j+2,2)}, {v(region_reg_base+j)} offset:{step_off+1024}', tag=f'w{dst+4*j}')

    def tr64_addr(self, base, region):
        e = self.e
        e(f'v_add_u32 {v(base)}, {region}, {v(self.vTR)}')
        for j in (1, 2, 3):
            e(f'v_xor_b32 {v(base+j)}, {32*j}, {v(base)}')

    def w64_dma(self, rs, step, halfrows, lds_addr, tag=None):
        self.dma(rs, self.vWO, s_ds, step * 32768, s_dl, lds_addr, tag=tag, op='xor')

    def w64_bases(self, halfrows):
        e = self.e
        e(f's_lshl_b32 {s_dl}, {s_w}, 10')
        e(f's_mul_i32 {s_ds}, {s_kh}, {halfrows*1024}')
        e(f's_lshl_b32 {T0}, {s_m}, 13')
        e(f's_add_u32 {s_ds}, {s_ds}, {T0}')

    def attention(self):
        e = self.e; o = self.o
        S = (self.S0, self.S1); O = (self.O0, self.O1); Q = (self.Q0, self.Q1)
        NT = 32
        K, V0, V1 = self.KVB, self.KVB + 4, self.KVB + 8
        QK = lambda d, q: e(f'v_mfma_f32_32x32x16_bf16 {v(d,16)}, {v(K,4)}, {v(q,4)}, 0')
        SM = lambda d, a, b: e(f'v_smfmac_f32_32x32x32_bf16 {v(d,16)}, {v(a,4)}, {v(b,8)}, {v(self.vIDX)}')
        vKL2 = 39

        def rd(reg, t, off):
            a = self.vKL if t < 16 else vKL2
            if reg != K:
                e(f's_mov_b64 exec, {s(S_VM,2)}')
            e(f'ds_read_b128 {v(reg,4)}, {v(a)} offset:{(t%16)*4096+off}', tag=f'r{reg}')
            if reg != K:
                e('s_mov_b64 exec, -1')
        self.stamp('att0')
        e('s_setprio 3')
        GB = self.GB
        gloads = []
        for p in range(2):
            gloads += [f's_mov_b32 {T7}, {WS_MODB + p*8192}',
                       f'buffer_load_dwordx4 {v(GB+4*p,4)}, {v(self.vT16)}, {srd(SWS)}, {T7} offen sc1']
        self.gb_loads = gloads

        def wgu(r):
            if o['skip'] & 1:
                return
            mat = r // 6
            self.dma(SWU if mat else SWG, self.vWGU[mat][r % 3], s_hb, ((r % 6) // 3) * 256 * 2752, s_dl, L_WGU + r * 8192, op='xor')

        def clear(i):
            if o['skip'] & 2 and i < 5:
                return
            if i == 0:
                e(f'buffer_store_dwordx4 {v(GB,4)}, {v(self.vOA)}, {srd(SWS)}, 0 offen sc1')
            elif i == 1:
                e(f'buffer_store_dwordx4 {v(GB,4)}, {v(self.vYA)}, {srd(SWS)}, 0 offen sc1')
            elif i == 2:
                e(f'buffer_store_dwordx4 {v(GB,4)}, {v(self.vHA)}, {srd(SWS)}, 0 offen sc1')
            elif i == 3:
                e(f'buffer_store_dwordx4 {v(GB,4)}, {v(self.vHA)}, {srd(SWS)}, 0 offen offset:512 sc1')
            elif i == 4:
                e(f's_cmp_eq_u32 {s_c}, 28')
                e(f's_cselect_b32 {T4}, {OOB}, 0')
                e(f'buffer_store_dwordx4 {v(GB,4)}, {v(self.vHA)}, {srd(SWS)}, {T4} offen offset:1024 sc1')
            else:
                e(f'buffer_store_dwordx2 {v(GB,2)}, {v(self.vSTA)}, {srd(SWS)}, 0 offen sc1', tag='clr')

        def wo(i):
            loc = (L_WO012 + i * 8192) if i < 3 else (L_WO3 if i == 3 else L_WOB + (i - 4) * 8192)
            self.w64_dma(SWO, i, 256, loc, tag=f'wo{i}')

        def stash(i):
            if o['skip'] & 8:
                return
            for l in self.rot_lines(6 + i, s_wa, s_wb, 32768):
                e(l)
            e(f'buffer_load_dwordx4 {v(self.STASH+4*i,4)}, {v(self.vWO)}, {srd(SWD)}, {T7} offen')

        def mbw():
            e(f's_lshl_b32 {T0}, {s_x}, 3')
            e(f's_add_u32 {T0}, {T0}, {s_tb}')
            e(f's_and_b32 {T1}, {T0}, 1')
            e(f's_lshr_b32 {T0}, {T0}, 1')
            e(f's_lshl_b32 {T0}, {T0}, 2')
            e(f's_add_u32 {T0}, {T0}, {s_cb}')
            e(f's_lshl_b32 {T2}, {T1}, 3')
            e(f's_add_u32 {T2}, {T2}, {s_w}')
            e(f's_mul_i32 {T2}, {T2}, {32*6144}')
            e(f's_lshl_b32 {T3}, {T0}, 5')
            e(f's_add_u32 {T2}, {T2}, {T3}')
            self.dma(SWM, self.vW32, T2, 2048, s_dl, L_MBW)
            e(f's_lshl_b32 {T1}, {T1}, 13')
            e(f's_lshl_b32 {T0}, {T0}, 6')
            e(f's_add_u32 {T0}, {T0}, {T1}')
            e(f's_add_u32 {T5}, {T0}, {WS_MODB}')

        def modb():
            lab = e.newlabel('nomb')
            e(f's_cmp_lg_u32 {s_w}, 5')
            e(f's_cbranch_scc1 {lab}')
            lgsave = list(e.lg)
            W = 224; A = 176
            e(f'v_lshrrev_b32 v12, 4, v0')
            e(f'v_and_b32 v13, 15, v0')
            e(f'v_lshlrev_b32 v13, 3, v13')
            e(f'v_lshl_add_u32 v13, v12, 8, v13')
            for ks in range(8):
                e(f'ds_read_b64_tr_b16 {v(W+4*ks,2)}, v13 offset:{L_MBW+ks*1024}')
                e(f'ds_read_b64_tr_b16 {v(W+4*ks+2,2)}, v13 offset:{L_MBW+ks*1024+128}')
            e(f'v_lshlrev_b32 v13, 3, v0')
            e(f'ds_write_b64 v13, v[14:15] offset:{L_MBW}')
            e(f'v_lshlrev_b32 v12, 4, v12')
            for h in range(2):
                for ks in range(4):
                    e(f'ds_read_b128 {v(A+4*ks,4)}, v12 offset:{L_MBW+(4*h+ks)*64}')
                e('s_waitcnt lgkmcnt(0)')
                for ks in range(4):
                    e(f'v_mfma_f32_16x16x32_bf16 v[124:127], {v(A+4*ks,4)}, {v(W+16*h+4*ks,4)}, ' + ('0' if h + ks == 0 else 'v[124:127]'))
            self.tag_prep(14)
            e('v_lshlrev_b32 v15, 2, v0')
            self.tag_store(124, 14, 15, T5)
            e.label(lab)
            e.lg = lgsave

        def xres():
            for l in gloads:
                e(l, tag='gb')
            e(f's_lshl_b32 {T0}, {s_x}, 2')
            e(f's_add_u32 {T0}, {T0}, {s_oct}')
            e(f's_lshl_b32 {T0}, {T0}, 2')
            e(f's_add_u32 {T0}, {T0}, {s_m}')
            e(f's_lshl_b32 {s_act}, {T0}, 14')
            e(f's_lshl_b32 {T1}, {s_nb}, 1')
            e(f's_add_u32 {T1}, {T1}, {s_kh}')
            e(f's_lshl_b32 {T1}, {T1}, 6')
            e(f's_add_u32 {T1}, {T1}, {s_act}')
            e(f'v_and_b32 v4, 15, v0')
            e(f'v_lshl_add_u32 v4, v4, 10, {T1}')
            e(f'v_lshrrev_b32 {v(self.vTMP2)}, 4, v0')
            e(f'v_lshl_add_u32 {v(self.vTMP2)}, {v(self.vTMP2)}, 3, v4')
            e(f'buffer_load_dwordx2 {v(self.XRES,2)}, {v(self.vTMP2)}, {srd(SX)}, 0 offen')
            e(f'buffer_load_dwordx2 {v(self.XRES+2,2)}, {v(self.vTMP2)}, {srd(SX)}, 0 offen offset:32')

        def pre(i):
            if i == 0:
                self.tr64_addr(120, L_WO012)
            if i == 3:
                self.tr64_addr(120, L_WO3)
            self.tr64(self.WOA + 16 * i, (i % 3) * 8192, 120)

        def bar(wait=None):
            def f():
                if wait:
                    e.wait_vm(wait)
                e('s_waitcnt lgkmcnt(0)')
                e('s_barrier')
                e('s_setprio 3')
            return f
        F = lambda fn, *a: (lambda: fn(*a))
        def touch(i):
            if i == 0:
                e(f's_lshl_b32 {T6}, s2, 2')
                e(f's_add_u32 {T6}, {T6}, {s_m}')
                e(f'v_min_u32 v124, 10, v0')
                e(f'v_lshlrev_b32 v124, 7, v124')
                e(f's_mul_i32 {T0}, {T6}, 1376')
                e(f'buffer_load_dword v125, v124, {srd(SWG)}, {T0} offen', count=False)
                e(f'buffer_load_dword v125, v124, {srd(SWU)}, {T0} offen', count=False)
                e(f'buffer_load_dword v125, v124, {srd(SWD)}, {T0} offen', count=False)
            if i == 1:
                e(f's_lshr_b32 {T0}, {T6}, 1')
                e(f's_mul_i32 {T0}, {T0}, 6144')
                e(f's_and_b32 {T1}, {s_m}, 1')
                e(f's_lshl_b32 {T1}, {T1}, 11')
                e(f's_add_u32 {T0}, {T0}, {T1}')
                e(f'v_lshlrev_b32 v124, 5, v0')
                e(f'buffer_load_dword v125, v124, {srd(SWM)}, {T0} offen offset:2048', count=False)
                e(f's_lshl_b32 {T0}, {T6}, 9')
                e(f'v_lshlrev_b32 v124, 3, v0')
                e(f'buffer_load_dword v125, v124, {srd(SWO)}, {T0} offen', count=False)

        def older(*fns):
            def f():
                lab = e.newlabel('old')
                e(f's_cmp_lg_u32 {s_kh}, 0')
                e(f's_cbranch_scc1 {lab}')
                for fn in fns:
                    fn()
                e.label(lab)
            return f

        def early_done():
            n = 0 if o['skip'] & 16 else 5
            lab = e.newlabel('old'); lab2 = e.newlabel('old')
            e(f's_cmp_lg_u32 {s_kh}, 0')
            e(f's_cbranch_scc1 {lab}')
            e(f's_waitcnt vmcnt({n})')
            e(f's_branch {lab2}')
            e.label(lab)
            e('s_waitcnt vmcnt(0)')
            e.label(lab2)
            e.vm = []
        kd = self.kv_dma
        sched = {u: [] for u in range(64)}

        def put(fn, items):
            for arg, u in items:
                sched[u].append(F(fn, *arg) if isinstance(arg, tuple) else F(fn, arg))
        sched[0].append(older(F(kd, 4), F(kd, 5)))
        sched[1].append(older(F(kd, 6), F(kd, 7)))
        sched[2].append(older(F(wo, 0), F(wo, 1)))
        sched[3].append(older(F(wo, 2)))
        if not o['skip'] & 16:
            sched[4].append(older(F(touch, 0)))
            sched[5].append(older(F(touch, 1)))
        sched[11].append(early_done)
        put(self.kv_verify, [((4, 8), 11), ((8, 16), 27)])
        sched[30].append(modb)
        put(pre, [(0, 14), (1, 15), (2, 16), (3, 30)])
        sched[53].append(xres)
        sc = o['sched']
        if sc == 1:
            put(kd, [(8 + i, 14 + i // 2) for i in range(8)])
            put(wo, [(3, 18), (4, 46), (5, 47), (6, 48), (7, 49)])
            sched[18].append(mbw)
            put(clear, [(0, 19), (1, 20), (5, 20), (2, 32), (3, 38), (4, 44)])
            put(wgu, [(2, 21), (3, 23), (4, 30), (5, 31), (6, 33), (7, 35), (8, 37), (9, 39), (10, 41), (11, 43), (0, 46), (1, 47)])
            put(stash, list(zip(range(16), [22, 24, 25, 26, 28, 29, 34, 36, 40, 42, 45, 50, 51, 52, 54, 55])))
        if sc == 2:
            put(kd, [(8 + i, 12 + i) for i in range(8)])
            put(wo, [(3, 14), (4, 46), (5, 47), (6, 48), (7, 49)])
            sched[20].append(mbw)
            put(clear, [(0, 21), (1, 22), (5, 22), (2, 28), (3, 38), (4, 51)])
            put(wgu, [(2, 23), (3, 25), (4, 30), (5, 32), (6, 34), (7, 36), (8, 38), (9, 40), (10, 42), (11, 44), (0, 46), (1, 47)])
            put(stash, list(zip(range(16), [24, 26, 29, 31, 33, 35, 37, 39, 41, 43, 45, 50, 52, 54, 55, 56])))
        bars = {8: None, 16: 'clr', 24: None, 29: None}
        prio = {}
        lad = [int(ch) for ch in str(o['ladder'])]
        for end in [2 * (t - 1) for t in bars] + [64]:
            for i, d in enumerate(lad):
                prio[end - d] = 2 - i

        rd(K, 0, 0); rd(V0, 0, 1024); rd(V1, 0, 1536)
        e('s_waitcnt lgkmcnt(2)')
        QK(S[0], Q[0])
        e(f'v_add_u32 {v(vKL2)}, {L_KVB}, {v(self.vKL)}')
        for t in range(NT):
            for a in range(2):
                cur, oth = S[a], S[1 - a]
                u = 2 * t + a
                for r in range(16):
                    if r == 2:
                        if a == 0 and t > 0:
                            SM(O[1], V1, oth + 8)
                            rd(V1, t, 1536)
                        if a == 1:
                            e.wait_lg(f'r{V1}')
                            SM(O[0], V1, oth + 8)
                    if r == 5:
                        if a == 0:
                            QK(oth, Q[1])
                            if t + 1 in bars:
                                bar(bars[t + 1])()
                            if t + 1 < NT:
                                rd(K, t + 1, 0)
                        elif t + 1 < NT:
                            e.wait_lg(f'r{K}')
                            QK(oth, Q[0])
                    if r == 10:
                        if a == 0:
                            e.wait_lg(f'r{V0}')
                        SM(O[a], V0, cur)
                        if a == 1 and t + 1 < NT:
                            rd(V0, t + 1, 1024)
                        if not o['noside']:
                            for f in sched.get(u, []):
                                f()
                        if u in prio:
                            e(f's_setprio {prio[u]}')
                        if a == 0 and t % 4 == 0 and t:
                            self.stamp(f't{t}')
                    e(f'v_exp_f32 {v(cur+r)}, {v(cur+r)}')
        SM(O[1], V1, S[1] + 8)
        e('s_setprio 0')
        self.stamp('att1')

    def att_epilogue(self):
        e = self.e; o = self.o
        O0, O1, S0 = self.O0, self.O1, self.S0
        t, t2 = self.vTMP, self.vTMP2
        e(f's_mul_i32 {T0}, {s_w}, 2304')
        e(f's_add_u32 {T0}, {T0}, {L_EX}')
        e(f'v_lshl_add_u32 {v(t)}, v0, 4, {T0}')
        e(f'v_lshl_add_u32 {v(t2)}, v0, 2, {T0}')
        e(f's_xor_b32 {T1}, {s_w}, 4')
        e(f's_mul_i32 {T1}, {T1}, 2304')
        e(f's_add_u32 {T1}, {T1}, {L_EX}')
        e(f'v_lshl_add_u32 v14, v0, 4, {T1}')
        e(f'v_lshl_add_u32 v15, v0, 2, {T1}')
        e(f'ds_write_b128 {v(t)}, {v(O1,4)}')
        e(f'ds_write_b128 {v(t)}, {v(O1+4,4)} offset:1024')
        e(f'ds_write_b32 {v(t2)}, {v(O1+8)} offset:2048')
        e('s_waitcnt vmcnt(0) lgkmcnt(0)')
        e('s_barrier')
        e(f'ds_read_b32 {v(S0+8)}, v15 offset:2048', tag='l')
        e(f'ds_read_b128 {v(S0,4)}, v14', tag='a')
        e(f'ds_read_b128 {v(S0+4,4)}, v14 offset:1024', tag='b')
        e(f's_mov_b32 {T0}, {fbits(2.0**-90)}')
        e(f'v_mov_b32 {v(t2)}, {fbits(2.0**120)}')
        e.wait_lg('l')
        e(f'v_add_f32 {v(O0+8)}, {v(O0+8)}, {v(S0+8)}')
        e(f'v_med3_f32 {v(t)}, {v(O0+8)}, {T0}, {v(t2)}')
        e(f'v_cmp_neq_f32 {s(72,2)}, {v(t)}, {v(O0+8)}')
        e(f'v_rcp_f32 {v(O0+8)}, {v(O0+8)}')
        e.wait_lg('b')
        for j in range(0, 8, 2):
            e(f'v_pk_add_f32 {v(O0+j,2)}, {v(O0+j,2)}, {v(S0+j,2)}')
        for j in range(8):
            e(f'v_mul_f32 {v(O0+j)}, {v(O0+j)}, {v(O0+8)}')
        e(f'v_pk_add_f32 {v(S0,2)}, {v(O0,2)}, {v(O0+2,2)}')
        e(f'v_pk_add_f32 {v(S0+2,2)}, {v(O0+4,2)}, {v(O0+6,2)}')
        e(f'v_pk_add_f32 {v(S0,2)}, {v(S0,2)}, {v(S0+2,2)}')
        e(f'v_add_f32 {v(S0)}, {v(S0)}, {v(S0+1)}')
        e(f'v_mov_b32 {v(t)}, 0x207')
        e(f'v_cmp_class_f32 vcc, {v(S0)}, {v(t)}')
        e(f's_or_b64 vcc, vcc, {s(72,2)}')
        if o['force_slow']:
            e('s_branch L_slow')
        else:
            e('s_cbranch_vccnz L_slow')
        e.label('L_slow_ret')
        for j in range(4):
            e(f'v_cvt_pk_bf16_f32 {v(O0+j)}, {v(O0+2*j)}, {v(O0+2*j+1)}')
        e(f'buffer_store_dwordx4 {v(O0,4)}, {v(self.vOA)}, {srd(SWS)}, 0 offen sc1', tag='o')
        self.stubs.append(('code', self.slow_path))
        self.stamp('opub')

    def slow_path(self):
        e = self.e
        O0, S0, S1, K = self.O0, self.S0, self.S1, self.KVB
        t, m = self.vTMP, self.vTMP2
        e.label('L_slow')
        e('s_nop 7')

        def fetch(name):
            top = e.newlabel(name); go = e.newlabel(name + 'go')
            e.label(top)
            for l in self.kv_lines(T0):
                e(l, count=False)
            e('s_waitcnt vmcnt(0)')
            e(f'v_max3_u32 {v(t)}, {v(K)}, {v(K+4)}, {v(K+8)}')
            e(f'v_cmp_eq_u32 vcc, -1, {v(t)}')
            e(f's_cbranch_vccz {go}')
            e(f's_cmp_eq_u32 {s_budget}, 0')
            e(f's_cbranch_scc1 {go}')
            e(f's_sub_u32 {s_budget}, {s_budget}, 1')
            e(f's_branch {top}')
            e.label(go)
            return top
        e(f'v_mov_b32 {v(m)}, 0xff800000')
        e(f's_mov_b32 {T0}, {WS_KV}')
        top = fetch('sl1')
        e(f'v_mfma_f32_32x32x16_bf16 {v(S0,16)}, {v(K,4)}, {v(self.Q0,4)}, 0')
        for j in range(0, 16, 2):
            e(f'v_max3_f32 {v(m)}, {v(m)}, {v(S0+j)}, {v(S0+j+1)}')
        e(f's_add_u32 {T0}, {T0}, 2048')
        e(f's_cmp_lt_u32 {T0}, {WS_KV+64*2048}')
        e(f's_cbranch_scc1 {top}')
        e(f'v_mov_b32 {v(t)}, {v(m)}')
        e(f'v_permlane32_swap_b32 {v(m)}, {v(t)}')
        e(f'v_max_f32 {v(m)}, {v(m)}, {v(t)}')
        for j in range(16):
            e(f'v_sub_f32 {v(S1+j)}, 0, {v(m)}')
            e(f'v_mov_b32 {v(O0+j)}, 0')
        e(f's_mov_b32 {T0}, {WS_KV}')
        top = fetch('sl2')
        e(f'v_mfma_f32_32x32x16_bf16 {v(S0,16)}, {v(K,4)}, {v(self.Q0,4)}, {v(S1,16)}')
        for j in range(16):
            e(f'v_exp_f32 {v(S0+j)}, {v(S0+j)}')
        e(f'v_smfmac_f32_32x32x32_bf16 {v(O0,16)}, {v(K+4,4)}, {v(S0,8)}, {v(self.vIDX)}')
        e(f'v_smfmac_f32_32x32x32_bf16 {v(O0,16)}, {v(K+8,4)}, {v(S0+8,8)}, {v(self.vIDX)}')
        e('s_nop 7')
        e(f's_add_u32 {T0}, {T0}, 2048')
        e(f's_cmp_lt_u32 {T0}, {WS_KV+64*2048}')
        e(f's_cbranch_scc1 {top}')
        e('s_nop 7')
        e(f'v_rcp_f32 {v(O0+8)}, {v(O0+8)}')
        for j in range(8):
            e(f'v_mul_f32 {v(O0+j)}, {v(O0+j)}, {v(O0+8)}')
        e('s_branch L_slow_ret')

    def exchange(self, acc, recv):
        e = self.e
        t, t2 = self.vTMP, self.vTMP2
        e(f'ds_write_b128 {v(t)}, {v(acc+8,4)}')
        e(f'ds_write_b128 {v(t)}, {v(acc+12,4)} offset:1024')
        e('s_waitcnt lgkmcnt(0)')
        e('s_barrier')
        e(f'ds_read_b128 {v(recv,4)}, {v(t2)}', tag='a')
        e(f'ds_read_b128 {v(recv+4,4)}, {v(t2)} offset:1024', tag='b')
        e.wait_lg('a')
        for j in (0, 2):
            e(f'v_pk_add_f32 {v(acc+j,2)}, {v(acc+j,2)}, {v(recv+j,2)}')
        e.wait_lg('b')
        for j in (4, 6):
            e(f'v_pk_add_f32 {v(acc+j,2)}, {v(acc+j,2)}, {v(recv+j,2)}')

    def exchange_addr(self):
        e = self.e
        e(f's_lshl_b32 {T0}, {s_w}, 11')
        e(f's_add_u32 {T0}, {T0}, {L_EX}')
        e(f'v_lshl_add_u32 {v(self.vTMP)}, v0, 4, {T0}')
        e(f'v_xor_b32 {v(self.vTMP2)}, 8192, {v(self.vTMP)}')

    X1 = 16

    def a_extra(self, R, acc):
        e = self.e
        e(f's_and_b32 {T0}, {s_w}, 1')
        e(f's_lshl_b32 {T1}, {T0}, 4')
        e(f's_lshr_b32 {T3}, {s_w}, 1')
        e(f'v_xor_b32 v36, {T1}, v0')
        e(f'v_lshrrev_b32 v36, 2, v36')
        e(f'v_mul_u32_u24 v36, 96, v36')
        e(f's_mul_i32 {T2}, {T0}, 49152')
        e(f's_mul_i32 {T4}, {T3}, 12288')
        e(f's_add_u32 {T2}, {T2}, {T4}')
        e(f'v_and_b32 v37, 3, v0')
        e(f'v_lshl_add_u32 v37, v37, 3, {T2}')
        e(f'v_add_u32 v36, v36, v37')
        e(f'v_and_b32 v37, 48, v0')
        e(f'v_and_b32 v38, 1, v0')
        e(f'v_xor_b32 v38, 1, v38')
        e(f'v_lshl_add_u32 v37, v38, 10, v37')
        e(f's_lshl_b32 {T4}, {T3}, 8')
        e(f's_add_u32 {T4}, {T4}, {L_STG16}')
        e(f'v_add_u32 v37, {T4}, v37')

        def rd(nb):
            r = R + 16 * nb
            e(f'ds_read_b128 {v(r,4)}, v37 offset:{nb*64}')
            for tl in range(3):
                e(f'ds_read_b64_tr_b16 {v(r+4+4*tl,2)}, v36 offset:{nb*3072+32*tl}')
                e(f'ds_read_b64_tr_b16 {v(r+6+4*tl,2)}, v36 offset:{nb*3072+32*tl+1536}', tag=f'ax{nb}')
        rd(0); rd(1)
        for nb in range(4):
            r = R + 16 * nb
            e.wait_lg(f'ax{nb}')
            for tl in range(3):
                e(f'v_mfma_f32_16x16x32_bf16 {v(acc+4*tl,4)}, {v(r,4)}, {v(r+4+4*tl,4)}, ' + ('0' if nb == 0 else v(acc + 4 * tl, 4)))
            if nb + 2 < 4:
                rd(nb + 2)
        e('v_and_b32 v36, 16, v0')
        e('v_cmp_ne_u32 vcc, 0, v36')
        e('v_and_b32 v37, 15, v0')
        e('v_lshl_add_u32 v37, v36, 1, v37')
        e(f'v_add_u32 v37, {T1}, v37')
        e(f's_lshl_b32 {T2}, {T3}, 2')
        e(f's_add_u32 {T2}, {T2}, {L_AX}')
        e(f'v_lshl_add_u32 v37, v37, 4, {T2}')
        for tl in range(3):
            e(f'v_cndmask_b32 {v(acc+4*tl)}, {v(acc+4*tl)}, {v(acc+4*tl+1)}, vcc')
            e(f'ds_write_b32 v37, {v(acc+4*tl)} offset:{tl*1024}')

    def phase_o(self):
        e = self.e; o = self.o
        GB = self.GB; X1 = self.X1
        WB, ACC, RECV, GA, CB = 64, 48, 32, 144, 152
        OF = lambda k: (32 + 4 * k) if k < 4 else (self.WOA + 4 * (k - 4))
        e(f's_lshr_b32 {T0}, {s_w}, 1')
        e(f's_cmp_eq_u32 {T0}, 2')
        e(f's_cselect_b32 {s_one}, 1.0, 0')
        self.tr64_addr(48, L_WOB)
        for i in range(2):
            self.tr64(WB + 16 * i, i * 8192, 48)
        self.gather_check(GB, 2, 14, self.gb_loads, 'gb')
        self.round_mod(GB, GB + 4)
        e(f'v_add_u32 v36, {L_STGB}, v36')
        e(f'ds_write_b128 v36, {v(GB,4)}')
        lab = e.newlabel('no16')
        e(f's_sub_u32 {T0}, {s_w}, 2')
        e(f's_cmp_ge_u32 {T0}, 4')
        e(f's_cbranch_scc1 {lab}')
        e(f's_lshl_b32 {T0}, {T0}, 9')
        e(f's_add_u32 {T0}, {T0}, {L_STG16}')
        e(f'v_lshrrev_b32 v15, 3, v0')
        e(f'v_lshl_add_u32 v15, v15, 6, {T0}')
        e(f'v_and_b32 v14, 3, v0')
        e(f'v_lshl_add_u32 v15, v14, 4, v15')
        e(f'v_bfe_u32 v14, v0, 2, 1')
        e(f'v_lshl_add_u32 v15, v14, 3, v15')
        if o['rot'] & 4:
            e(f's_lshl_b32 {T0}, {s_nb}, 7')
            e(f'v_xor_b32 v15, {T0}, v15')
        e(f'ds_write_b64 v15, {v(GB+4,2)}', count=False)
        e.label(lab)
        for i in range(2, 4):
            self.tr64(WB + 16 * i, i * 8192, 48)
        for j in range(4):
            self.unpack(self.XRES + j, X1 + 2 * j, X1 + 2 * j + 1)
        self.exchange_addr()
        e(f's_lshl_b32 {T0}, {s_nb}, 1')
        e(f's_add_u32 {T0}, {T0}, {s_kh}')
        e(f's_lshl_b32 {T0}, {T0}, 7')
        e(f's_add_u32 {T0}, {T0}, {L_STGB}')
        e(f'v_lshrrev_b32 v15, 4, v0')
        e(f'v_lshl_add_u32 v15, v15, 4, {T0}')
        e(f's_lshl_b32 {T0}, {s_kh}, 13')
        e(f's_add_u32 {s_act}, {s_act}, {T0}')
        e(f's_add_u32 {s_act}, {s_act}, {WS_O}')
        e(f's_lshl_b32 {T0}, {s_ro}, 10')
        e(f's_add_u32 {s_act}, {s_act}, {T0}')
        e(f'v_lshlrev_b32 v1, 4, v0')
        e('s_waitcnt vmcnt(0) lgkmcnt(0)')
        self.sleep(o['dly_o'])
        e('s_barrier')
        self.stamp('BO1')
        ol = [f's_xor_b32 {T7}, {s_act}, {k*1024}\nbuffer_load_dwordx4 {v(OF(k),4)}, v1, {srd(SWS)}, {T7} offen sc1' for k in range(8)]
        for k in range(4):
            e(ol[k], tag=f'o{k}')
        lab = e.newlabel('noep')
        e(f's_or_b32 {T0}, s2, {s_w}')
        e(f's_cmp_lg_u32 {T0}, 0')
        e(f's_cbranch_scc1 {lab}')
        e(f'v_mov_b32 v14, {s_nonce}')
        e(f'buffer_store_dword v14, off, {srd(SWS)}, 0 sc1', count=False)
        e.label(lab)
        e(f'ds_read_b128 {v(GB,4)}, v15 offset:{3*2048}')
        e(f'ds_read_b128 {v(GB+4,4)}, v15 offset:{3*2048+64}')
        nis = 4
        e.wait_vm('o1')
        self.stamp('oin')
        self.chk_pre([OF(0), OF(1)], 14)
        self.chk_post([OF(0), OF(1)], 14, ol[0:nis], 'o')
        for k in range(8):
            W = (self.WOA + 16 * k) if k < 4 else (WB + 16 * (k - 4))
            for j in (2, 3, 0, 1):
                e(f'v_mfma_f32_16x16x32_bf16 {v(ACC+4*j,4)}, {v(W+4*j,4)}, {v(OF(k),4)}, ' + ('0' if k == 0 else v(ACC + 4 * j, 4)))
                if k == 1 and j in (2, 3) or k == 0 and j == 1:
                    for kk in range(nis, nis + (2 if k == 0 else 1)):
                        e(ol[kk], tag=f'o{kk}')
                        nis += 1
                if k % 2 == 1 and k < 7 and j == 0:
                    e.wait_vm(f'o{k+2}')
                    self.chk_pre([OF(k + 1), OF(k + 2)], 14)
                if k == 2 and j in (2, 3):
                    base, sec = ((GA, 0), (CB, 2))[j - 2]
                    e(f'ds_read_b128 {v(base,4)}, v15 offset:{sec*2048}')
                    e(f'ds_read_b128 {v(base+4,4)}, v15 offset:{sec*2048+64}')
                if k in (2, 4, 6) and j == 0 or k == 6 and j == 2:
                    i = {(2, 0): 0, (4, 0): 1, (6, 2): 2, (6, 0): 3}[(k, j)]
                    self.wd_dma(i, L_WD1 + i * 8192)
            if k % 2 == 1 and k < 7:
                self.chk_post([OF(k + 1), OF(k + 2)], 14, ol[k + 1:nis], 'o')
        self.stamp('omma')
        self.exchange(ACC, RECV)
        for j in range(0, 8, 2):
            e(f'v_pk_fma_f32 {v(X1+j,2)}, {v(ACC+j,2)}, {v(GA+j,2)}, {v(X1+j,2)}')
        for j in range(0, 8, 2):
            e(f'v_pk_mul_f32 {v(ACC+j,2)}, {v(X1+j,2)}, {v(CB+j,2)}')
        for j in range(4):
            e(f'v_cvt_pk_bf16_f32 {v(ACC+j)}, {v(ACC+2*j)}, {v(ACC+2*j+1)}')
        e(f'buffer_store_dwordx4 {v(ACC,4)}, {v(self.vYA)}, {srd(SWS)}, 0 offen sc1', tag='y')
        self.stamp('ypub')
        a, b = 88, 89
        e(f'v_add_f32 {v(a)}, {v(X1)}, {v(X1+1)}')
        e(f'v_mul_f32 {v(b)}, {v(X1)}, {v(X1)}')
        for j in range(1, 8):
            if j > 1:
                e(f'v_add_f32 {v(a)}, {v(a)}, {v(X1+j)}')
            e(f'v_fmac_f32 {v(b)}, {v(X1+j)}, {v(X1+j)}')
        e(f'v_permlane32_swap_b32 {v(a)}, {v(b)}')
        e(f'v_add_f32 {v(a)}, {v(a)}, {v(b)}')
        e(f'v_mov_b32 {v(b)}, {v(a)}')
        e(f'v_permlane16_swap_b32 {v(a)}, {v(b)}')
        e(f'v_add_f32 {v(a)}, {v(a)}, {v(b)}')
        e(f's_lshl_b32 {T0}, {s_w}, 7')
        e(f's_add_u32 {T0}, {T0}, {L_ST}')
        e(f'v_and_b32 v14, 15, v0')
        e(f'v_lshl_add_u32 v14, v14, 3, {T0}')
        e(f'v_lshrrev_b32 v15, 5, v0')
        e(f'v_lshl_add_u32 v14, v15, 2, v14')
        e(f'ds_write_b32 v14, {v(a)}')
        self.a_extra(128, 96)
        self.stamp('ax')

    def phase_g(self):
        e = self.e; o = self.o
        Y, ACC, AF, ST, AX, BX = 128, 40, 88, 32, 112, 118
        vA, vA2 = 124, 125
        LA = o['la_y']
        e('v_bfe_u32 v14, v0, 4, 1')
        e('v_xor_b32 v36, v14, v15')
        e(f'v_bfe_u32 {v(vA)}, v0, 2, 2')
        e(f'v_lshl_add_u32 {v(vA)}, v36, 2, {v(vA)}')
        e(f'v_lshl_add_u32 {v(vA)}, v14, 9, {v(vA)}')
        e(f'v_mul_u32_u24 {v(vA)}, 96, {v(vA)}')
        e('v_and_b32 v14, 3, v0')
        e(f'v_lshl_add_u32 {v(vA)}, v14, 3, {v(vA)}')
        e(f's_lshl_b32 {T0}, {s_x}, 3')
        e(f's_add_u32 {T0}, {T0}, {s_w}')
        e(f's_lshl_b32 {T5}, {T0}, 11')
        e(f's_add_u32 {T5}, {T5}, {WS_STATS}')
        e('v_and_b32 v14, 31, v0')
        e('v_lshlrev_b32 v14, 3, v14')
        e('v_lshl_add_u32 v126, v15, 10, v14')
        e(f's_lshl_b32 {s_act}, {T0}, 15')
        e(f's_add_u32 {T6}, {s_act}, {WS_Y}')
        e(f's_lshl_b32 {T0}, {s_nb}, 12')
        if not o['rot'] & 4:
            e(f's_mov_b32 {T0}, 0')
        e(f's_add_u32 {s_act}, {T6}, {T0}')
        e(f's_cmp_ge_u32 {s_c}, 29')
        e(f's_cselect_b32 {s_act}, {OOB}, {s_act}')
        e('v_lshlrev_b32 v127, 3, v0')
        e(f'v_add_u32 v15, {L_ST}, v127')
        e(f'v_add_u32 v127, {L_AX}, v1')
        e('s_waitcnt vmcnt(0) lgkmcnt(0)')
        self.sleep(o['dly_y'])
        e('s_barrier')
        self.stamp('BO3')

        def yreg(k):
            return Y + 4 * (k % 16)

        def ylines(k):
            return [f's_xor_b32 {T7}, {s_act}, {(k//4)*4096}',
                    f'buffer_load_dwordx4 {v(yreg(k),4)}, v1, {srd(SWS)}, {T7} offen offset:{(k%4)*1024} sc1']
        issued = [0]

        def yload():
            k = issued[0]
            if k < 32:
                for l in ylines(k):
                    e(l, tag=f'y{k}')
                issued[0] += 1
        for k in range(4):
            yload()
        lab = e.newlabel('nost')
        e(f's_cmp_lg_u32 {s_w}, 7')
        e(f's_cbranch_scc1 {lab}')
        e(f'ds_read_b64 v[88:89], v15')
        e(f'ds_read_b64 v[90:91], v15 offset:512')
        e('s_waitcnt lgkmcnt(0)')
        e('v_pk_add_f32 v[88:89], v[88:89], v[90:91]')
        e(f'buffer_store_dwordx2 v[88:89], {v(self.vSTA)}, {srd(SWS)}, 0 offen sc1', count=False)
        e.label(lab)
        for tl in range(3):
            e(f'ds_read_b128 {v(40+4*tl,4)}, v127 offset:{tl*1024}', tag='axp')
        e(f's_cmp_ge_u32 {s_c}, 29')
        e('s_cbranch_scc1 L_g_skip')
        sl = [f'buffer_load_dwordx2 {v(ST+2*i,2)}, v126, {srd(SWS)}, {T5} offen offset:{i*256} sc1' for i in range(4)]

        def aread(ks, tl):
            r = AF + 12 * (ks % 2)
            nb, jj = ks // 2, ks % 2
            off = tl * 32 + nb * 3072 + jj * 768
            e(f'ds_read_b64_tr_b16 {v(r+4*tl,2)}, {v(vA)} offset:{off}')
            e(f'ds_read_b64_tr_b16 {v(r+4*tl+2,2)}, {v(vA)} offset:{off+1536}', tag=f'a{ks}_{tl}')
        for ks in range(2):
            for tl in range(3):
                aread(ks, tl)
        self.tr64_addr(120, L_WD1)
        e.wait_lg('axp')
        for tl in range(3):
            a = 40 + 4 * tl
            e(f'v_pk_add_f32 {v(a,2)}, {v(a,2)}, {v(a+2,2)}')
            e(f'v_add_f32 {v(a)}, {v(a)}, {v(a+1)}')
            e(f'v_cvt_pk_bf16_f32 {v(AX+2*tl+1)}, {v(a)}, 0')
            e(f'v_lshlrev_b32 {v(a+1)}, 16, {v(AX+2*tl+1)}')
            e(f'v_sub_f32 {v(a+1)}, {v(a)}, {v(a+1)}')
            e(f'v_cvt_pk_bf16_f32 {v(AX+2*tl)}, {v(a)}, {v(a+1)}')
        def ychk(k0, post):
            regs = [yreg(k0 + k) for k in range(4)]
            if not post:
                e.wait_vm(f'y{k0+3}')
                self.chk_pre(regs, 14)
            else:
                rl = []
                for k in range(k0, issued[0]):
                    rl += ylines(k)
                self.chk_post(regs, 14, rl, 'y')
        e('s_setprio 1')
        if o['gskew']:
            lab = e.newlabel('gp')
            e(f's_cmp_lg_u32 {s_kh}, 0')
            e(f's_cbranch_scc1 {lab}')
            e('s_setprio 2')
            e.label(lab)
        ychk(0, 0)
        self.stamp('yin')
        ychk(0, 1)
        for ks in range(32):
            r = AF + 12 * (ks % 2)
            for tl in range(3):
                if tl == 0:
                    e.wait_lg(f'a{ks}_2')
                e(f'v_mfma_f32_32x32x16_bf16 {v(ACC+16*tl,16)}, {v(r+4*tl,4)}, {v(yreg(ks),4)}, ' + ('0' if ks == 0 else v(ACC + 16 * tl, 16)))
                if ks + 2 < 32 and not o['xp'] & 16:
                    aread(ks + 2, tl)
                if tl != 1 and issued[0] < ks + 1 + LA and not o['xp'] & 8:
                    yload()
                if tl == 1 and ks % 4 == 3 and ks < 31:
                    ychk(ks + 1, 0)
                if tl == 1 and ks >= 20:
                    st = (ks - 20) // 4
                    self.tr64(128 + 16 * st, st * 8192, 120, js=[ks % 4])
            if ks % 4 == 3 and ks < 31:
                ychk(ks + 1, 1)
            if ks in (23, 24):
                i = ks - 19
                self.wd_dma(i, L_WD1 + i * 8192)
            if ks == 25:
                for l in sl:
                    e(l, tag='st')
            if ks == 30:
                e.wait_vm('st')
                self.frag_check([ST + 2 * i for i in range(4)], 14, sl, 'st')
                e(f'v_pk_add_f32 {v(ST,2)}, {v(ST,2)}, {v(ST+2,2)}')
                e(f'v_pk_add_f32 {v(ST+4,2)}, {v(ST+4,2)}, {v(ST+6,2)}')
                e(f'v_pk_add_f32 {v(ST,2)}, {v(ST,2)}, {v(ST+4,2)}')
                e(f'v_mov_b32 {v(ST+2)}, {v(ST)}')
                e(f'v_mov_b32 {v(ST+3)}, {v(ST+1)}')
                e(f'v_cmp_gt_u32 vcc, 32, v0')
                e(f'v_permlane32_swap_b32 {v(ST)}, {v(ST+2)}')
                e(f'v_permlane32_swap_b32 {v(ST+1)}, {v(ST+3)}')
                e(f'v_pk_add_f32 {v(ST,2)}, {v(ST,2)}, {v(ST+2,2)}')
                e(f'v_mul_f32 {v(ST)}, {fbits(-1.0/512)}, {v(ST)}')
                e(f'v_mul_f32 {v(ST+1)}, {fbits(1.0/512)}, {v(ST+1)}')
                e(f'v_fma_f32 {v(ST+1)}, -{v(ST)}, {v(ST)}, {v(ST+1)}')
                e(f'v_max_f32 {v(ST+1)}, 0, {v(ST+1)}')
                e(f'v_add_f32 {v(ST+1)}, {fbits(1e-5)}, {v(ST+1)}')
                e(f'v_sqrt_f32 {v(ST+2)}, {v(ST+1)}')
                e(f'v_rcp_f32 {v(ST+4)}, {v(ST+1)}')
                e(f'v_cndmask_b32 {v(ST)}, {v(ST+2)}, {v(ST)}, vcc')
                e(f'v_cvt_pk_bf16_f32 {v(BX)}, {v(ST)}, {v(ST)}')
                e(f'v_lshlrev_b32 {v(ST+1)}, 16, {v(BX)}')
                e(f'v_sub_f32 {v(ST+1)}, {v(ST)}, {v(ST+1)}')
                e(f'v_cvt_pk_bf16_f32 {v(BX+1)}, {v(ST+1)}, 0')
                e(f'v_mov_b32 {v(ST+5)}, {v(ST+4)}')
        for tl in range(3):
            e(f'v_mfma_f32_32x32x8_bf16 {v(ACC+16*tl,16)}, {v(AX+2*tl,2)}, {v(BX,2)}, {v(ACC+16*tl,16)}')
        self.tr64(176, 3 * 8192, 120)
        e('s_setprio 0')
        self.stamp('gmma')
        lab = e.newlabel('bgy')
        e(f's_cmp_eq_u32 {s_kh}, 0')
        e(f's_cbranch_scc1 {lab}')
        e('s_waitcnt lgkmcnt(0)')
        e('s_barrier')
        e.label(lab)
        e(f's_cmp_eq_u32 {s_c}, 28')
        e(f's_cselect_b32 {T4}, {OOB}, 0')
        for tl in range(3):
            a = ACC + 16 * tl
            for j in range(8):
                e(f'v_max_f32 {v(a+j)}, 0, {v(a+j)}')
            for j in range(0, 8, 2):
                e(f'v_pk_mul_f32 {v(a+8+j,2)}, {v(a+8+j,2)}, {v(ST+4,2)}')
            for j in range(0, 8, 2):
                e(f'v_pk_mul_f32 {v(a+j,2)}, {v(a+j,2)}, {v(a+8+j,2)}')
            for j in range(4):
                e(f'v_cvt_pk_bf16_f32 {v(a+j)}, {v(a+2*j)}, {v(a+2*j+1)}')
            e(f'buffer_store_dwordx4 {v(a,4)}, {v(self.vHA)}, {srd(SWS)}, {T4 if tl == 2 else 0} offen offset:{tl*512} sc1')
        self.stamp('hhpub')
        e(f's_cmp_eq_u32 {s_kh}, 0')
        e('s_cbranch_scc1 L_g_done')
        e('s_branch L_g_done2')
        e.label('L_g_skip')
        e.flush_hist()
        e('s_waitcnt vmcnt(0)')
        self.tr64_addr(120, L_WD1)
        for st in range(4):
            self.tr64(128 + 16 * st, st * 8192, 120)
        for i in range(4, 6):
            self.wd_dma(i, L_WD1 + i * 8192)
        e('s_waitcnt lgkmcnt(0)')
        e('v_and_b32 v14, 7, v0')
        e('v_lshlrev_b32 v14, 12, v14')
        top = e.newlabel('ypoll')
        e.label(top)
        e(f'buffer_load_dword v40, v14, {srd(SWS)}, {T6} offen sc1')
        e(f's_sub_u32 {s_budget}, {s_budget}, 1')
        e(f's_max_i32 {s_budget}, {s_budget}, 0')
        e('s_waitcnt vmcnt(0)')
        e(f's_cmp_eq_u32 {s_budget}, 0')
        e('s_cbranch_scc1 L_g_done')
        e('v_cmp_eq_u32 vcc, -1, v40')
        e('s_sleep 4')
        e(f's_cbranch_vccnz {top}')
        e.label('L_g_done')
        e('s_waitcnt lgkmcnt(0)')
        e('s_barrier')
        e.label('L_g_done2')
        e.flush_hist()
        e.vm = []; e.lg = []
        self.stamp('BG1')

    def phase_d(self):
        e = self.e; o = self.o
        WP, HF, ACC, RECV = 96, 56, 40, 56
        NH = 10
        LA = o['la_h']
        X1, GB = self.X1, self.GB
        A1, A2 = 32, 36

        def wreg(ks):
            return WP + 16 * ((ks + 2) % 6)

        def wread(ks, js=range(4)):
            if ks < 6:
                self.tr64(wreg(ks), (ks + 4) * 8192, A1, js)
            elif ks < 14:
                self.tr64(wreg(ks), (ks - 6) * 8192, A2, js)
            else:
                self.tr64(wreg(ks), (ks - 14) * 8192, A1, js)
        e(f'v_add_u32 v2, {s_dl}, v1')
        e(f'v_add_u32 v3, 65536, v2')
        NS1 = o['ns1']

        def spill(i):
            e(f'ds_write_b128 v{2 + i // 8}, {v(self.STASH+4*i,4)} offset:{L_WD2+(i%8)*8192}')
        for i in range(NS1):
            spill(i)
        self.tr64_addr(A1, L_WD1 + 32768)
        self.tr64_addr(A2, L_WD2)
        e(f's_lshl_b32 {T0}, {s_x}, 2')
        e(f's_add_u32 {T0}, {T0}, {s_oct}')
        e(f's_lshl_b32 {T0}, {T0}, 2')
        e(f's_add_u32 {T0}, {T0}, {s_m}')
        e(f's_mul_i32 {s_act}, {T0}, 44032')
        e(f's_lshr_b32 {T0}, {s_wa}, 15')
        e(f's_lshl_b32 {T0}, {T0}, 10')
        e(f's_add_u32 {s_act}, {s_act}, {T0}')
        e(f's_add_u32 {s_act}, {s_act}, {WS_HH}')
        e(f's_sub_u32 {T0}, 22, {s_kh}')
        e(f's_lshl_b32 {T0}, {T0}, 10')
        e(f's_sub_u32 {s_hb2}, {s_act}, {T0}')

        def hreg(k):
            return HF + 4 * (k % NH)

        def hlines(k):
            return self.rot_lines(k, s_act, s_hb2, 1024) + [f'buffer_load_dwordx4 {v(hreg(k),4)}, v1, {srd(SWS)}, {T7} offen sc1']
        issued = [0]

        def hload():
            k = issued[0]
            if k < 22:
                for l in hlines(k):
                    e(l, tag=f'h{k}')
                issued[0] += 1
        def rest(kh):
            lab = e.newlabel('rest')
            e(f's_cmp_lg_u32 {s_kh}, {kh}')
            e(f's_cbranch_scc1 {lab}')
            self.tr64(wreg(4), 0, A1)
            self.tr64(wreg(5), 8192, A1)
            for i in range(NS1, 16):
                spill(i)
            e.label(lab)
            e.lg = []
        rest(0)
        self.stamp('wdis')
        lab = e.newlabel('nopoll'); top = e.newlabel('poll')
        e(f's_cmp_lt_u32 {s_c}, 29')
        e(f's_cbranch_scc1 {lab}')
        e.label(top)
        e('s_sleep 4')
        e(f'buffer_load_dword v40, off, {srd(SWS)}, {s_act} sc1', count=False)
        e(f's_sub_u32 {s_budget}, {s_budget}, 1')
        e(f's_max_i32 {s_budget}, {s_budget}, 0')
        e('s_waitcnt vmcnt(0)')
        e(f's_cmp_eq_u32 {s_budget}, 0')
        e(f's_cbranch_scc1 {lab}')
        e('v_cmp_eq_u32 vcc, -1, v40')
        e(f's_cbranch_vccnz {top}')
        e('s_sleep 4')
        e.label(lab)
        e.vm = []
        e('s_waitcnt vmcnt(0)')
        self.sleep(o['dly_hh'])
        e('s_barrier')
        self.stamp('BG2')
        for k in range(4):
            hload()
        rest(1)
        self.tr64_addr(A1, L_WD2 + 65536)

        def hchk(k0, post):
            regs = [hreg(k0), hreg(k0 + 1)]
            if o['xp'] & 4:
                e.wait_vm(f'h{k0+1}')
            elif not post:
                e.wait_vm(f'h{k0+1}')
                self.chk_pre(regs, 14)
            else:
                rl = []
                for k in range(k0, issued[0]):
                    rl += hlines(k)
                self.chk_post(regs, 14, rl, 'h')
        hchk(0, 0)
        self.stamp('hin')
        hchk(0, 1)
        DB = o['dbar']
        dpr = {0: {}, 1: {DB: 3, 9: 2, 15: 1, 19: 0}, 2: {DB: 3, 13: 2, 18: 1, 20: 0}}[o['dprio']]
        for ks in range(22):
            if ks == DB:
                e('s_waitcnt lgkmcnt(0)')
                e('s_barrier')
            if ks in dpr:
                e(f's_setprio {dpr[ks]}')
            W = wreg(ks)
            nx = ks + 6 - DB
            for j in (2, 3, 0, 1):
                if j == 2:
                    e.wait_lg(f'w{W+4*1}')
                e(f'v_mfma_f32_16x16x32_bf16 {v(ACC+4*j,4)}, {v(W+4*j,4)}, {v(hreg(ks),4)}, ' + ('0' if ks == 0 else v(ACC + 4 * j, 4)))
                if 6 <= nx < 22 and not o['xp'] & 2:
                    wread(nx, [j])
                if j in (2, 3) and issued[0] < ks + 1 + LA and not o['xp'] & 1:
                    hload()
                if j == 0 and ks % 2 == 1 and ks < 21:
                    hchk(ks + 1, 0)
            if ks % 2 == 1 and ks < 21:
                hchk(ks + 1, 1)
        self.stamp('Dmma')
        self.exchange(ACC, RECV)
        for j in range(0, 8, 2):
            e(f'v_pk_fma_f32 {v(X1+j,2)}, {v(ACC+j,2)}, {v(GB+j,2)}, {v(X1+j,2)}')
        for j in range(4):
            e(f'v_cvt_pk_bf16_f32 {v(X1+j)}, {v(X1+2*j)}, {v(X1+2*j+1)}')
        e('v_bfe_u32 v14, v0, 4, 1')
        e('v_lshl_add_u32 v4, v14, 5, v4')
        e('v_lshrrev_b32 v14, 5, v0')
        e('v_lshl_add_u32 v4, v14, 4, v4')
        e(f'v_permlane16_swap_b32 {v(X1)}, {v(X1+2)}')
        e(f'v_permlane16_swap_b32 {v(X1+1)}, {v(X1+3)}')
        e(f'buffer_store_dwordx4 {v(X1,4)}, v4, {srd(SOUT)}, 0 offen {o["out_flags"]}'.rstrip())

    def finish(self):
        e = self.e
        if self.o['prof']:
            e('s_waitcnt vmcnt(0)')
            self.stamp('end')
            e('s_memrealtime s[100:101]')
            e('s_waitcnt lgkmcnt(0)')
            e(f's_lshl_b32 {T0}, s2, 3')
            e(f's_add_u32 {T0}, {T0}, {s_w}')
            e(f's_lshl_b32 {T0}, {T0}, 7')
            e(f's_add_u32 {T0}, {T0}, {WS_PROF}')
            e('v_mov_b32 v1, 0')
            vals = [f's{S_STAMP+i}' for i in range(16)] + ['s3', 's100', s_budget]
            for i, r in enumerate(vals):
                e(f'v_writelane_b32 v1, {r}, {i}')
            e('v_lshlrev_b32 v2, 2, v0')
            e('s_mov_b64 exec, 0xffffffff')
            e(f'buffer_store_dword v1, v2, {srd(SWS)}, {T0} offen')
            if self.o['enc'] >= 0:
                if self.o['enc'] == 0:
                    e('s_add_u32 s3, s3, 6000')
                else:
                    e(f's_add_u32 s3, s{S_STAMP+self.o["enc"]-1}, 6000')
                e.label('L_spin')
                e('s_sleep 1')
                e('s_memrealtime s[100:101]')
                e('s_waitcnt lgkmcnt(0)')
                e('s_sub_u32 s100, s100, s3')
                e('s_cmp_lt_i32 s100, 0')
                e('s_cbranch_scc1 L_spin')
            if self.o['prof'] >= 2:
                e(f's_cmp_lg_u32 s2, {self.o["prof"]-2}')
                e('s_cbranch_scc1 L_end')
                e(f's_cmp_lg_u32 {s_w}, 0')
                e('s_cbranch_scc1 L_end')
                e(f's_load_dwordx2 {s(SC,2)}, s[0:1], 96')
                e(f's_sub_u32 s100, s100, s3')
                e(f'v_subrev_u32 v1, s{S_STAMP}, v1')
                e(f'v_writelane_b32 v1, s100, 15')
                e(f's_sub_u32 s100, {self.o["budget"]}, {s_budget}')
                e(f'v_writelane_b32 v1, s100, 0')
                e(f's_mov_b32 s{SC+2}, 64')
                e('s_waitcnt lgkmcnt(0)')
                e(f'buffer_store_dword v1, v2, {srd(SC)}, 0 offen')
        e.label('L_end')
        e('s_endpgm')

    def build(self):
        e = self.e
        self.prologue()
        if self.o['prof']:
            e('s_waitcnt lgkmcnt(0)')
            e('s_mov_b32 s3, s98')
            for i in range(16):
                e(f's_mov_b32 s{S_STAMP+i}, 0')
        self.front()
        self.attention()
        self.att_epilogue()
        self.phase_o()
        self.phase_g()
        self.phase_d()
        self.finish()
        self.emit_stubs()
        e.label('L_code_end')
        head = open('adaLN_cond__grouped_kv_mqa__glu_gated_reglu__prompt.s.ref').read().split('; Override launch')[0]
        txt = head + '; @launch grid=(256,1,1) block=(512,1,1) lds=163840\n'
        txt += f'''.amdgcn_target "amdgcn-amd-amdhsa--gfx950"
.text
.globl {NAME}
.p2align 8
.type {NAME},@function
{NAME}:
'''
        txt += e.text()
        txt += f'''    s_endpgm
.section .rodata,"a"
.p2align 6
.amdhsa_kernel {NAME}
  .amdhsa_next_free_vgpr 256
  .amdhsa_next_free_sgpr 102
  .amdhsa_accum_offset 256
  .amdhsa_group_segment_fixed_size 0
  .amdhsa_kernarg_size 112
  .amdhsa_user_sgpr_count 2
  .amdhsa_user_sgpr_kernarg_segment_ptr 1
  .amdhsa_system_sgpr_workgroup_id_x 1
.end_amdhsa_kernel
'''
        return txt


if __name__ == '__main__':
    kw = {}
    out = sys.argv[1]
    for a in sys.argv[2:]:
        k, val = a.split('=')
        try:
            val = int(val)
        except ValueError:
            pass
        kw[k] = val
    g = Gen(**kw)
    txt = g.build()
    open(out, 'w').write(txt)
    print('nops inserted', g.e.nops, 'lines', txt.count('\n'), getattr(g, 'stamp_names', ''))
    for n, l in g.e.nop_log:
        if n >= 4:
            print('  nop', n, l)
```

```python
import re

TRANS = ('v_exp_f32', 'v_log_f32', 'v_rcp_f32', 'v_rsq_f32', 'v_sqrt_f32', 'v_sin_f32', 'v_cos_f32')


def v(n, cnt=1):
    return f'v{n}' if cnt == 1 else f'v[{n}:{n+cnt-1}]'


def s(n, cnt=1):
    return f's{n}' if cnt == 1 else f's[{n}:{n+cnt-1}]'


_reg_re = re.compile(r'^-?\|?(?:abs\()?([vs])(?:(\d+)|\[(\d+):(\d+)\])\)?\|?$')


def regs_of(tok):
    tok = tok.strip()
    if tok == 'vcc':
        return {('s', 106), ('s', 107)}
    if tok == 'exec':
        return {('s', 126), ('s', 127)}
    if tok == 'm0':
        return {('s', 124)}
    m = _reg_re.match(tok)
    if not m:
        return set()
    k = m.group(1)
    if m.group(2) is not None:
        return {(k, int(m.group(2)))}
    return {(k, i) for i in range(int(m.group(3)), int(m.group(4)) + 1)}


def mfma_passes(mn):
    if '32x32' in mn:
        return 8
    if '16x16' in mn:
        return 4
    raise ValueError(mn)


class Ins:
    __slots__ = ('text', 'mn', 'cls', 'w', 'r', 'ab', 'c', 'passes', 'states', 'dpp', 'wide_data', 'lds_dma')

    def __init__(self, text):
        self.text = text
        t = text.split(';')[0].strip()
        parts = t.split(None, 1)
        mn = parts[0]
        self.mn = mn
        rest = parts[1] if len(parts) > 1 else ''
        ops = [o.strip() for o in rest.split(',')] if rest else []
        mods = ''
        if ops:
            lp = ops[-1].split(None, 1)
            ops[-1] = lp[0]
            mods = lp[1] if len(lp) > 1 else ''
        self.w = set(); self.r = set(); self.ab = set(); self.c = set()
        self.passes = 0; self.states = 1; self.dpp = False; self.wide_data = set(); self.lds_dma = False
        R = [regs_of(o) for o in ops]
        allr = lambda lst: set().union(*lst) if lst else set()
        if mn == 's_nop':
            self.cls = 'salu'; self.states = int(ops[0]) + 1
        elif mn.startswith('v_mfma'):
            self.cls = 'mfma'; self.passes = mfma_passes(mn)
            self.w = R[0]; self.ab = R[1] | R[2]; self.c = R[3]; self.r = self.ab | self.c
        elif mn.startswith('v_smfmac'):
            self.cls = 'mfma'; self.passes = mfma_passes(mn)
            self.w = R[0]; self.ab = R[1] | R[2] | R[3]; self.c = R[0]; self.r = self.ab | self.c
        elif mn.startswith('v_'):
            self.cls = 'trans' if mn.replace('_e32', '').replace('_e64', '') in TRANS else 'valu'
            self.dpp = ('_dpp' in mn) or ('row_' in mods) or ('quad_perm' in rest)
            if mn.startswith('v_permlane'):
                self.w = R[0] | R[1]; self.r = R[0] | R[1]
            elif mn.startswith('v_add_co') or mn.startswith('v_addc_co') or mn.startswith('v_sub_co'):
                self.w = R[0] | R[1]; self.r = allr(R[2:])
            else:
                self.w = R[0]; self.r = allr(R[1:])
                if mn.startswith(('v_fmac', 'v_dot2c', 'v_writelane')) or self.dpp:
                    self.r |= R[0]
        elif mn.startswith('ds_'):
            self.cls = 'ds'
            if mn.startswith(('ds_read', 'ds_bpermute', 'ds_permute', 'ds_swizzle')) or '_rtn' in mn:
                self.w = R[0]; self.r = allr(R[1:])
            else:
                self.r = allr(R)
        elif mn.startswith(('buffer_', 'global_')):
            self.cls = 'vmem'
            toks = mods.split()
            if 'lds' in toks or '_lds_' in mn:
                self.lds_dma = True; self.r = allr(R) | {('s', 124)}
            elif '_load_' in mn:
                self.w = R[0]; self.r = allr(R[1:])
            else:
                self.r = allr(R)
                if mn.endswith(('x3', 'x4')):
                    self.wide_data = R[0] if mn.startswith('buffer_') else R[1]
        else:
            self.cls = 'salu'
            if mn.startswith(('s_cmp', 's_cbranch', 's_branch', 's_waitcnt', 's_barrier', 's_setprio', 's_sleep', 's_endpgm', 's_bitcmp')):
                self.r = allr(R)
            elif R:
                self.w = R[0]; self.r = allr(R[1:])


def need(p, c):
    n = 0
    isv = lambda x: x.cls in ('valu', 'trans')
    pw_v = {r for r in p.w if r[0] == 'v'}
    pw_s = {r for r in p.w if r[0] == 's'}
    if isv(p):
        if c.cls == 'mfma' and (pw_v & c.r):
            n = max(n, 2)
        if isv(c):
            if p.cls == 'trans' and c.cls != 'trans' and (pw_v & c.r):
                n = max(n, 1)
            if (c.dpp or c.mn.startswith('v_permlane')) and (pw_v & c.r):
                n = max(n, 2)
            if c.mn.startswith(('v_readlane', 'v_readfirstlane')) and (pw_v & c.r):
                n = max(n, 1)
            if pw_s & c.r:
                n = max(n, 4 if c.mn.startswith(('v_readlane', 'v_writelane')) else 2)
            if ('sdwa' in p.mn or 'op_sel' in p.text) and not p.mn.startswith('v_pk') and (pw_v & (c.r | c.w)):
                n = max(n, 1)
        if c.cls == 'vmem' and (pw_s & c.r):
            n = max(n, 5)
        if p.cls == 'trans' and c.cls in ('ds', 'vmem') and (pw_v & c.r):
            n = max(n, 1)
    if p.cls == 'mfma':
        big = {4: 8, 8: 12}[p.passes]
        if c.cls == 'mfma':
            if p.w & c.ab:
                n = max(n, big)
            if p.w & c.c:
                if not (p.w == c.c and p.passes == c.passes):
                    n = max(n, {4: 6, 8: 10}[p.passes])
            elif p.w & c.w and not (p.passes == c.passes):
                n = max(n, big)
        elif isv(c):
            if p.w & (c.r | c.w):
                n = max(n, big)
            if p.c & c.w:
                n = max(n, {4: 3, 8: 7}[p.passes])
        elif c.cls in ('ds', 'vmem'):
            if p.w & (c.r | c.w):
                n = max(n, big)
    if p.cls == 'salu' and ('s', 124) in p.w and c.lds_dma:
        n = max(n, 1)
    if p.wide_data and (p.wide_data & c.w):
        n = max(n, 2 if isv(c) or c.cls == 'mfma' else 1)
    return n


class Emitter:
    def __init__(self):
        self.out = []
        self.hist = []
        self.vm = []
        self.lg = []
        self.nops = 0
        self.nop_log = []
        self.uid = 0
        self.nopk = True

    def raw(self, text):
        self.out.append(text)

    def comment(self, text):
        self.out.append('    ; ' + text)

    def label(self, name):
        self.out.append(name + ':')

    def newlabel(self, base):
        self.uid += 1
        return f'L_{base}_{self.uid}'

    def flush_hist(self):
        self.hist = []

    def __call__(self, text, tag=None, count=True):
        for line in text.split('\n'):
            line = line.strip()
            if not line:
                continue
            if line.startswith('v_pk_') and self.nopk:
                mn, rest = line.split(None, 1)
                base = [int(x) for x in re.findall(r'v\[(\d+):', rest)]
                for h in range(2):
                    self(mn.replace('v_pk_', 'v_') + ' ' + ', '.join(f'v{b+h}' for b in base))
                continue
            if line.startswith(';'):
                self.out.append('    ' + line); continue
            if line.endswith(':'):
                self.out.append(line); continue
            ins = Ins(line)
            dist = 0; req = 0
            for p in reversed(self.hist):
                nd = need(p, ins)
                if nd - dist > req:
                    req = nd - dist
                dist += p.states
                if dist >= 20:
                    break
            if req > 0:
                self.nops += req
                self.nop_log.append((req, line))
                nop = Ins(f's_nop {req-1}')
                self.out.append(f'    s_nop {req-1}')
                self.hist.append(nop)
            self.out.append('    ' + line)
            self.hist.append(ins)
            if len(self.hist) > 40:
                self.hist = self.hist[-30:]
            if count:
                if ins.cls == 'vmem':
                    self.vm.append(tag)
                elif ins.cls == 'ds':
                    self.lg.append(tag)
            if ins.mn == 's_waitcnt':
                m = re.search(r'vmcnt\((\d+)\)', line)
                if m:
                    n = int(m.group(1)); self.vm = self.vm[len(self.vm) - n:] if n and n < len(self.vm) else ([] if n == 0 else self.vm)
                m = re.search(r'lgkmcnt\((\d+)\)', line)
                if m:
                    n = int(m.group(1)); self.lg = self.lg[len(self.lg) - n:] if n and n < len(self.lg) else ([] if n == 0 else self.lg)

    def _after(self, q, tag):
        idx = [i for i, t in enumerate(q) if t == tag]
        if not idx:
            return None
        return len(q) - 1 - idx[-1]

    def wait_vm(self, tag):
        n = self._after(self.vm, tag)
        if n is None:
            return
        assert n <= 63
        self(f's_waitcnt vmcnt({n})')

    def wait_lg(self, tag):
        n = self._after(self.lg, tag)
        if n is None:
            return
        self(f's_waitcnt lgkmcnt({min(n, 15)})')

    def wait(self, vmtag=None, lgtag=None):
        a = self._after(self.vm, vmtag) if vmtag is not None else None
        b = self._after(self.lg, lgtag) if lgtag is not None else None
        t = []
        if a is not None:
            assert a <= 63
            t.append(f'vmcnt({a})')
        if b is not None:
            t.append(f'lgkmcnt({min(b, 15)})')
        if t:
            self('s_waitcnt ' + ' '.join(t))

    def text(self):
        return '\n'.join(self.out) + '\n'
```

```python
import sys, struct, math
from emit import Emitter, v, s

NAME = 'adaLN_cond__grouped_kv_mqa__glu_gated_reglu__prompt_kernel'


def fbits(x):
    return '0x%08x' % struct.unpack('<I', struct.pack('<f', x))[0]


DEFAULTS = dict(stamps='kernarg,B0,B2,B3,Bw2,att0,att1,opub,BO1,ypub,BO3,hhpub,BG1,Dmma,end', kvsc1=0, ol1=5, ne1=0, ne2=0, y0=7, y1=12, kb2=22, stend=1, eprio=2, n2=4, n1=5, ypace=1, smem=0, sper=1, dly_yl2=0, npost=8, hje=4, defer=1, kb=24, dly_yl=4, dly_he=4, npre=6, thr=8, bg2first=0, bd1=10, gskew=0, stf='sc1', ldf='sc1', clf='sc1', dprio=1, xp=0, rot=15, sched=2, ladder=521, gpos=4, wtouch=1, kvov=4, bpos=0, nq1=4, nq2=6, k1=12, ne_b2=4, dly_x=0, dly_q=2, ns1=12, dbar=3, pdrop=2, skip=0, enc=-1, tb1=12, la_y=9, la_h=8, prof=0, rt=0, noside=0, stop=99, D=6, nchk=10, force_slow=0,
                dly_moda=0, dly_kv=0, dly_o=4, dly_y=2, dly_hh=0, codepf=1, out_flags='', budget=60000)

WS_EPOCH = 0
WS_MODA = 0x1000
WS_MODB = 0x8000
WS_STATS = 0x10000
WS_KV = 0x40000
WS_PROF = 0x80000
WS_O = 0x200000
WS_Y = 0x400000
WS_HH = 0x600000
WS_DBG = 0x1000000
WS_SIZE = 0x10000000
OOB = 0x40000000

L_WQ = 0
L_H = 131072
L_WKV = L_H
L_MW = L_H + 16384
L_SB = L_H + 20480
L_STGA = 7 * 16384
L_QX = 65536
L_KVA = 0
L_KVB = 98304
L_WO012 = 65536 + 8192
L_WO345 = 0
L_MBW = 24576
L_WGU = 0
L_WO67 = 98304 + 16384
L_EX = 131072
L_STGB = 155648
L_STG16 = 156672
L_AX = 158720
L_ST = 160256
L_WD1 = 98304
L_WD2 = 0

SX, SWQ, SWKV, SWO, SWG, SWU, SWD, SC, SWM, SOUT, SWS = (4, 8, 12, 16, 20, 24, 28, 32, 36, 40, 44)
s_x, s_c, s_w, s_tb, s_cb, s_oct, s_nb, s_m, s_kh = ('s48', 's49', 's50', 's51', 's52', 's53', 's54', 's55', 's56')
s_nonce = 's57'
S_NB = 58
s_budget = 's62'
s_one = 's63'
S_RET = 64
s_tbk = 's64'
s_ro = 's65'
s_wa, s_wb, s_wn, s_hb2 = 's80', 's81', 's82', 's83'
s_yb, s_yr, s_h0, s_h1 = 's8', 's9', 's10', 's11'
S_VM = 66
T0, T1, T2, T3, T4, T5, T6, T7 = ('s68', 's69', 's70', 's71', 's72', 's73', 's74', 's75')
s_kvb = 's76'
s_dl = 's77'
s_ds = 's78'
s_act = 's79'
S_MU = 80
S_STAMP = 84


def srd(n):
    return s(n, 4)


class Gen:
    def __init__(self, **kw):
        self.o = dict(DEFAULTS); self.o.update(kw)
        self.e = Emitter()
        self.stubs = []
        self.stamp_names = self.o['stamps'].split(',')
        assert len(self.stamp_names) <= 15

    def stamp(self, name):
        if not self.o['prof']:
            return
        names = self.stamp_names
        if name not in names:
            return
        e = self.e
        i = names.index(name)
        e('s_memrealtime s[100:101]' if self.o['rt'] else 's_memtime s[100:101]')
        e('s_waitcnt lgkmcnt(0)')
        e(f's_mov_b32 s{S_STAMP+i}, s100')

    def dma(self, rs, voff, soff_base, soff_imm, lds_base, lds_imm, tag=None, count=True, flags='', op='add'):
        e = self.e
        if lds_base is None:
            e(f's_mov_b32 m0, {lds_imm}')
        else:
            e(f's_add_u32 m0, {lds_base}, {lds_imm}')
        if soff_base is None:
            e(f's_mov_b32 {T7}, {soff_imm}'); so = T7
        elif soff_imm:
            e(f'{"s_add_u32" if op == "add" else "s_xor_b32"} {T7}, {soff_base}, {soff_imm}'); so = T7
        else:
            so = soff_base
        e(f'buffer_load_dwordx4 {v(voff)}, {srd(rs)}, {so} offen {flags} lds', tag=tag, count=count)

    def fl(self, k):
        x = self.o[k]
        return '' if x == 'none' else x

    def first(self, l):
        return l.replace(' sc1', ' ' + self.fl('ldf'))

    def sleep(self, n):
        if n:
            self.e(f's_sleep {n}')

    def silu(self, r, t):
        e = self.e
        e(f'v_mul_f32 {v(t)}, {fbits(-1.4426950408889634)}, {v(r)}')
        e(f'v_exp_f32 {v(t)}, {v(t)}')
        e(f'v_add_f32 {v(t)}, 1.0, {v(t)}')
        e(f'v_rcp_f32 {v(t)}, {v(t)}')
        e(f'v_mul_f32 {v(r)}, {v(r)}, {v(t)}')

    def unpack(self, src, lo, hi):
        e = self.e
        if hi == src:
            e(f'v_lshlrev_b32 {v(lo)}, 16, {v(src)}')
            e(f'v_and_b32 {v(hi)}, 0xffff0000, {v(src)}')
        else:
            e(f'v_and_b32 {v(hi)}, 0xffff0000, {v(src)}')
            e(f'v_lshlrev_b32 {v(lo)}, 16, {v(src)}')

    def red4(self, a, b, c, d):
        e = self.e
        e(f'v_permlane32_swap_b32 {v(a)}, {v(b)}')
        e(f'v_permlane32_swap_b32 {v(c)}, {v(d)}')
        e(f'v_add_f32 {v(a)}, {v(a)}, {v(b)}')
        e(f'v_add_f32 {v(c)}, {v(c)}, {v(d)}')
        e(f'v_permlane16_swap_b32 {v(a)}, {v(c)}')
        e(f'v_add_f32 {v(a)}, {v(a)}, {v(c)}')
        for r in (8, 4, 2, 1):
            e(f'v_add_f32_dpp {v(a)}, {v(a)}, {v(a)} row_ror:{r} row_mask:0xf bank_mask:0xf')

    def tag_prep(self, tmp):
        e = self.e
        e(f'v_and_b32 {v(tmp)}, 3, v0')
        e(f'v_lshlrev_b32 {v(tmp)}, 3, {v(tmp)}')
        e(f'v_lshrrev_b32 {v(tmp)}, {v(tmp)}, {s_nonce}')
        e(f's_movk_i32 {T7}, 0xff')

    def tag_store(self, val, tmp, addr, soff):
        e = self.e
        e('s_mov_b64 exec, 0xffff')
        e(f'v_bfi_b32 {v(val)}, {T7}, {v(tmp)}, {v(val)}')
        e(f'buffer_store_dword {v(val)}, {v(addr)}, {srd(SWS)}, {soff} offen sc1', count=False)
        e('s_mov_b64 exec, -1')

    def gather_check(self, base, npart, tmp, loads, name):
        e = self.e
        chk = e.newlabel(name + '_chk'); ok = e.newlabel(name + '_ok'); stub = e.newlabel(name + '_stub')
        e.label(chk)
        for p in range(npart):
            for j in range(4):
                e(f'v_xor_b32 {v(base+4*p+j)}, s{S_NB+j}, {v(base+4*p+j)}')
        regs = list(range(base, base + 4 * npart))
        e(f'v_or3_b32 {v(tmp)}, {v(regs[0])}, {v(regs[1])}, {v(regs[2])}')
        i = 3
        while i < len(regs):
            if i + 1 < len(regs):
                e(f'v_or3_b32 {v(tmp)}, {v(tmp)}, {v(regs[i])}, {v(regs[i+1])}'); i += 2
            else:
                e(f'v_or_b32 {v(tmp)}, {v(tmp)}, {v(regs[i])}'); i += 1
        e(f'v_and_b32 {v(tmp)}, 0xff, {v(tmp)}')
        e(f'v_cmp_ne_u32 vcc, 0, {v(tmp)}')
        e(f's_cbranch_vccnz {stub}')
        e.label(ok)
        self.stubs.append(('reload', stub, chk, ok, loads))
        for j in range(4):
            if npart == 4:
                e(f'v_add_f32 {v(base+j)}, {v(base+j)}, {v(base+4+j)}')
                e(f'v_add_f32 {v(base+8+j)}, {v(base+8+j)}, {v(base+12+j)}')
            else:
                e(f'v_add_f32 {v(base+j)}, {v(base+j)}, {v(base+4+j)}')
        if npart == 4:
            for j in range(4):
                e(f'v_add_f32 {v(base+j)}, {v(base+j)}, {v(base+8+j)}')

    def round_mod(self, base, p0):
        e = self.e
        for rep in range(2):
            e(f'v_cvt_pk_bf16_f32 {v(p0)}, {v(base)}, {v(base+1)}')
            e(f'v_cvt_pk_bf16_f32 {v(p0+1)}, {v(base+2)}, {v(base+3)}')
            self.unpack(p0, base, base + 1)
            self.unpack(p0 + 1, base + 2, base + 3)
            if rep == 0:
                for j in range(4):
                    e(f'v_add_f32 {v(base+j)}, {s_one}, {v(base+j)}')

    def frag_check(self, regs, tmp, reissue, name):
        e = self.e
        chk = e.newlabel(name + '_chk'); ok = e.newlabel(name + '_ok'); stub = e.newlabel(name + '_stub')
        e.label(chk)
        if len(regs) == 1:
            e(f'v_cmp_eq_u32 vcc, -1, {v(regs[0])}')
        else:
            if len(regs) == 2:
                e(f'v_max_u32 {v(tmp)}, {v(regs[0])}, {v(regs[1])}')
            else:
                e(f'v_max3_u32 {v(tmp)}, {v(regs[0])}, {v(regs[1])}, {v(regs[2])}')
                for r in regs[3:]:
                    e(f'v_max_u32 {v(tmp)}, {v(tmp)}, {v(r)}')
            e(f'v_cmp_eq_u32 vcc, -1, {v(tmp)}')
        e(f's_cbranch_vccnz {stub}')
        e.label(ok)
        if isinstance(reissue, str):
            self.stubs.append(('call', stub, chk, ok, reissue))
        else:
            self.stubs.append(('reload', stub, chk, ok, reissue))

    def chk_pre(self, regs, tmp):
        e = self.e
        if len(regs) == 2:
            e(f'v_max_u32 {v(tmp)}, {v(regs[0])}, {v(regs[1])}')
        else:
            e(f'v_max3_u32 {v(tmp)}, {v(regs[0])}, {v(regs[1])}, {v(regs[2])}')
            for r in regs[3:]:
                e(f'v_max_u32 {v(tmp)}, {v(tmp)}, {v(r)}')
        e(f'v_cmp_eq_u32 vcc, -1, {v(tmp)}')

    def chk_post(self, regs, tmp, lines, name):
        e = self.e
        ok = e.newlabel(name + '_ok'); stub = e.newlabel(name + '_stub')
        e(f's_cbranch_vccnz {stub}')
        e.label(ok)

        def code():
            e.label(stub)
            e(f's_cmp_eq_u32 {s_budget}, 0')
            e(f's_cbranch_scc1 {ok}')
            e(f's_sub_u32 {s_budget}, {s_budget}, 1')
            e('s_waitcnt vmcnt(0)')
            e('s_sleep 2')
            for l in lines:
                e(l, count=False)
            e('s_waitcnt vmcnt(0)')
            self.chk_pre(regs, tmp)
            e(f's_cbranch_vccnz {stub}')
            e(f's_branch {ok}')
        self.stubs.append(('code', code))

    def emit_stubs(self):
        e = self.e
        for st in self.stubs:
            kind = st[0]
            e.flush_hist()
            if kind in ('reload', 'call'):
                _, stub, chk, ok, arg = st
                e.label(stub)
                e(f's_cmp_eq_u32 {s_budget}, 0')
                e(f's_cbranch_scc1 {ok}')
                e(f's_sub_u32 {s_budget}, {s_budget}, 1')
                if kind == 'reload':
                    e('s_waitcnt vmcnt(0)')
                    e('s_sleep 2')
                    for l in arg:
                        e(l, count=False)
                    e('s_waitcnt vmcnt(0)')
                else:
                    e('s_waitcnt vmcnt(0)')
                    e('s_sleep 2')
                    e(f's_call_b64 {s(S_RET,2)}, {arg}')
                e(f's_branch {chk}')
            elif kind == 'seq':
                _, entries = st
                for lab, lines in entries:
                    e.label(lab)
                    for l in lines:
                        e(l, count=False)
                e('s_waitcnt vmcnt(0)')
                e(f's_setpc_b64 {s(S_RET,2)}')
            elif kind == 'code':
                st[1]()

    def dump(self, regs, slot, stride_regs):
        e = self.e
        e('s_nop 7'); e('s_nop 7')
        e(f's_lshl_b32 {T6}, s2, 3')
        e(f's_add_u32 {T6}, {T6}, {s_w}')
        e(f's_mul_i32 {T6}, {T6}, {stride_regs*256}')
        e(f's_add_u32 {T6}, {T6}, {WS_DBG + slot*0x1000000}')
        e('v_lshlrev_b32 v0, 2, v0')
        for i, r in enumerate(regs):
            e(f'buffer_store_dword {v(r)}, v0, {srd(SWS)}, {T6} offen', count=False)
            e(f's_add_u32 {T6}, {T6}, 256')
        e('s_waitcnt vmcnt(0)')
        e('v_lshrrev_b32 v0, 2, v0')

    def prologue(self):
        e = self.e
        for r, off in ((SC, 72), (SWM, 80), (SWS, 104), (SX, 0), (SWQ, 8)):
            e(f's_load_dwordx2 {s(r,2)}, s[0:1], {off}')
        e('s_cmp_ge_u32 s2, 256')
        e('s_cbranch_scc1 L_end')
        if self.o['prof']:
            e('s_memrealtime s[98:99]')
        e('v_lshrrev_b32 v1, 6, v0')
        e('v_and_b32 v0, 63, v0')
        e(f'v_readfirstlane_b32 {s_w}, v1')
        e(f's_lshr_b32 {s_c}, s2, 3')
        if self.o['codepf']:
            lab = e.newlabel('nopf')
            e(f's_cmp_lg_u32 {s_w}, 1')
            e(f's_cbranch_scc1 {lab}')
            e(f's_min_u32 {T0}, {s_c}, (L_end-L_pc0)/2048')
            e('s_getpc_b64 s[74:75]')
            e.label('L_pc0')
            e(f's_lshl_b32 {T0}, {T0}, 11')
            e(f'v_lshl_add_u32 v2, v0, 5, {T0}')
            e('global_load_dword v255, v2, s[74:75]', count=False)
            e.label(lab)
        e(f's_and_b32 {s_x}, s2, 7')
        e(f's_lshr_b32 {s_tb}, {s_c}, 2')
        e(f's_and_b32 {s_cb}, {s_c}, 3')
        self.srd_words((SC, SWM, SWS))

    SIZES = {4: 2097152, 8: 524288, 12: 16384, 16: 524288, 20: 1409024, 24: 1409024, 28: 1409024, 32: 1024, 36: 3145728,
             40: 2097152, 44: WS_SIZE}

    def srd_words(self, regs):
        for r in regs:
            self.e(f's_mov_b32 s{r+2}, {self.SIZES[r]}')
            self.e(f's_mov_b32 s{r+3}, 0x20000')

    def front(self):
        e = self.e; o = self.o
        vL16, vT16, vW32 = self.vL16, self.vT16, self.vW32
        vWQ, vT, vT2, vEP, vC, vHW = 246, 247, 248, 249, 250, 251
        XR, N, SA, CA, G = 40, 128, 56, 64, 160
        vA, vA2, vH = 240, 241, 242
        e(f'v_lshrrev_b32 {v(vT)}, 1, v0')
        e(f'v_mul_u32_u24 {v(vT)}, 6144, {v(vT)}')
        e(f'v_and_b32 {v(vT2)}, 1, v0')
        e(f'v_lshl_add_u32 {v(vW32)}, {v(vT2)}, 4, {v(vT)}')
        e(f's_lshl_b32 {T0}, {s_x}, 3')
        e(f's_add_u32 {T3}, {T0}, {s_tb}')
        e(f's_and_b32 {T4}, {T3}, 3')
        e(f's_and_b32 {T2}, {T3}, 0x3c')
        e(f's_add_u32 {T2}, {T2}, {s_cb}')
        e(f's_mul_i32 {T5}, {T4}, {128*6144}')
        e(f's_lshl_b32 {T1}, {T2}, 5')
        e(f's_add_u32 {T5}, {T5}, {T1}')
        e(f's_lshl_b32 {T6}, {T4}, 8')
        e(f'v_lshlrev_b32 v120, 2, v0')
        e(f's_cmp_lg_u32 {s_w}, 0')
        e('s_waitcnt lgkmcnt(0)')
        if o['prof']:
            e('s_mov_b32 s3, s98')
            for i in range(16):
                e(f's_mov_b32 s{S_STAMP+i}, 0')
        e('s_cbranch_scc1 L_nw0a')
        e('s_setprio 3')
        e(f'buffer_load_dword {v(vC)}, v120, {srd(SC)}, {T6} offen')
        for j in range(4):
            self.dma(SWM, vW32, T5, j * 32 * 6144, None, L_MW + j * 1024)
        e.label('L_nw0a')
        self.stamp('kernarg')
        e(f'buffer_load_dword {v(vEP)}, off, {srd(SWS)}, 0 sc1')
        e(f's_and_b32 {T0}, {s_c}, 1')
        e(f's_lshl_b32 {T0}, {T0}, 3')
        e(f's_add_u32 {T0}, {T0}, 16')
        e(f's_load_dwordx2 {s(SWKV,2)}, s[0:1], {T0}')
        for r, off in ((SWO, 32), (SWG, 48), (SWU, 56), (SWD, 64), (SOUT, 88)):
            e(f's_load_dwordx2 {s(r,2)}, s[0:1], {off}')
        e(f's_lshl_b32 {T4}, {T4}, 12')
        e(f's_lshl_b32 {T2}, {T2}, 6')
        e(f's_add_u32 {T4}, {T4}, {T2}')
        e(f's_add_u32 {T4}, {T4}, {WS_MODA}')
        e(f's_lshl_b32 {T0}, {T3}, 11')
        e(f's_and_b32 {T1}, {s_cb}, 1')
        e(f's_lshl_b32 {T1}, {T1}, 10')
        e(f's_add_u32 {T0}, {T0}, {T1}')
        e(f's_lshr_b32 {T1}, {s_cb}, 1')
        e(f's_lshl_b32 {T1}, {T1}, 9')
        e(f's_add_u32 {T0}, {T0}, {T1}')
        e(f's_add_u32 {s_act}, {T0}, {WS_KV}')
        e(f's_cmp_eq_u32 {s_w}, 0')
        e(f's_cselect_b32 {T0}, {s_act}, {OOB}')
        e('v_mov_b32 v122, -1')
        e('v_mov_b32 v123, -1')
        e(f'v_lshlrev_b32 v121, 3, v0')
        e(f'buffer_store_dwordx2 v[122:123], v121, {srd(SWS)}, {T0} offen sc1')
        e(f's_lshr_b32 {s_oct}, {s_c}, 3')
        e(f's_and_b32 {s_nb}, {s_c}, 7')
        e(f's_and_b32 {s_m}, {s_w}, 3')
        e(f's_lshr_b32 {s_kh}, {s_w}, 2')
        self.srd_words((SX, SWQ, SWKV, SWO, SWG, SWU, SWD, SOUT))
        e(f's_mov_b32 {s_budget}, {self.o["budget"]}')
        e(f's_mov_b32 s{S_VM}, 0xffff')
        e(f's_mov_b32 s{S_VM+1}, 0xffff')
        e(f'v_lshlrev_b32 {v(vL16)}, 4, v0')
        e(f's_mul_i32 {T0}, {s_cb}, 9')
        e(f's_and_b32 {T0}, {T0}, 17')
        e(f's_lshl_b32 {T1}, {s_w}, 1')
        e(f's_xor_b32 {s_one}, {T0}, {T1}')
        e(f's_lshl_b32 {T0}, {T3}, 5')
        e(f's_add_u32 {T0}, {T0}, {s_one}')
        e(f's_lshl_b32 s{S_MU}, {T0}, 10')
        TX = (0, 1, 16, 17)
        for i in (1, 2, 3):
            e(f's_xor_b32 s{S_MU+i}, s{S_MU}, {TX[i]*1024}')
        e(f'v_lshrrev_b32 {v(vT)}, 4, v0')
        e(f'v_lshlrev_b32 {v(vT2)}, 2, {v(vT)}')
        e(f'v_xor_b32 {v(vT2)}, {v(vT2)}, v0')
        e(f'v_and_b32 {v(vT2)}, 15, {v(vT2)}')
        e(f'v_lshlrev_b32 {v(vT2)}, 4, {v(vT2)}')
        e(f'v_lshl_add_u32 {v(vWQ)}, {v(vT)}, 10, {v(vT2)}')
        e(f's_lshl_b32 {T0}, {s_cb}, 8')
        e(f'v_add_u32 {v(vWQ)}, {T0}, {v(vWQ)}')
        e(f's_lshl_b32 {s_dl}, {s_w}, 11')
        e(f's_lshl_b32 {s_ds}, {s_w}, 13')
        e(f's_lshl_b32 {T0}, {s_tb}, 16')
        e(f's_add_u32 {s_ds}, {s_ds}, {T0}')
        e(f's_lshl_b32 {T5}, {s_tb}, 11')

        def xload(i):
            e(f'buffer_load_dwordx4 {v(XR+4*i,4)}, {v(vL16)}, {srd(SX)}, s{S_MU+i} offen', tag=f'x{i}')

        def wq(i, js=range(4)):
            for j in js:
                self.dma(SWQ, vWQ, s_ds, i * 65536 + j * 4096, s_dl, L_WQ + i * 16384 + j * 1024, op='xor')

        def nonce():
            e(f'v_readfirstlane_b32 {s_nonce}, {v(vEP)}')
            e(f's_mul_i32 {s_nonce}, {s_nonce}, 0x9e3779b1')
            e(f's_add_u32 {s_nonce}, {s_nonce}, 0x7f4a7c15')
            for j in range(4):
                e(f's_bfe_u32 s{S_NB+j}, {s_nonce}, {hex((8<<16)|(8*j))}')

        def first_bulk():
            e('s_waitcnt lgkmcnt(0)')
            self.sleep(o['dly_x'])
            xload(0)
            if o['wtouch']:
                lab = e.newlabel('n2')
                e(f's_cmp_lg_u32 {s_w}, 2')
                e(f's_cbranch_scc1 {lab}')
                e(f's_lshl_b32 {T0}, s2, 11')
                e(f'v_lshlrev_b32 v254, 5, v0')
                e(f'buffer_load_dword v255, v254, {srd(SWQ)}, {T0} offen', count=False)
                e(f's_lshr_b32 {T0}, {s_c}, 1')
                e(f's_lshl_b32 {T0}, {T0}, 3')
                e(f's_add_u32 {T0}, {T0}, {s_x}')
                e(f's_lshl_b32 {T0}, {T0}, 7')
                e(f'buffer_load_dword v255, off, {srd(SWKV)}, {T0}', count=False)
                e.label(lab)
            xload(1)
        self.att_setup(first_bulk)
        e(f's_lshl_b32 {T0}, {s_tb}, 3')
        e(f'v_xor_b32 {v(vHW)}, {T0}, v0')
        e(f'v_lshlrev_b32 {v(vHW)}, 9, {v(vHW)}')
        e(f'v_add_u32 {v(vHW)}, {L_H}, {v(vHW)}')
        e(f'v_and_b32 {v(vT)}, 7, v0')
        e(f'v_xor_b32 {v(vT)}, {s_one}, {v(vT)}')
        e(f'v_lshl_add_u32 {v(vHW)}, {v(vT)}, 4, {v(vHW)}')
        for i in (1, 2, 3):
            e(f'v_xor_b32 {v(vHW+i)}, {TX[i]*16}, {v(vHW)}')
        e(f'v_lshlrev_b32 {v(vT)}, 5, v0')
        e(f'v_add_u32 {v(vT)}, {L_STGA}, {v(vT)}')
        e(f's_cmp_ge_u32 {s_w}, 2')
        e(f's_cselect_b32 {s_one}, 1.0, 0')
        e('v_bfe_u32 v124, v0, 2, 2')
        e('v_lshrrev_b32 v125, 5, v0')
        e('v_lshl_add_u32 v126, v125, 3, v124')
        e(f'v_lshlrev_b32 {v(vA)}, 8, v126')
        e(f'v_xor_b32 v124, {s_m}, v124')
        e(f'v_lshl_add_u32 {v(vA)}, v124, 6, {v(vA)}')
        e('v_bfe_u32 v124, v0, 4, 1')
        e(f'v_lshl_add_u32 {v(vA)}, v124, 5, {v(vA)}')
        e('v_and_b32 v124, 3, v0')
        e(f'v_lshl_add_u32 {v(vA)}, v124, 3, {v(vA)}')
        e(f'v_add_u32 {v(vA2)}, 65536, {v(vA)}')
        e('v_and_b32 v124, 31, v0')
        e('v_xor_b32 v124, v124, v125')
        e('v_lshlrev_b32 v124, 4, v124')
        e('v_lshl_add_u32 v124, v125, 9, v124')
        e(f'v_add_u32 {v(vH)}, {L_H}, v124')
        for j in (1, 2, 3):
            e(f'v_xor_b32 {v(vH+j)}, {32*j}, {v(vH)}')
        e(f'v_lshrrev_b32 v124, 4, v0')
        e(f'v_and_b32 v125, 15, v0')
        e(f'v_lshlrev_b32 v13, 4, v125')
        e(f'v_lshlrev_b32 v125, 3, v125')
        e(f'v_lshl_add_u32 v125, v124, 8, v125')
        e(f'v_add_u32 v125, {L_WKV}, v125')
        e(f's_cmp_lg_u32 {s_w}, 0')
        e('s_cbranch_scc1 L_nw0b')
        e(f'v_lshlrev_b32 v124, 4, v124')
        e(f'v_add_u32 v124, {L_SB}, v124')
        e(f'v_add_u32 v121, {L_SB}, v120')
        e('s_waitcnt vmcnt(8)')
        self.stamp('w0c')
        self.unpack(vC, 126, 127)
        self.silu(126, 122); self.silu(127, 123)
        e('v_cvt_pk_bf16_f32 v126, v126, v127')
        e(f'ds_write_b32 v121, v126')
        for ks in range(4):
            e(f'ds_read_b128 {v(176+4*ks,4)}, v124 offset:{ks*64}')
        e('s_waitcnt vmcnt(3)')
        self.stamp('w0w')
        for ks in range(4):
            e(f'ds_read_b64_tr_b16 {v(192+4*ks,2)}, v125 offset:{L_MW-L_WKV+ks*1024}')
            e(f'ds_read_b64_tr_b16 {v(194+4*ks,2)}, v125 offset:{L_MW-L_WKV+ks*1024+128}', tag=f'mw{ks}')
        nonce()
        self.tag_prep(122)
        for ks in range(4):
            e.wait_lg(f'mw{ks}')
            e(f'v_mfma_f32_16x16x32_bf16 v[208:211], {v(176+4*ks,4)}, {v(192+4*ks,4)}, ' + ('0' if ks == 0 else 'v[208:211]'))
        e('s_waitcnt vmcnt(2)')
        self.tag_store(208, 122, 120, T4)
        self.stamp('w0st')
        e('s_setprio 0')
        e.label('L_nw0b')
        e.flush_hist()
        xload(2); xload(3)
        e('s_barrier')
        self.stamp('B0')
        e.vm = []; e.lg = []
        e(f's_xor_b32 {T5}, {T5}, {s_dl}')
        for j in range(2):
            self.dma(SWKV, vL16, T5, j * 1024, s_dl, L_WKV + j * 1024, op='xor')
        for j in range(2):
            self.dma(SWQ, vWQ, s_ds, j * 4096, s_dl, L_WQ + j * 1024, op='xor')
        e(f's_lshl_b32 {s_dl}, {s_m}, 12')
        e(f's_lshl_b32 {s_ds}, {s_m}, 14')
        e(f's_lshl_b32 {T0}, {s_tb}, 16')
        e(f's_add_u32 {s_ds}, {s_ds}, {T0}')
        e(f's_and_b32 {T0}, {T3}, 1')
        e(f's_lshl_b32 {T0}, {T0}, 9')
        e(f's_cmp_eq_u32 {s_w}, 5')
        e(f's_cselect_b32 {T0}, {T0}, {OOB}')
        e(f'buffer_load_dwordx2 v[14:15], v121, {srd(SC)}, {T0} offen')
        gloads = []
        for p in range(4):
            gloads += [f's_mov_b32 {T4}, {WS_MODA + p*4096}',
                       f'buffer_load_dwordx4 {v(G+4*p,4)}, {v(vT16)}, {srd(SWS)}, {T4} offen sc1']
        gp = o['gpos']

        def gissue():
            lab = e.newlabel('nog')
            e(f's_cmp_ge_u32 {s_w}, 4')
            e(f's_cbranch_scc1 {lab}')
            self.sleep(o['dly_moda'])
            for l in gloads:
                e(l, count=False)
            e.label(lab)
        e(f'v_lshrrev_b32 v124, 4, v0')
        e(f's_lshr_b32 {T0}, {s_cb}, 1')
        e(f's_lshl_b32 {T0}, {T0}, 4')
        e(f'v_and_b32 v120, 15, v0')
        e(f'v_add_u32 v120, {T0}, v120')
        e(f'v_xor_b32 v120, v120, v124')
        e(f'v_lshlrev_b32 v120, 4, v120')
        e(f'v_lshl_add_u32 v120, v124, 9, v120')
        e(f'v_add_u32 v120, {L_H}, v120')
        e(f'v_xor_b32 v121, 64, v120')
        e(f's_bitcmp1_b32 {s_cb}, 0')
        e(f's_cselect_b32 {T0}, 3, 8')
        e(f's_cselect_b32 {T1}, 8, 3')
        e(f'v_and_b32 v123, 1, v124')
        e(f'v_lshl_add_u32 v13, v123, {T0}, v13')
        e(f'v_lshrrev_b32 v123, 1, v124')
        e(f'v_lshl_add_u32 v13, v123, {T1}, v13')
        e(f'v_add_u32 v122, {L_STGA}, {v(vT16)}')
        e('s_waitcnt vmcnt(5)')
        self.stamp('xin')
        Q2 = XR + 4

        def pt(k):
            if gp == k:
                gissue()
        for i in range(4):
            for j in range(4):
                self.unpack(XR + 4 * i + j, N + 8 * i + 2 * j, N + 8 * i + 2 * j + 1)
        pt(0)
        for i in range(4):
            e(f'v_add_f32 {v(XR+i)}, {v(N+8*i)}, {v(N+8*i+1)}')
            e(f'v_mul_f32 {v(Q2+i)}, {v(N+8*i)}, {v(N+8*i)}')
        for j in range(1, 8):
            for i in range(4):
                if j > 1:
                    e(f'v_add_f32 {v(XR+i)}, {v(XR+i)}, {v(N+8*i+j)}')
                e(f'v_fmac_f32 {v(Q2+i)}, {v(N+8*i+j)}, {v(N+8*i+j)}')
            if j == 4:
                pt(1)
        nonce()
        for a in (XR, Q2):
            e(f'v_permlane32_swap_b32 {v(a)}, {v(a+1)}')
            e(f'v_permlane32_swap_b32 {v(a+2)}, {v(a+3)}')
        for a in (XR, Q2):
            e(f'v_add_f32 {v(a)}, {v(a)}, {v(a+1)}')
            e(f'v_add_f32 {v(a+2)}, {v(a+2)}, {v(a+3)}')
        for a in (XR, Q2):
            e(f'v_permlane16_swap_b32 {v(a)}, {v(a+2)}')
        for a in (XR, Q2):
            e(f'v_add_f32 {v(a)}, {v(a)}, {v(a+2)}')
        for r in (8, 4, 2, 1):
            for a in (XR, Q2):
                e(f'v_add_f32_dpp {v(a)}, {v(a)}, {v(a)} row_ror:{r} row_mask:0xf bank_mask:0xf')
        e(f'v_mul_f32 {v(XR)}, {fbits(-1.0/512)}, {v(XR)}')
        e(f'v_mul_f32 {v(Q2)}, {fbits(1.0/512)}, {v(Q2)}')
        e(f'v_fma_f32 {v(Q2)}, -{v(XR)}, {v(XR)}, {v(Q2)}')
        e(f'v_max_f32 {v(Q2)}, 0, {v(Q2)}')
        e(f'v_add_f32 {v(Q2)}, {fbits(1e-5)}, {v(Q2)}')
        e(f'v_rsq_f32 {v(Q2)}, {v(Q2)}')
        pt(2)
        e(f'v_mul_f32 {v(XR)}, {v(XR)}, {v(Q2)}')
        TS = (T0, T1, T2, T6)
        for i, ln in enumerate((0, 32, 16, 48)):
            e(f'v_readlane_b32 s{S_MU+i}, {v(Q2)}, {ln}')
            e(f'v_readlane_b32 {TS[i]}, {v(XR)}, {ln}')
        for i in range(4):
            e(f'v_mov_b32 {v(XR+8+i)}, {TS[i]}')
        for i in range(4):
            for j in range(8):
                e(f'v_fma_f32 {v(N+8*i+j)}, {v(N+8*i+j)}, s{S_MU+i}, {v(XR+8+i)}')
            if i == 1:
                pt(3)
        self.stamp('ln')
        pt(4)
        NE1, NE2 = o['nq1'], o['nq2']
        e(f's_cmp_ge_u32 {s_w}, 4')
        e('s_cbranch_scc1 L_ld2')
        e('s_waitcnt vmcnt(4)')
        e('s_barrier')
        self.stamp('B1')
        e('s_waitcnt vmcnt(0)')
        self.stamp('gin')
        self.gather_check(G, 4, vT2, gloads, 'ga')
        self.stamp('gok')
        self.round_mod(G, G + 4)
        e(f'ds_write_b128 v122, {v(G,4)}')
        e.label('L_b2')

        def ld2():
            e.label('L_ld2')
            wq(1)
            e('s_waitcnt vmcnt(4)')
            e('s_barrier')
            self.stamp('B1')
            lab = e.newlabel('n4'); lab2 = e.newlabel('n5')
            e(f's_cmp_lg_u32 {s_w}, 4')
            e(f's_cbranch_scc1 {lab}')
            for ks in range(16):
                e(f'ds_read_b64_tr_b16 {v(176+4*ks,2)}, v125 offset:{ks*1024}')
                e(f'ds_read_b64_tr_b16 {v(178+4*ks,2)}, v125 offset:{ks*1024+128}')
            e.label(lab)
            for i in range(2, NE1):
                wq(i)
            e('s_branch L_b2')
        e.flush_hist()
        e('s_waitcnt lgkmcnt(0)')
        e('s_barrier')
        self.stamp('B2')
        e(f'ds_read_b128 {v(SA,4)}, {v(vT)}')
        e(f'ds_read_b128 {v(CA,4)}, {v(vT)} offset:2048', tag='m0')
        e(f'ds_read_b128 {v(SA+4,4)}, {v(vT)} offset:16')
        e(f'ds_read_b128 {v(CA+4,4)}, {v(vT)} offset:2064', tag='m1')
        e.wait_lg('m1')

        def htok(i):
            for j in range(0, 8, 2):
                e(f'v_pk_fma_f32 {v(N+8*i+j,2)}, {v(N+8*i+j,2)}, {v(CA+j,2)}, {v(SA+j,2)}')
            for j in range(4):
                e(f'v_cvt_pk_bf16_f32 {v(N+8*i+j)}, {v(N+8*i+2*j)}, {v(N+8*i+2*j+1)}')
            e(f'ds_write_b128 {v(vHW+i)}, {v(N+8*i,4)}')
        e.nopk = False
        htok(0); htok(1)
        e.nopk = True
        e('s_waitcnt vmcnt(0) lgkmcnt(0)')
        e('s_barrier')
        self.stamp('B3a')
        e(f's_cmp_lg_u32 {s_w}, 4')
        e('s_cbranch_scc1 L_not4c')
        e('s_setprio 3')
        hf = lambda ks: (40 + 4 * ks) if ks < 4 else ((128 + 4 * (ks - 4)) if ks < 8 else (160 + 4 * (ks % 2)))
        hf = lambda ks: (40, 44, 48, 52, 128, 132, 136, 140, 160, 164)[ks % 10]
        for ks in range(10):
            e(f'ds_read_b128 {v(hf(ks),4)}, v{120+ks%2} offset:{ks*2048}', tag=f'h{ks}')
        e(f's_bitcmp1_b32 {s_cb}, 0')
        e('s_cbranch_scc1 L_isv')
        lgsave = list(e.lg)
        for isv in (0, 1):
            if isv:
                e.label('L_isv'); e.flush_hist(); e.lg = list(lgsave)
            for ks in range(16):
                e.wait_lg(f'h{ks}')
                acc = 168 + 4 * (ks % 2)
                W, H = v(176 + 4 * ks, 4), v(hf(ks), 4)
                A, B = (H, W) if isv else (W, H)
                e(f'v_mfma_f32_16x16x32_bf16 {v(acc,4)}, {A}, {B}, ' + ('0' if ks < 2 else v(acc, 4)))
                if ks + 10 < 16:
                    e(f'ds_read_b128 {v(hf(ks+10),4)}, v{120+ks%2} offset:{(ks+10)*2048}', tag=f'h{ks+10}')
            for j in range(4):
                e(f'v_add_f32 {v(168+j)}, {v(168+j)}, {v(172+j)}')
            if not isv:
                for j in range(4):
                    e(f'v_mul_f32 {v(168+j)}, {fbits(0.25*1.4426950408889634)}, {v(168+j)}')
                e('s_branch L_kvst')
        e.label('L_kvst')
        e('v_cvt_pk_bf16_f32 v168, v168, v169')
        e('v_cvt_pk_bf16_f32 v169, v170, v171')
        e(f'buffer_store_dwordx2 v[168:169], v13, {srd(SWS)}, {s_act} offen sc1', count=False)
        self.stamp('kvst')
        e.label('L_not4c')
        e.flush_hist()
        e.lg = []
        htok(2)
        htok(3)
        e(f's_cmp_ge_u32 {s_w}, 4')
        e('s_cbranch_scc1 L_ld3')
        NP = 4 * NE1
        assert NP <= 16
        wreg = lambda ks: 176 + 4 * (ks % 16)
        hreg = lambda ks: 128 + 4 * (ks % 8)

        def wrd(ks):
            base = vA if ks < 16 else vA2
            off = (ks % 16) * 4096
            e(f'ds_read_b64_tr_b16 {v(wreg(ks),2)}, {v(base)} offset:{off}')
            e(f'ds_read_b64_tr_b16 {v(wreg(ks)+2,2)}, {v(base)} offset:{off+1024}', tag=f'qw{ks}')

        def hrd(ks):
            e(f'ds_read_b128 {v(hreg(ks),4)}, {v(vH+ks%4)} offset:{ks*1024}', tag=f'q{ks}')
        pend = list(range(NP))
        for i in range(NE1, NE2):
            for j in range(4):
                wq(i, [j])
                for _ in range(2):
                    if pend:
                        wrd(pend.pop(0))
        while pend:
            wrd(pend.pop(0))
        self.att_setup2()
        e('s_waitcnt lgkmcnt(0)')
        e('s_barrier')
        self.stamp('B3')
        K1 = o['k1']
        assert K1 < NP
        HL = 4
        for ks in range(HL):
            hrd(ks)
        nw = NP
        for ks in range(32):
            if ks == K1:
                e('s_waitcnt vmcnt(0)')
                e('s_barrier')
                self.stamp('Bw2')
            e.wait_lg(f'qw{ks}')
            e.wait_lg(f'q{ks}')
            e(f'v_mfma_f32_32x32x16_bf16 v[40:55], {v(wreg(ks),4)}, {v(hreg(ks),4)}, ' + ('0' if ks == 0 else 'v[40:55]'))
            if ks >= K1 and nw < 32:
                wrd(nw); nw += 1
            if ks + HL < 32:
                hrd(ks + HL)
        assert nw == 32
        for j in range(8):
            e(f'v_cvt_pk_bf16_f32 {v(16+j)}, {v(40+2*j)}, {v(41+2*j)}')
        e(f'ds_write_b128 v39, v[16:19]')
        e(f'ds_write_b128 v39, v[20:23] offset:4096')
        self.stamp('qdone')
        e('s_waitcnt lgkmcnt(0)')
        e('s_barrier')
        e('s_branch L_att')
        e.flush_hist()
        ld2()
        e.label('L_ld3')
        e.flush_hist()
        e('s_waitcnt lgkmcnt(0)')
        e('s_setprio 0')
        e('s_barrier')
        self.stamp('B3')
        for i in range(NE2, 8):
            wq(i)
        self.att_setup2()
        lab = e.newlabel('n5')
        e(f's_cmp_lg_u32 {s_w}, 5')
        e(f's_cbranch_scc1 {lab}')
        self.unpack(14, 120, 121); self.unpack(15, 122, 123)
        for r in (120, 121, 122, 123):
            self.silu(r, 14)
        e('v_cvt_pk_bf16_f32 v14, v120, v121')
        e('v_cvt_pk_bf16_f32 v15, v122, v123')
        e.label(lab)
        e.vm = []
        if o['kvov']:
            e(f's_waitcnt vmcnt({4*(8-NE2)-1})')
            self.sleep(o['dly_kv'])
            self.stamp('kvrq')
            for r in range(o['kvov']):
                self.kv_dma(r, both=True)
            e(f's_waitcnt vmcnt({2*o["kvov"]})')
        else:
            e('s_waitcnt vmcnt(0)')
        e('s_barrier')
        self.stamp('Bw2')
        for r in range(o['kvov'], 4):
            self.kv_dma(r, both=True)
        self.kv_verify(0, 4, both=True)
        self.stamp('kvin')
        e('s_barrier')
        e(f'ds_read_b128 v[16:19], v39 offset:4096')
        e(f'ds_read_b128 v[20:23], v39')
        for r in range(4, 8):
            self.kv_dma(r)
        for i in range(3):
            self.wo_dma(i)
        e.label('L_att')
        e.flush_hist()
        e.vm = []; e.lg = []

    vKV, vIDX, vOA, vW32, vYA, vHA, vSTA, vWO = 1, 2, 3, 4, 5, 6, 7, 8
    vWGU = ((9, 10, 116), (117, 118, 119))
    vT16, vKL, vL16, vQX = 36, 37, 38, 39
    vTR = 11
    vTMP = 12
    vTMP2 = 13
    Q0, Q1 = 16, 20
    GB, XRES = 24, 32
    S0, S1, O0, O1, KVB, WOA, STASH = 40, 56, 72, 88, 104, 128, 192

    def att_setup(self, hook):
        e = self.e
        if self.o['bpos'] == 0:
            hook()
        t, t2, t3 = 24, 25, 26
        e(f'v_and_b32 {v(t)}, 15, v0')
        e(f'v_lshlrev_b32 {v(t)}, 4, {v(t)}')
        e(f'v_lshrrev_b32 {v(t2)}, 5, v0')
        e(f'v_lshl_add_u32 {v(t2)}, {v(t2)}, 8, {v(t)}')
        e(f'v_bfe_u32 {v(t3)}, v0, 4, 1')
        e(f'v_lshl_add_u32 {v(self.vKV)}, {v(t3)}, 9, {v(t2)}')
        e(f's_lshl_b32 {T0}, {s_kh}, 11')
        e(f'v_add_u32 {v(self.vKL)}, {T0}, {v(self.vKV)}')
        e(f's_lshl_b32 {T0}, {s_w}, 10')
        e(f'v_add_u32 {v(self.vT16)}, {T0}, {v(self.vL16)}')
        e(f'v_mov_b32 {v(self.vIDX)}, 0xdddddddd')
        L16 = v(self.vL16)
        e(f's_lshl_b32 {T0}, {s_x}, 3')
        e(f's_add_u32 {T0}, {T0}, {s_tb}')
        e(f's_lshl_b32 {T0}, {T0}, 15')
        e(f's_lshl_b32 {T1}, {s_cb}, 2')
        e(f's_add_u32 {T1}, {T1}, {s_m}')
        e(f's_lshl_b32 {T1}, {T1}, 1')
        e(f's_add_u32 {T1}, {T1}, {s_kh}')
        e(f's_lshl_b32 {T1}, {T1}, 10')
        e(f's_add_u32 {T0}, {T0}, {T1}')
        e(f's_add_u32 {T0}, {T0}, {WS_O}')
        e(f'v_add_u32 {v(self.vOA)}, {T0}, {L16}')
        e(f's_lshl_b32 {T0}, {s_x}, 2')
        e(f's_add_u32 {T0}, {T0}, {s_m}')
        e(f's_lshl_b32 {T0}, {T0}, 1')
        e(f's_add_u32 {T0}, {T0}, {s_kh}')
        e(f's_mul_i32 {T0}, {T0}, 88064')
        e(f's_mul_i32 {T1}, {s_c}, 3072')
        e(f's_add_u32 {T0}, {T0}, {T1}')
        e(f's_add_u32 {T0}, {T0}, {WS_HH}')
        e(f's_cmp_ge_u32 {s_c}, 29')
        e(f's_cselect_b32 {T0}, {OOB}, {T0}')
        e(f'v_add_u32 {v(self.vHA)}, {T0}, {L16}')
        e(f's_lshl_b32 {T0}, {s_x}, 2')
        e(f's_add_u32 {T0}, {T0}, {s_oct}')
        e(f's_lshl_b32 {T0}, {T0}, 1')
        e(f's_add_u32 {s_tbk}, {T0}, {s_kh}')
        e(f's_lshl_b32 {T1}, {s_tbk}, 15')
        e(f's_lshl_b32 {T2}, {s_nb}, 2')
        e(f's_add_u32 {T2}, {T2}, {s_m}')
        e(f's_lshl_b32 {T2}, {T2}, 10')
        e(f's_add_u32 {T1}, {T1}, {T2}')
        e(f's_add_u32 {T1}, {T1}, {WS_Y}')
        e(f'v_add_u32 {v(self.vYA)}, {T1}, {L16}')
        e(f's_lshl_b32 {T0}, {s_tbk}, 11')
        e(f's_lshl_b32 {T1}, {s_nb}, 8')
        e(f's_add_u32 {T0}, {T0}, {T1}')
        e(f's_add_u32 {T0}, {T0}, {WS_STATS}')
        e(f's_cmp_eq_u32 {s_m}, 3')
        e(f's_cselect_b32 {T0}, {T0}, {OOB}')
        e(f'v_lshl_add_u32 {v(self.vSTA)}, v0, 2, {T0}')
        e(f'v_lshlrev_b32 {v(t)}, 2, {v(t3)}')
        e(f'v_xor_b32 {v(t)}, {v(t)}, v0')
        e(f'v_and_b32 {v(t)}, 7, {v(t)}')
        e(f'v_lshlrev_b32 {v(t)}, 4, {v(t)}')
        e(f'v_lshrrev_b32 {v(t2)}, 3, v0')
        e(f'v_lshl_add_u32 {v(t)}, {v(t2)}, 10, {v(t)}')
        e(f's_lshl_b32 {T0}, {s_nb}, 7')
        e(f'v_add_u32 {v(self.vWO)}, {T0}, {v(t)}')
        if self.o['bpos'] == 1:
            hook()
        e(f's_mul_i32 {T0}, {s_c}, 96')
        e(f's_lshl_b32 {T1}, {s_w}, 6')
        for u in range(3):
            e(f'v_add_u32 {v(t)}, {T1}, v0')
            e(f'v_mul_u32_u24 {v(t2)}, 43691, {v(t)}')
            e(f'v_lshrrev_b32 {v(t2)}, 18, {v(t2)}')
            e(f'v_mul_u32_u24 v27, 6, {v(t2)}')
            e(f'v_sub_u32 {v(t)}, {v(t)}, v27')
            e(f'v_lshl_add_u32 {v(t)}, {v(t)}, 4, {T0}')
            e(f'v_mul_u32_u24 v27, 2752, {v(t2)}')
            e(f'v_add_u32 {v(self.vWGU[0][u])}, v27, {v(t)}')
            e(f'v_xor_b32 {v(t2)}, 4, {v(t2)}')
            e(f'v_mul_u32_u24 v27, 2752, {v(t2)}')
            e(f'v_add_u32 {v(self.vWGU[1][u])}, v27, {v(t)}')
            e(f's_add_u32 {T1}, {T1}, 512')
        e(f'v_lshrrev_b32 {v(t)}, 2, v0')
        e(f'v_xor_b32 {v(t2)}, {s_m}, {v(t)}')
        e(f'v_and_b32 {v(t2)}, 3, {v(t2)}')
        e(f'v_lshlrev_b32 {v(t2)}, 6, {v(t2)}')
        e(f'v_lshl_add_u32 {v(t2)}, {v(t)}, 8, {v(t2)}')
        e(f'v_and_b32 {v(t)}, 3, v0')
        e(f'v_lshl_add_u32 {v(t2)}, {v(t)}, 4, {v(t2)}')
        e(f'v_add_u32 {v(self.vQX)}, {L_QX}, {v(t2)}')
        e(f'v_bfe_u32 {v(t)}, v0, 2, 2')
        e(f'v_lshrrev_b32 {v(t2)}, 5, v0')
        e(f'v_lshl_add_u32 {v(t2)}, {v(t2)}, 2, {v(t)}')
        e(f'v_lshlrev_b32 {v(t2)}, 7, {v(t2)}')
        e(f'v_and_b32 {v(t)}, 2, {v(t)}')
        e(f'v_xor_b32 {v(t)}, {v(t)}, {v(t3)}')
        e(f'v_xor_b32 {v(t)}, {s_m}, {v(t)}')
        e(f'v_lshl_add_u32 {v(t2)}, {v(t)}, 5, {v(t2)}')
        e(f'v_and_b32 {v(t)}, 3, v0')
        e(f'v_lshl_add_u32 {v(t2)}, {v(t)}, 3, {v(t2)}')
        e(f's_lshl_b32 {T0}, {s_m}, 10')
        e(f'v_add_u32 {v(self.vTR)}, {T0}, {v(t2)}')
        if self.o['bpos'] == 2:
            hook()
        e(f'v_and_b32 {v(t)}, 27, v0')
        e(f'v_cmp_eq_u32 vcc, 16, {v(t)}')
        e(f'v_mov_b32 {v(t2)}, 0x3f803f80')
        e(f'v_cndmask_b32 {v(t)}, 0, {v(t2)}, vcc')
        for j in range(8):
            e(f'v_mov_b32 {v(self.KVB+4+j)}, {v(t)}')
        for j in range(32):
            e(f'v_mov_b32 {v(self.O0+j)}, 0')
        for j in range(4):
            e(f'v_mov_b32 {v(self.GB+j)}, -1')

    def att_setup2(self):
        e = self.e
        e(f's_lshl_b32 {s_dl}, {s_w}, 10')
        e(f's_bfe_u32 {T0}, {s_w}, 0x10001')
        e(f's_lshl_b32 {s_kvb}, {T0}, 16')
        e(f's_lshl_b32 {T0}, {s_kh}, 11')
        e(f's_add_u32 {s_kvb}, {s_kvb}, {T0}')
        e(f's_and_b32 {T0}, {s_w}, 1')
        e(f's_lshl_b32 {T0}, {T0}, 10')
        e(f's_add_u32 {s_kvb}, {s_kvb}, {T0}')
        e(f's_add_u32 {s_kvb}, {s_kvb}, {WS_KV}')
        if self.o['rot'] & 1:
            e(f's_lshl_b32 {T0}, {s_cb}, 14')
            e(f's_add_u32 {s_kvb}, {s_kvb}, {T0}')
        e(f's_lshl_b32 {T0}, {s_oct}, 1')
        e(f's_xor_b32 {s_ro}, {T0}, {s_nb}')
        if not self.o['rot'] & 2:
            e(f's_mov_b32 {s_ro}, 0')
        e(f's_lshl_b32 {s_ds}, {s_m}, 17')
        e(f's_lshl_b32 {T0}, {s_ro}, 14')
        e(f's_add_u32 {s_ds}, {s_ds}, {T0}')
        e(f's_lshl_b32 {T0}, {s_kh}, 13')
        e(f's_add_u32 {s_ds}, {s_ds}, {T0}')
        e(f's_lshl_b32 {T0}, {s_oct}, 1')
        e(f's_add_u32 {T0}, {T0}, {s_nb}')
        e(f's_and_b32 {T0}, {T0}, 7')
        e(f's_mul_i32 {T0}, {T0}, 11')
        e(f's_lshr_b32 {T0}, {T0}, 2')
        if not self.o['rot'] & 8:
            e(f's_mov_b32 {T0}, 0')
        e(f's_lshr_b32 {T1}, {s_m}, 1')
        e(f's_sub_u32 {T1}, 22, {T1}')
        e(f's_sub_u32 {s_wn}, {T1}, {T0}')
        e(f's_mul_i32 {T2}, {s_m}, 22')
        e(f's_min_u32 {T2}, {T2}, 65')
        e(f's_add_u32 {T2}, {T2}, {T0}')
        e(f's_lshl_b32 {s_wa}, {T2}, 14')
        e(f's_lshl_b32 {T1}, {T1}, 14')
        e(f's_sub_u32 {s_wb}, {s_wa}, {T1}')

    def rot_lines(self, k, a, b, stride, extra=0):
        L = [f's_cmp_gt_u32 {s_wn}, {k}', f's_cselect_b32 {T7}, {a}, {b}', f's_add_u32 {T7}, {T7}, {k*stride+extra}']
        if k == 21:
            L += [f's_cmp_lt_u32 {s_m}, 2', f's_cselect_b32 {T7}, {T7}, {OOB}']
        return L

    def wd_dma(self, k, half=None, issuer=0):
        e = self.e
        for l in self.rot_lines(k, s_wa, s_wb, 16384, 8192 * (half or 0)):
            e(l)
        if half is None:
            e(f's_lshl_b32 {T0}, {s_kh}, 13')
            e(f's_add_u32 {T7}, {T7}, {T0}')
        self.dma(SWD, self.vWO, T7, 0, s_dl, L_WD1 + k * 8192 + 4096 * (half or 0) - 4096 * issuer)

    def kv_lines(self, soff):
        b = self.KVB
        L = []
        L.append(f'buffer_load_dwordx4 {v(b,4)}, {v(self.vKV)}, {srd(SWS)}, {soff} offen sc1')
        L.append(f's_mov_b64 exec, {s(S_VM,2)}')
        L.append(f'buffer_load_dwordx4 {v(b+4,4)}, {v(self.vKV)}, {srd(SWS)}, {soff} offen offset:1024 sc1')
        L.append(f'buffer_load_dwordx4 {v(b+8,4)}, {v(self.vKV)}, {srd(SWS)}, {soff} offen offset:1536 sc1')
        L.append('s_mov_b64 exec, -1')
        return L

    def kv_dma(self, r, count=True, both=False):
        if both:
            self.dma(SWS, self.vL16, s_kvb, r * 4096 + 2048, s_dl, L_KVA + r * 8192 - 4096, count=count, flags='sc1', op='xor')
        self.dma(SWS, self.vL16, s_kvb, r * 4096, s_dl, (L_KVA + r * 8192) if r < 8 else (L_KVB + (r - 8) * 8192),
                 tag=f'kv{r}', count=count, flags='sc1', op='xor')

    def kv_verify(self, r0, r1, both=False):
        e = self.e
        T = 232
        chk = e.newlabel('kv_chk'); ok = e.newlabel('kv_ok'); stub = e.newlabel('kv_stub')
        if r1 > 8:
            e(f'v_add_u32 {v(self.vTMP2)}, {L_KVB}, {v(self.vT16)}')
        if both:
            e(f'v_subrev_u32 {v(self.vTMP2)}, 4096, {v(self.vT16)}')
        e.wait_vm(f'kv{r1-1}')
        e.label(chk)
        for r in range(r0, r1):
            if both:
                e(f'ds_read_b32 {v(T+r-r0+4)}, {v(self.vTMP2)} offset:{L_KVA+r*8192}')
            if r < 8:
                e(f'ds_read_b32 {v(T+r-r0)}, {v(self.vT16)} offset:{L_KVA+r*8192}')
            else:
                e(f'ds_read_b32 {v(T+r-r0)}, {v(self.vTMP2)} offset:{(r-8)*8192}')
        e('s_waitcnt lgkmcnt(0)')
        n = (r1 - r0) * (2 if both else 1)
        e(f'v_max_u32 {v(T)}, {v(T)}, {v(T+1)}')
        for i in range(2, n, 2):
            e(f'v_max3_u32 {v(T)}, {v(T)}, {v(T+i)}, {v(T+i+1)}')
        e(f'v_cmp_eq_u32 vcc, -1, {v(T)}')
        e(f's_cbranch_vccnz {stub}')
        e.label(ok)

        def code():
            e.label(stub)
            e(f's_cmp_eq_u32 {s_budget}, 0')
            e(f's_cbranch_scc1 {ok}')
            e(f's_sub_u32 {s_budget}, {s_budget}, 1')
            e('s_sleep 2')
            for r in range(r0, r1):
                self.kv_dma(r, count=False, both=both)
            e('s_waitcnt vmcnt(0)')
            e(f's_branch {chk}')
        self.stubs.append(('code', code))

    def tr64(self, dst, step_off, areg, js=range(2)):
        e = self.e
        for j in js:
            e(f'ds_read_b64_tr_b16 {v(dst+4*j,2)}, {v(areg+j)} offset:{step_off}')
            e(f'ds_read_b64_tr_b16 {v(dst+4*j+2,2)}, {v(areg+j)} offset:{step_off+4096}', tag=f'w{dst+4*j}')

    def tr64_addr(self, base, region):
        e = self.e
        e(f'v_add_u32 {v(base)}, {region}, {v(self.vTR)}')
        e(f'v_xor_b32 {v(base+1)}, 64, {v(base)}')

    def wo_dma(self, i):
        loc = (L_WO012 + i * 8192) if i < 3 else (L_WO345 + (i - 3) * 8192 if i < 6 else L_WO67 + (i - 6) * 8192)
        self.dma(SWO, self.vWO, s_ds, i * 16384, s_dl, loc, op='xor')

    def attention(self):
        e = self.e; o = self.o
        S = (self.S0, self.S1); O = (self.O0, self.O1); Q = (self.Q0, self.Q1)
        NT = 32
        K, V0, V1 = self.KVB, self.KVB + 4, self.KVB + 8
        QK = lambda d, q: e(f'v_mfma_f32_32x32x16_bf16 {v(d,16)}, {v(K,4)}, {v(q,4)}, 0')
        SM = lambda d, a, b: e(f'v_smfmac_f32_32x32x32_bf16 {v(d,16)}, {v(a,4)}, {v(b,8)}, {v(self.vIDX)}')
        vKL2 = 39

        def rd(reg, t, off):
            a = self.vKL if t < 16 else vKL2
            if reg != K:
                e(f's_mov_b64 exec, {s(S_VM,2)}')
            e(f'ds_read_b128 {v(reg,4)}, {v(a)} offset:{(t%16)*4096+off}', tag=f'r{reg}')
            if reg != K:
                e('s_mov_b64 exec, -1')
        self.stamp('att0')
        e('s_setprio 3')
        GB = self.GB
        gloads = []
        for p in range(2):
            gloads += [f's_mov_b32 {T7}, {WS_MODB + p*8192}',
                       f'buffer_load_dwordx4 {v(GB+4*p,4)}, {v(self.vT16)}, {srd(SWS)}, {T7} offen sc1']
        self.gb_loads = gloads

        def wgu(r):
            if o['skip'] & 1:
                return
            mat = r // 6
            self.dma(SWU if mat else SWG, self.vWGU[mat][r % 3], None, ((r % 6) // 3) * 256 * 2752, s_dl, L_WGU + r * 8192)

        def clear(i):
            if o['skip'] & 2 and i < 5:
                return
            if i == 0:
                e(f'buffer_store_dwordx4 {v(GB,4)}, {v(self.vOA)}, {srd(SWS)}, 0 offen {self.fl("clf")}')
            elif i == 1:
                e(f'buffer_store_dwordx4 {v(GB,4)}, {v(self.vYA)}, {srd(SWS)}, 0 offen {self.fl("clf")}')
            elif i == 2:
                e(f'buffer_store_dwordx4 {v(GB,4)}, {v(self.vHA)}, {srd(SWS)}, 0 offen {self.fl("clf")}')
            elif i == 3:
                e(f'buffer_store_dwordx4 {v(GB,4)}, {v(self.vHA)}, {srd(SWS)}, 0 offen offset:1024 {self.fl("clf")}')
            elif i == 4:
                e(f's_cmp_eq_u32 {s_c}, 28')
                e(f's_cselect_b32 {T4}, {OOB}, 0')
                e(f'buffer_store_dwordx4 {v(GB,4)}, {v(self.vHA)}, {srd(SWS)}, {T4} offen offset:2048 {self.fl("clf")}')
            else:
                e(f'buffer_store_dword {v(GB)}, {v(self.vSTA)}, {srd(SWS)}, 0 offen {self.fl("clf")}', tag='clr')

        wo = self.wo_dma

        def stash(i):
            if o['skip'] & 8:
                return
            if i % 2 == 0:
                e(f's_lshl_b32 {T0}, {s_kh}, 3')
                e(f's_add_u32 {T0}, {T0}, {6+i//2}')
                e(f's_cmp_gt_u32 {s_wn}, {T0}')
                e(f's_cselect_b32 {T6}, {s_wa}, {s_wb}')
                e(f's_lshl_b32 {T0}, {T0}, 14')
                e(f's_add_u32 {T6}, {T6}, {T0}')
                if i == 14:
                    e(f's_cmp_lt_u32 {s_w}, 6')
                    e(f's_cselect_b32 {T6}, {T6}, {OOB}')
            else:
                e(f's_add_u32 {T6}, {T6}, 8192')
            e(f'buffer_load_dwordx4 {v(self.STASH+4*i,4)}, {v(self.vWO)}, {srd(SWD)}, {T6} offen')

        def mbw():
            e(f's_lshl_b32 {T0}, {s_x}, 3')
            e(f's_add_u32 {T0}, {T0}, {s_tb}')
            e(f's_and_b32 {T1}, {T0}, 1')
            e(f's_lshr_b32 {T0}, {T0}, 1')
            e(f's_lshl_b32 {T0}, {T0}, 2')
            e(f's_add_u32 {T0}, {T0}, {s_cb}')
            e(f's_lshl_b32 {T2}, {T1}, 3')
            e(f's_add_u32 {T2}, {T2}, {s_w}')
            e(f's_mul_i32 {T2}, {T2}, {32*6144}')
            e(f's_lshl_b32 {T3}, {T0}, 5')
            e(f's_add_u32 {T2}, {T2}, {T3}')
            self.dma(SWM, self.vW32, T2, 2048, s_dl, L_MBW)
            e(f's_lshl_b32 {T1}, {T1}, 13')
            e(f's_lshl_b32 {T0}, {T0}, 6')
            e(f's_add_u32 {T0}, {T0}, {T1}')
            e(f's_add_u32 {T5}, {T0}, {WS_MODB}')

        def modb():
            lab = e.newlabel('nomb')
            e(f's_cmp_lg_u32 {s_w}, 5')
            e(f's_cbranch_scc1 {lab}')
            lgsave = list(e.lg)
            W = 224; A = 176
            e(f'v_lshrrev_b32 v12, 4, v0')
            e(f'v_and_b32 v13, 15, v0')
            e(f'v_lshlrev_b32 v13, 3, v13')
            e(f'v_lshl_add_u32 v13, v12, 8, v13')
            for ks in range(8):
                e(f'ds_read_b64_tr_b16 {v(W+4*ks,2)}, v13 offset:{L_MBW+ks*1024}')
                e(f'ds_read_b64_tr_b16 {v(W+4*ks+2,2)}, v13 offset:{L_MBW+ks*1024+128}')
            e(f'v_lshlrev_b32 v13, 3, v0')
            e(f'ds_write_b64 v13, v[14:15] offset:{L_MBW}')
            e(f'v_lshlrev_b32 v12, 4, v12')
            for h in range(2):
                for ks in range(4):
                    e(f'ds_read_b128 {v(A+4*ks,4)}, v12 offset:{L_MBW+(4*h+ks)*64}')
                e('s_waitcnt lgkmcnt(0)')
                for ks in range(4):
                    e(f'v_mfma_f32_16x16x32_bf16 v[124:127], {v(A+4*ks,4)}, {v(W+16*h+4*ks,4)}, ' + ('0' if h + ks == 0 else 'v[124:127]'))
            self.tag_prep(14)
            e('v_lshlrev_b32 v15, 2, v0')
            self.tag_store(124, 14, 15, T5)
            e.label(lab)
            e.lg = lgsave

        def xres():
            for l in gloads:
                e(l, tag='gb')
            e(f's_lshl_b32 {T0}, {s_tbk}, 15')
            e(f's_lshl_b32 {T1}, {s_nb}, 2')
            e(f's_add_u32 {T1}, {T1}, {s_m}')
            e(f's_lshl_b32 {T1}, {T1}, 5')
            e(f's_add_u32 {T1}, {T1}, {T0}')
            e(f'v_and_b32 v4, 31, v0')
            e(f'v_lshl_add_u32 v4, v4, 10, {T1}')
            e(f'v_lshrrev_b32 {v(self.vTMP2)}, 5, v0')
            e(f'v_lshl_add_u32 v4, {v(self.vTMP2)}, 4, v4')
            e(f'buffer_load_dwordx4 {v(self.XRES,4)}, v4, {srd(SX)}, 0 offen')

        def pre(i):
            if i == 0:
                self.tr64_addr(120, L_WO012)
            if i == 3:
                self.tr64_addr(120, L_WO345)
            self.tr64(self.WOA + 8 * i, (i % 3) * 8192, 120)

        def bar(wait=None):
            def f():
                if wait:
                    e.wait_vm(wait)
                e('s_waitcnt lgkmcnt(0)')
                e('s_barrier')
                e('s_setprio 3')
            return f
        F = lambda fn, *a: (lambda: fn(*a))
        def touch(i):
            if i == 0:
                e(f's_lshl_b32 {T6}, s2, 2')
                e(f's_add_u32 {T6}, {T6}, {s_m}')
                e(f'v_min_u32 v124, 10, v0')
                e(f'v_lshlrev_b32 v124, 7, v124')
                e(f's_mul_i32 {T0}, {T6}, 1376')
                e(f'buffer_load_dword v125, v124, {srd(SWG)}, {T0} offen', count=False)
                e(f'buffer_load_dword v125, v124, {srd(SWU)}, {T0} offen', count=False)
                e(f'buffer_load_dword v125, v124, {srd(SWD)}, {T0} offen', count=False)
            if i == 1:
                e(f's_lshr_b32 {T0}, {T6}, 1')
                e(f's_mul_i32 {T0}, {T0}, 6144')
                e(f's_and_b32 {T1}, {s_m}, 1')
                e(f's_lshl_b32 {T1}, {T1}, 11')
                e(f's_add_u32 {T0}, {T0}, {T1}')
                e(f'v_lshlrev_b32 v124, 5, v0')
                e(f'buffer_load_dword v125, v124, {srd(SWM)}, {T0} offen offset:2048', count=False)
                e(f's_lshl_b32 {T0}, {T6}, 9')
                e(f'v_lshlrev_b32 v124, 3, v0')
                e(f'buffer_load_dword v125, v124, {srd(SWO)}, {T0} offen', count=False)

        def older(*fns):
            def f():
                lab = e.newlabel('old')
                e(f's_cmp_lg_u32 {s_kh}, 0')
                e(f's_cbranch_scc1 {lab}')
                for fn in fns:
                    fn()
                e.label(lab)
            return f

        def early_done():
            n = 0 if o['skip'] & 16 else 5
            lab = e.newlabel('old'); lab2 = e.newlabel('old')
            e(f's_cmp_lg_u32 {s_kh}, 0')
            e(f's_cbranch_scc1 {lab}')
            e(f's_waitcnt vmcnt({n})')
            e(f's_branch {lab2}')
            e.label(lab)
            e('s_waitcnt vmcnt(0)')
            e.label(lab2)
            e.vm = []
        kd = self.kv_dma
        sched = {u: [] for u in range(64)}

        def put(fn, items):
            for arg, u in items:
                sched[u].append(F(fn, *arg) if isinstance(arg, tuple) else F(fn, arg))
        sched[0].append(older(F(kd, 4), F(kd, 5)))
        sched[1].append(older(F(kd, 6), F(kd, 7)))
        sched[2].append(older(F(wo, 0), F(wo, 1)))
        sched[3].append(older(F(wo, 2)))
        if not o['skip'] & 16:
            sched[4].append(older(F(touch, 0)))
            sched[5].append(older(F(touch, 1)))
        sched[11].append(early_done)
        put(self.kv_verify, [((4, 8), 11), ((8, 16), 27)])
        sched[30].append(modb)
        put(pre, [(0, 14), (1, 15), (2, 16), (3, 30), (4, 31), (5, 32)])
        sched[54].append(xres)
        sc = o['sched']
        if sc == 2:
            put(kd, [(8 + i, 12 + i) for i in range(8)])
            put(wo, [(3, 14), (4, 16), (5, 18), (6, 47), (7, 49)])
            put(self.wd_dma, [(0, 51), (1, 53)])
            sched[20].append(mbw)
            put(clear, [(0, 21), (1, 22), (5, 22), (2, 28), (3, 38), (4, 45)])
            put(wgu, [(4, 30), (5, 32), (6, 34), (7, 36), (8, 38), (9, 40), (10, 42), (11, 44), (0, 46), (1, 48), (2, 50), (3, 52)])
            put(stash, list(zip(range(16), [23, 24, 25, 26, 27, 28, 29, 31, 33, 35, 37, 39, 41, 43, 55, 56])))
        bars = {8: None, 16: 'clr', 24: None, 29: None}
        prio = {}
        lad = [int(ch) for ch in str(o['ladder'])]
        for end in [2 * (t - 1) for t in bars] + [64]:
            for i, d in enumerate(lad):
                prio[end - d] = 2 - i

        rd(K, 0, 0); rd(V0, 0, 1024); rd(V1, 0, 1536)
        e('s_waitcnt lgkmcnt(2)')
        QK(S[0], Q[0])
        e(f'v_add_u32 {v(vKL2)}, {L_KVB}, {v(self.vKL)}')
        for t in range(NT):
            for a in range(2):
                cur, oth = S[a], S[1 - a]
                u = 2 * t + a
                for r in range(16):
                    if r == 2:
                        if a == 0 and t > 0:
                            SM(O[1], V1, oth + 8)
                            rd(V1, t, 1536)
                        if a == 1:
                            e.wait_lg(f'r{V1}')
                            SM(O[0], V1, oth + 8)
                    if r == 5:
                        if a == 0:
                            QK(oth, Q[1])
                            if t + 1 in bars:
                                bar(bars[t + 1])()
                            if t + 1 < NT:
                                rd(K, t + 1, 0)
                        elif t + 1 < NT:
                            e.wait_lg(f'r{K}')
                            QK(oth, Q[0])
                    if r == 10:
                        if a == 0:
                            e.wait_lg(f'r{V0}')
                        SM(O[a], V0, cur)
                        if a == 1 and t + 1 < NT:
                            rd(V0, t + 1, 1024)
                        if not o['noside']:
                            for f in sched.get(u, []):
                                f()
                        if u in prio:
                            e(f's_setprio {prio[u]}')
                        if a == 0 and t % 4 == 0 and t:
                            self.stamp(f't{t}')
                    e(f'v_exp_f32 {v(cur+r)}, {v(cur+r)}')
        SM(O[1], V1, S[1] + 8)
        e('s_setprio 0')
        self.stamp('att1')

    def att_epilogue(self):
        e = self.e; o = self.o
        O0, O1, S0 = self.O0, self.O1, self.S0
        t, t2 = self.vTMP, self.vTMP2
        e(f's_mul_i32 {T0}, {s_w}, 2304')
        e(f's_add_u32 {T0}, {T0}, {L_EX}')
        e(f'v_lshl_add_u32 {v(t)}, v0, 4, {T0}')
        e(f'v_lshl_add_u32 {v(t2)}, v0, 2, {T0}')
        e(f's_xor_b32 {T1}, {s_w}, 4')
        e(f's_mul_i32 {T1}, {T1}, 2304')
        e(f's_add_u32 {T1}, {T1}, {L_EX}')
        e(f'v_lshl_add_u32 v14, v0, 4, {T1}')
        e(f'v_lshl_add_u32 v15, v0, 2, {T1}')
        e(f'ds_write_b128 {v(t)}, {v(O1,4)}')
        e(f'ds_write_b128 {v(t)}, {v(O1+4,4)} offset:1024')
        e(f'ds_write_b32 {v(t2)}, {v(O1+8)} offset:2048')
        e('s_waitcnt vmcnt(0) lgkmcnt(0)')
        e('s_barrier')
        e(f'ds_read_b32 {v(S0+8)}, v15 offset:2048', tag='l')
        e(f'ds_read_b128 {v(S0,4)}, v14', tag='a')
        e(f'ds_read_b128 {v(S0+4,4)}, v14 offset:1024', tag='b')
        e(f's_mov_b32 {T0}, {fbits(2.0**-90)}')
        e(f'v_mov_b32 {v(t2)}, {fbits(2.0**120)}')
        e.wait_lg('l')
        e(f'v_add_f32 {v(O0+8)}, {v(O0+8)}, {v(S0+8)}')
        e(f'v_med3_f32 {v(t)}, {v(O0+8)}, {T0}, {v(t2)}')
        e(f'v_cmp_neq_f32 {s(72,2)}, {v(t)}, {v(O0+8)}')
        e(f'v_rcp_f32 {v(O0+8)}, {v(O0+8)}')
        e.wait_lg('b')
        e.nopk = False
        for j in range(0, 8, 2):
            e(f'v_pk_add_f32 {v(O0+j,2)}, {v(O0+j,2)}, {v(S0+j,2)}')
        for j in range(8):
            e(f'v_mul_f32 {v(O0+j)}, {v(O0+j)}, {v(O0+8)}')
        e(f'v_pk_add_f32 {v(S0,2)}, {v(O0,2)}, {v(O0+2,2)}')
        e(f'v_pk_add_f32 {v(S0+2,2)}, {v(O0+4,2)}, {v(O0+6,2)}')
        e(f'v_pk_add_f32 {v(S0,2)}, {v(S0,2)}, {v(S0+2,2)}')
        e.nopk = True
        e(f'v_add_f32 {v(S0)}, {v(S0)}, {v(S0+1)}')
        e(f'v_mov_b32 {v(t)}, 0x207')
        e(f'v_cmp_class_f32 vcc, {v(S0)}, {v(t)}')
        e(f's_or_b64 vcc, vcc, {s(72,2)}')
        if o['force_slow']:
            e('s_branch L_slow')
        else:
            e('s_cbranch_vccnz L_slow')
        e.label('L_slow_ret')
        for j in range(4):
            e(f'v_cvt_pk_bf16_f32 {v(O0+j)}, {v(O0+2*j)}, {v(O0+2*j+1)}')
        e(f'buffer_store_dwordx4 {v(O0,4)}, {v(self.vOA)}, {srd(SWS)}, 0 offen {self.fl("stf")}', tag='o')
        self.stubs.append(('code', self.slow_path))
        self.stamp('opub')

    def slow_path(self):
        e = self.e
        O0, S0, S1, K = self.O0, self.S0, self.S1, self.KVB
        t, m = self.vTMP, self.vTMP2
        e.label('L_slow')
        e('s_nop 7')

        def fetch(name):
            top = e.newlabel(name); go = e.newlabel(name + 'go')
            e.label(top)
            for l in self.kv_lines(T0):
                e(l, count=False)
            e('s_waitcnt vmcnt(0)')
            e(f'v_max3_u32 {v(t)}, {v(K)}, {v(K+4)}, {v(K+8)}')
            e(f'v_cmp_eq_u32 vcc, -1, {v(t)}')
            e(f's_cbranch_vccz {go}')
            e(f's_cmp_eq_u32 {s_budget}, 0')
            e(f's_cbranch_scc1 {go}')
            e(f's_sub_u32 {s_budget}, {s_budget}, 1')
            e(f's_branch {top}')
            e.label(go)
            return top
        e(f'v_mov_b32 {v(m)}, 0xff800000')
        e(f's_mov_b32 {T0}, {WS_KV}')
        top = fetch('sl1')
        e(f'v_mfma_f32_32x32x16_bf16 {v(S0,16)}, {v(K,4)}, {v(self.Q0,4)}, 0')
        for j in range(0, 16, 2):
            e(f'v_max3_f32 {v(m)}, {v(m)}, {v(S0+j)}, {v(S0+j+1)}')
        e(f's_add_u32 {T0}, {T0}, 2048')
        e(f's_cmp_lt_u32 {T0}, {WS_KV+64*2048}')
        e(f's_cbranch_scc1 {top}')
        e(f'v_mov_b32 {v(t)}, {v(m)}')
        e(f'v_permlane32_swap_b32 {v(m)}, {v(t)}')
        e(f'v_max_f32 {v(m)}, {v(m)}, {v(t)}')
        for j in range(16):
            e(f'v_sub_f32 {v(S1+j)}, 0, {v(m)}')
            e(f'v_mov_b32 {v(O0+j)}, 0')
        e(f's_mov_b32 {T0}, {WS_KV}')
        top = fetch('sl2')
        e(f'v_mfma_f32_32x32x16_bf16 {v(S0,16)}, {v(K,4)}, {v(self.Q0,4)}, {v(S1,16)}')
        for j in range(16):
            e(f'v_exp_f32 {v(S0+j)}, {v(S0+j)}')
        e(f'v_smfmac_f32_32x32x32_bf16 {v(O0,16)}, {v(K+4,4)}, {v(S0,8)}, {v(self.vIDX)}')
        e(f'v_smfmac_f32_32x32x32_bf16 {v(O0,16)}, {v(K+8,4)}, {v(S0+8,8)}, {v(self.vIDX)}')
        e('s_nop 7')
        e(f's_add_u32 {T0}, {T0}, 2048')
        e(f's_cmp_lt_u32 {T0}, {WS_KV+64*2048}')
        e(f's_cbranch_scc1 {top}')
        e('s_nop 7')
        e(f'v_rcp_f32 {v(O0+8)}, {v(O0+8)}')
        for j in range(8):
            e(f'v_mul_f32 {v(O0+j)}, {v(O0+j)}, {v(O0+8)}')
        e('s_branch L_slow_ret')

    def ex_addr(self, base):
        e = self.e
        e(f's_lshl_b32 {T0}, {s_m}, 10')
        if base:
            e(f's_add_u32 {T0}, {T0}, {base}')
        e(f'v_add_u32 v12, {T0}, v1')

    def ex_send(self, acc):
        e = self.e
        for b in (1, 2, 3):
            e(f'v_xor_b32 v{12+b}, {b*1024}, v12')
        for b in (2, 3, 1):
            e(f'ds_write_b128 v12, {v(acc+8*b,4)} offset:{(b-1)*8192}')
            e(f'ds_write_b128 v12, {v(acc+8*b+4,4)} offset:{(b-1)*8192+4096}')

    def ex_recv(self, acc, recv):
        e = self.e
        for h in range(2):
            for b in (1, 2, 3):
                e(f'ds_read_b128 {v(recv+8*(b-1)+4*h,4)}, v{12+b} offset:{(b-1)*8192+4096*h}', tag=f'ex{b}{h}')
        for h in range(2):
            e.wait_lg(f'ex1{h}')
            for j in (4 * h, 4 * h + 2):
                e(f'v_pk_add_f32 {v(acc+j,2)}, {v(acc+j,2)}, {v(recv+j,2)}')
            e.wait_lg(f'ex3{h}')
            for j in (4 * h, 4 * h + 2):
                e(f'v_pk_add_f32 {v(recv+8+j,2)}, {v(recv+8+j,2)}, {v(recv+16+j,2)}')
            for j in (4 * h, 4 * h + 2):
                e(f'v_pk_add_f32 {v(acc+j,2)}, {v(acc+j,2)}, {v(recv+8+j,2)}')

    X1 = 16

    def a_extra(self, R, acc):
        e = self.e
        e(f's_and_b32 {T0}, {s_m}, 1')
        e(f's_lshl_b32 {T1}, {T0}, 4')
        e(f's_lshr_b32 {T3}, {s_m}, 1')
        e(f'v_xor_b32 v36, {T1}, v0')
        e(f'v_lshrrev_b32 v36, 2, v36')
        e(f'v_mul_u32_u24 v36, 96, v36')
        e(f's_mul_i32 {T2}, {T0}, 49152')
        e(f's_mul_i32 {T4}, {T3}, 24576')
        e(f's_add_u32 {T2}, {T2}, {T4}')
        e(f'v_and_b32 v37, 3, v0')
        e(f'v_lshl_add_u32 v37, v37, 3, {T2}')
        e(f'v_add_u32 v36, v36, v37')
        e(f'v_and_b32 v37, 48, v0')
        e(f'v_and_b32 v38, 1, v0')
        e(f'v_xor_b32 v38, 1, v38')
        e(f'v_lshl_add_u32 v37, v38, 10, v37')
        e(f's_lshl_b32 {T4}, {T3}, 9')
        e(f's_add_u32 {T4}, {T4}, {L_STG16}')
        e(f'v_add_u32 v37, {T4}, v37')
        e('v_and_b32 v38, 16, v0')
        e('v_and_b32 v39, 15, v0')
        e('v_lshl_add_u32 v39, v38, 1, v39')
        e(f'v_add_u32 v39, {T1}, v39')
        e(f's_lshl_b32 {T2}, {T3}, 2')
        e(f's_add_u32 {T2}, {T2}, {L_AX}')
        e(f'v_lshl_add_u32 v39, v39, 3, {T2}')

        def body():
            def rdb(nb, tl):
                r = R + 16 * (nb % 2)
                e(f'ds_read_b64_tr_b16 {v(r+4+4*tl,2)}, v36 offset:{nb*3072+32*tl}')
                e(f'ds_read_b64_tr_b16 {v(r+6+4*tl,2)}, v36 offset:{nb*3072+32*tl+1536}', tag=f'ax{nb}')

            def rda(nb):
                e(f'ds_read_b128 {v(R+16*(nb%2),4)}, v37 offset:{nb*64}', tag=f'ax{nb}')
            for nb in range(2):
                for tl in range(3):
                    rdb(nb, tl)
                rda(nb)
            e('v_cmp_ne_u32 vcc, 0, v38')
            for nb in range(8):
                r = R + 16 * (nb % 2)
                e.wait_lg(f'ax{nb}')
                for tl in range(3):
                    e(f'v_mfma_f32_16x16x32_bf16 {v(acc+4*tl,4)}, {v(r,4)}, {v(r+4+4*tl,4)}, ' + ('0' if nb == 0 else v(acc + 4 * tl, 4)))
                    if nb + 2 < 8:
                        rdb(nb + 2, tl)
                if nb + 2 < 8:
                    rda(nb + 2)
            for tl in range(3):
                e(f'v_cndmask_b32 {v(acc+4*tl)}, {v(acc+4*tl)}, {v(acc+4*tl+1)}, vcc')
                e(f'ds_write_b32 v39, {v(acc+4*tl)} offset:{tl*512}')
        return body

    def stats_publish(self):
        e = self.e
        lab = e.newlabel('nost')
        e(f's_cmp_lg_u32 {s_m}, 3')
        e(f's_cbranch_scc1 {lab}')
        lg = list(e.lg)
        e(f's_lshl_b32 {T0}, {s_kh}, 10')
        e(f's_add_u32 {T0}, {T0}, {L_ST}')
        e(f'v_lshl_add_u32 v14, v0, 2, {T0}')
        e('ds_read2st64_b32 v[32:33], v14 offset0:0 offset1:1')
        e('ds_read2st64_b32 v[34:35], v14 offset0:2 offset1:3')
        e('s_waitcnt lgkmcnt(0)')
        e('v_pk_add_f32 v[32:33], v[32:33], v[34:35]')
        e('v_add_f32 v32, v32, v33')
        e(f'buffer_store_dword v32, {v(self.vSTA)}, {srd(SWS)}, 0 offen sc1', count=False)
        e.label(lab)
        e.lg = lg

    def phase_o(self):
        e = self.e; o = self.o
        GB = self.GB; X1 = self.X1; XR = self.XRES
        ACC, RECV, GA, CB = 40, 128, 72, 80
        OF = lambda k: 88 + 4 * k
        e(f's_lshr_b32 {T0}, {s_w}, 1')
        e(f's_cmp_eq_u32 {T0}, 2')
        e(f's_cselect_b32 {s_one}, 1.0, 0')
        self.tr64_addr(120, L_WO67)
        for i in range(2):
            self.tr64(self.WOA + 48 + 8 * i, i * 8192, 120)
        self.gather_check(GB, 2, 14, self.gb_loads, 'gb')
        self.round_mod(GB, GB + 4)
        e(f's_lshl_b32 {T0}, {T0}, 8')
        e(f's_add_u32 {T0}, {T0}, {L_STGB}')
        e(f'v_and_b32 v14, 15, v0')
        e(f'v_lshl_add_u32 v14, v14, 4, {T0}')
        e(f'v_bfe_u32 v15, {v(self.vT16)}, 8, 3')
        e(f'v_cmp_eq_u32 vcc, {s_nb}, v15')
        e(f'v_lshlrev_b32 v1, 4, v0')
        e('s_mov_b64 exec, vcc')
        e(f'ds_write_b128 v14, {v(GB,4)}')
        e('s_mov_b64 exec, -1')
        lab = e.newlabel('no16')
        e(f's_sub_u32 {T0}, {s_w}, 2')
        e(f's_cmp_ge_u32 {T0}, 4')
        e(f's_cbranch_scc1 {lab}')
        e(f's_lshl_b32 {T0}, {T0}, 9')
        e(f's_add_u32 {T0}, {T0}, {L_STG16}')
        e(f'v_lshrrev_b32 v15, 3, v0')
        e(f'v_lshl_add_u32 v15, v15, 6, {T0}')
        e(f'v_and_b32 v14, 3, v0')
        e(f'v_lshl_add_u32 v15, v14, 4, v15')
        e(f'v_bfe_u32 v14, v0, 2, 1')
        e(f'v_lshl_add_u32 v15, v14, 3, v15')
        e(f'ds_write_b64 v15, {v(GB+4,2)}', count=False)
        e.label(lab)
        e(f'v_permlane32_swap_b32 {v(XR)}, {v(XR+2)}')
        e(f'v_permlane32_swap_b32 {v(XR+1)}, {v(XR+3)}')
        for j in range(4):
            self.unpack(XR + j, X1 + 2 * j, X1 + 2 * j + 1)
        self.ex_addr(L_EX)
        e(f's_lshl_b32 {T0}, {s_m}, 6')
        e(f's_add_u32 {T0}, {T0}, {L_STGB}')
        e(f'v_lshrrev_b32 v3, 5, v0')
        e(f'v_lshl_add_u32 v2, v3, 4, {T0}')
        e(f's_lshl_b32 {T0}, {s_w}, 8')
        e(f's_add_u32 {T0}, {T0}, {L_ST}')
        e(f'v_lshl_add_u32 v3, v3, 2, {T0}')
        e(f'v_and_b32 v14, 31, v0')
        e(f'v_lshl_add_u32 v3, v14, 3, v3')
        e(f's_lshl_b32 {s_act}, {s_tbk}, 15')
        e(f's_lshl_b32 {T0}, {s_m}, 3')
        e(f's_add_u32 {T0}, {T0}, {s_ro}')
        e(f's_lshl_b32 {T0}, {T0}, 10')
        e(f's_add_u32 {s_act}, {s_act}, {T0}')
        e(f's_add_u32 {s_act}, {s_act}, {WS_O}')
        ol = [f's_xor_b32 {T7}, {s_act}, {k*1024}\nbuffer_load_dwordx4 {v(OF(k),4)}, v1, {srd(SWS)}, {T7} offen sc1' for k in range(8)]

        def coef():
            for base, sec in ((GA, 0), (CB, 2), (GB, 3)):
                e(f'ds_read_b128 {v(base,4)}, v2 offset:{sec*256}')
                e(f'ds_read_b128 {v(base+4,4)}, v2 offset:{sec*256+32}')

        def mma(hook=None):
            e.wait_vm('o1')
            self.stamp('oin')
            self.chk_pre([OF(0), OF(1)], 14)
            self.chk_post([OF(0), OF(1)], 14, ol, 'o')
            for k in range(8):
                W = self.WOA + 8 * k
                for j in (1, 0):
                    e(f'v_mfma_f32_32x32x16_bf16 {v(ACC+16*j,16)}, {v(W+4*j,4)}, {v(OF(k),4)}, ' + ('0' if k == 0 else v(ACC + 16 * j, 16)))
                    if k % 2 == 1 and k < 7 and j == 1:
                        e.wait_vm(f'o{k+2}')
                        self.chk_pre([OF(k + 1), OF(k + 2)], 14)
                if k % 2 == 1 and k < 7:
                    self.chk_post([OF(k + 1), OF(k + 2)], 14, ol[k + 1:], 'o')
                if hook:
                    hook(k)
            self.stamp('omma')

        def fin():
            self.ex_recv(ACC, RECV)
            for j in range(0, 8, 2):
                e(f'v_pk_fma_f32 {v(X1+j,2)}, {v(ACC+j,2)}, {v(GA+j,2)}, {v(X1+j,2)}')
            for j in range(0, 8, 2):
                e(f'v_pk_mul_f32 {v(ACC+j,2)}, {v(X1+j,2)}, {v(CB+j,2)}')
            for j in range(4):
                e(f'v_cvt_pk_bf16_f32 {v(ACC+j)}, {v(ACC+2*j)}, {v(ACC+2*j+1)}')
            e(f'buffer_store_dwordx4 {v(ACC,4)}, {v(self.vYA)}, {srd(SWS)}, 0 offen sc1', tag='y')
            self.stamp('ypub')

        def stats():
            a, b = 88, 89
            e(f'v_add_f32 {v(a)}, {v(X1)}, {v(X1+1)}')
            e(f'v_mul_f32 {v(b)}, {v(X1)}, {v(X1)}')
            for j in range(1, 8):
                if j > 1:
                    e(f'v_add_f32 {v(a)}, {v(a)}, {v(X1+j)}')
                e(f'v_fmac_f32 {v(b)}, {v(X1+j)}, {v(X1+j)}')
            e(f'v_permlane32_swap_b32 {v(a)}, {v(b)}')
            e(f'v_add_f32 {v(a)}, {v(a)}, {v(b)}')
            e(f'ds_write_b32 v3, {v(a)}')

        e(f's_cmp_lg_u32 {s_kh}, 0')
        e('s_cbranch_scc1 L_o_late')
        e('s_setprio 1')
        e('s_waitcnt vmcnt(0) lgkmcnt(0)')
        self.sleep(o['dly_o'])
        e('s_barrier')
        self.stamp('BO1')
        for k in range(8):
            e(ol[k], tag=f'o{k}')
        coef()
        self.g_addr()
        mma()
        self.ex_send(ACC)
        e('s_waitcnt lgkmcnt(0)')
        e('s_barrier')
        fin()
        stats()
        lab = e.newlabel('noep')
        e(f's_or_b32 {T0}, s2, {s_w}')
        e(f's_cmp_lg_u32 {T0}, 0')
        e(f's_cbranch_scc1 {lab}')
        e(f'v_mov_b32 v14, {s_nonce}')
        e(f'buffer_store_dword v14, off, {srd(SWS)}, 0 sc1', count=False)
        e.label(lab)
        e.vm = []; e.lg = []
        self.phase_g(False)
        self.phase_d(False)
        e('s_branch L_fin')
        e.label('L_o_late')
        e.flush_hist()
        body = self.a_extra(40, 72)
        e('s_waitcnt vmcnt(0) lgkmcnt(0)')
        e('s_barrier')
        self.stamp('BO1')
        body()
        self.stamp('ax')
        coef()
        for k in range(o['ol1']):
            e(ol[k], tag=f'o{k}')
        e('s_waitcnt lgkmcnt(0)')
        e('s_barrier')
        for k in range(o['ol1'], 8):
            e(ol[k], tag=f'o{k}')
        mma(lambda k: self.wd_dma(2 + (k - 4) // 2, k % 2, 1) if k >= 4 else None)
        e('s_barrier')
        self.ex_send(ACC)
        e('s_waitcnt lgkmcnt(0)')
        e('s_barrier')
        fin()
        stats()
        self.g_addr()
        e.vm = []; e.lg = []
        self.phase_g(True)
        self.phase_d(True)
        e.label('L_fin')
        e.flush_hist()

    def g_addr(self):
        e = self.e
        vA = 124
        e('v_bfe_u32 v14, v0, 4, 1')
        e('v_lshrrev_b32 v15, 5, v0')
        e('v_xor_b32 v36, v14, v15')
        e(f'v_bfe_u32 {v(vA)}, v0, 2, 2')
        e(f'v_lshl_add_u32 {v(vA)}, v36, 2, {v(vA)}')
        e(f'v_lshl_add_u32 {v(vA)}, v14, 9, {v(vA)}')
        e(f'v_mul_u32_u24 {v(vA)}, 96, {v(vA)}')
        e('v_and_b32 v14, 3, v0')
        e(f'v_lshl_add_u32 {v(vA)}, v14, 3, {v(vA)}')
        e(f's_lshl_b32 {T0}, {s_x}, 2')
        e(f's_add_u32 {T0}, {T0}, {s_m}')
        e(f's_lshl_b32 {T0}, {T0}, 1')
        e(f's_add_u32 {T0}, {T0}, {s_kh}')
        e(f's_lshl_b32 {T5}, {T0}, 11')
        e(f's_add_u32 {T5}, {T5}, {WS_STATS}')
        e('v_and_b32 v14, 31, v0')
        e('v_lshlrev_b32 v14, 3, v14')
        e('v_lshl_add_u32 v126, v15, 10, v14')
        e(f's_lshl_b32 {T6}, {T0}, 15')
        e(f's_add_u32 {T6}, {T6}, {WS_Y}')
        e(f's_mov_b32 {s_yr}, {s_nb if self.o["rot"] & 4 else 0}')
        e(f's_lshl_b32 {T0}, {s_yr}, 12')
        e(f's_add_u32 {s_yb}, {T6}, {T0}')
        e(f's_lshr_b32 {T0}, {s_yr}, 2')
        e(f's_mul_i32 {s_h0}, {T0}, 24576')
        e(f's_sub_u32 {s_h1}, 24576, {s_h0}')
        e('v_lshlrev_b32 v127, 3, v0')
        e(f'v_add_u32 v127, {L_AX}, v127')
        self.tr64_addr(120, L_WD1)

    def only(self, kh, fn):
        e = self.e
        lab = e.newlabel('only')
        e(f's_cmp_lg_u32 {s_kh}, {kh}')
        e(f's_cbranch_scc1 {lab}')
        vm, lg = list(e.vm), list(e.lg)
        fn()
        e.label(lab)
        e.vm, e.lg = vm, lg

    def smem_touch(self, base, n, stride):
        e = self.e
        for i in range(n):
            e(f's_load_dword s{32 + i % 4}, {s(SWS,2)}, {base}')
            if i + 1 < n:
                e(f's_add_u32 {base}, {base}, {stride}')
        e('s_waitcnt lgkmcnt(0)')

    def phase_g(self, late):
        e = self.e; o = self.o
        Y, ACC, AF, ST, AX, BX = 128, 40, 88, 32, 112, 118
        vA = 124
        LA = o['la_y']
        sfx = 'l' if late else 'e'

        def yreg(k):
            return Y + 4 * (k % 16)

        def ylines(k):
            return [f's_xor_b32 {T7}, {s_yb}, {(k//4)*4096}',
                    f'buffer_load_dwordx4 {v(yreg(k),4)}, v1, {srd(SWS)}, {T7} offen offset:{(k%4)*1024} sc1']
        issued = [0]

        def yload():
            k = issued[0]
            if k < 32:
                for l in ylines(k):
                    e(l, tag=f'y{k}')
                issued[0] += 1
        for tl in range(3):
            e(f'ds_read_b64 {v(40+2*tl,2)}, v127 offset:{tl*512}', tag='axp')

        def aread(ks, tl):
            r = AF + 12 * (ks % 2)
            off = tl * 32 + (ks % 4) * 1536
            a = 122 + (ks // 4) % 2
            e(f'ds_read_b64_tr_b16 {v(r+4*tl,2)}, {v(a)} offset:{off}')
            e(f'ds_read_b64_tr_b16 {v(r+4*tl+2,2)}, {v(a)} offset:{off+768}', tag=f'a{ks}_{tl}')

        def agroup(g):
            e(f's_xor_b32 {T0}, {s_yr}, {g}')
            e(f's_mul_i32 {T0}, {T0}, 6144')
            e(f'v_add_u32 {v(122+g%2)}, {T0}, {v(vA)}')
        agroup(0)
        for ks in range(2):
            for tl in range(3):
                aread(ks, tl)
        e.wait_lg('axp')
        for tl in range(3):
            a = 40 + 2 * tl
            e(f'v_add_f32 {v(a)}, {v(a)}, {v(a+1)}')
            e(f'v_cvt_pk_bf16_f32 {v(AX+2*tl+1)}, {v(a)}, 0')
            e(f'v_lshlrev_b32 {v(a+1)}, 16, {v(AX+2*tl+1)}')
            e(f'v_sub_f32 {v(a+1)}, {v(a)}, {v(a+1)}')
            e(f'v_cvt_pk_bf16_f32 {v(AX+2*tl)}, {v(a)}, {v(a+1)}')

        if not late:
            e('s_barrier')
            e('s_barrier')
        e('s_waitcnt vmcnt(0)')
        if late:
            if o['smem'] & 1:
                self.sleep(o['dly_yl'])
                e(f's_lshl_b32 {T0}, {s_c}, 10')
                e(f's_add_u32 {T0}, {T0}, {T6}')
                self.smem_touch(T0, 8 * o['sper'], 128 // o['sper'])
            e('s_barrier')
        else:
            self.sleep(o['dly_y'])
        self.stamp('BO3')
        e(f's_cmp_ge_u32 {s_c}, 29')
        e(f's_cbranch_scc1 L_g_skip{sfx}')
        if late:
            self.stats_publish()
        for k in range(o['y1'] if late else o['y0']):
            yload()
        if not late:
            self.stats_publish()
        LA = o['y1'] if late else o['la_y']
        sl = [f'buffer_load_dwordx2 {v(ST+2*i,2)}, v126, {srd(SWS)}, {T5} offen offset:{i*256} sc1' for i in range(4)]

        def ychk(k0, post):
            regs = [yreg(k0 + k) for k in range(4)]
            assert issued[0] > k0 + 3 or o['xp']
            assert 22 < o['kb'] <= 24
            if not post:
                e.wait_vm(f'y{k0+3}')
                self.chk_pre(regs, 14)
            else:
                rl = []
                for k in range(k0, issued[0]):
                    rl += ylines(k)
                self.chk_post(regs, 14, rl, 'y')
        statops = [
            f'v_pk_add_f32 {v(ST,2)}, {v(ST,2)}, {v(ST+2,2)}',
            f'v_pk_add_f32 {v(ST+4,2)}, {v(ST+4,2)}, {v(ST+6,2)}',
            f'v_pk_add_f32 {v(ST,2)}, {v(ST,2)}, {v(ST+4,2)}',
            f'v_mov_b32 {v(ST+2)}, {v(ST)}',
            f'v_mov_b32 {v(ST+3)}, {v(ST+1)}',
            f'v_cmp_gt_u32 vcc, 32, v0',
            f'v_permlane32_swap_b32 {v(ST)}, {v(ST+2)}',
            f'v_permlane32_swap_b32 {v(ST+1)}, {v(ST+3)}',
            f'v_pk_add_f32 {v(ST,2)}, {v(ST,2)}, {v(ST+2,2)}',
            f'v_mul_f32 {v(ST)}, {fbits(-1.0/512)}, {v(ST)}',
            f'v_mul_f32 {v(ST+1)}, {fbits(1.0/512)}, {v(ST+1)}',
            f'v_fma_f32 {v(ST+1)}, -{v(ST)}, {v(ST)}, {v(ST+1)}',
            f'v_max_f32 {v(ST+1)}, 0, {v(ST+1)}',
            f'v_add_f32 {v(ST+1)}, {fbits(1e-5)}, {v(ST+1)}',
            f'v_sqrt_f32 {v(ST+2)}, {v(ST+1)}',
            f'v_rcp_f32 {v(ST+4)}, {v(ST+1)}',
            f'v_cndmask_b32 {v(ST)}, {v(ST+2)}, {v(ST)}, vcc',
            f'v_cvt_pk_bf16_f32 {v(BX)}, {v(ST)}, {v(ST)}',
            f'v_lshlrev_b32 {v(ST+1)}, 16, {v(BX)}',
            f'v_sub_f32 {v(ST+1)}, {v(ST)}, {v(ST+1)}',
            f'v_cvt_pk_bf16_f32 {v(BX+1)}, {v(ST+1)}, 0',
            f'v_mov_b32 {v(ST+5)}, {v(ST+4)}']
        e('s_setprio 1')
        ychk(0, 0)
        self.stamp('yin')
        ychk(0, 1)
        sregs = [ST + 2 * i for i in range(4)]
        for ks in range(32):
            r = AF + 12 * (ks % 2)
            if ks == (o['kb2'] if late else o['kb']):
                e('s_barrier')
            if late and ks == 16:
                e('s_barrier')
            for tl in range(3):
                if tl == 0:
                    e.wait_lg(f'a{ks}_2')
                e(f'v_mfma_f32_32x32x16_bf16 {v(ACC+16*tl,16)}, {v(r+4*tl,4)}, {v(yreg(ks),4)}, ' + ('0' if ks == 0 else v(ACC + 16 * tl, 16)))
                if ks + 2 < 32 and not o['xp'] & 16:
                    aread(ks + 2, tl)
                if tl != 1 and issued[0] < ks + 1 + LA and not o['xp'] & 8:
                    yload()
                if tl == 1 and ks % 4 == 3 and ks < 31:
                    ychk(ks + 1, 0)
                if tl == 1 and ks % 4 == 0 and ks < 28:
                    agroup(ks // 4 + 1)
                if tl == 2 and 20 <= ks < 28:
                    st = (ks - 20) // 2
                    self.tr64(128 + 8 * st, st * 8192, 120, js=[ks % 2])
                if ks in (13, 14, 17, 18) and tl == 1:
                    e(sl[(13, 14, 17, 18).index(ks)], tag='st')
                if ks == 22 and tl == 0:
                    e.wait_vm('st')
                    self.chk_pre(sregs, 14)
                if ks == 22 and tl == 1:
                    self.chk_post(sregs, 14, sl, 'st')
                if ks >= 29 or (ks == 28 and tl == 2):
                    for _ in range(2 if ks < 30 else 3):
                        if statops:
                            e(statops.pop(0))
            if ks % 4 == 3 and ks < 31:
                ychk(ks + 1, 1)
        assert not statops
        for tl in range(3):
            e(f'v_mfma_f32_32x32x8_bf16 {v(ACC+16*tl,16)}, {v(AX+2*tl,2)}, {v(BX,2)}, {v(ACC+16*tl,16)}')
        self.stamp('gmma')
        e(f's_cmp_eq_u32 {s_c}, 28')
        e(f's_cselect_b32 {T4}, {OOB}, 0')
        if late:
            e('s_barrier')
        else:
            e('s_setprio 0')
        for tl in range(3):
            a = ACC + 16 * tl
            for j in range(8):
                e(f'v_max_f32 {v(a+j)}, 0, {v(a+j)}')
            for j in range(0, 8, 2):
                e(f'v_pk_mul_f32 {v(a+8+j,2)}, {v(a+8+j,2)}, {v(ST+4,2)}')
            for j in range(0, 8, 2):
                e(f'v_pk_mul_f32 {v(a+j,2)}, {v(a+j,2)}, {v(a+8+j,2)}')
            for j in range(4):
                e(f'v_cvt_pk_bf16_f32 {v(a+j)}, {v(a+2*j)}, {v(a+2*j+1)}')
            for t2 in ([tl] if not (late and o['stend']) else ([0, 1, 2] if tl == 2 else [])):
                e(f'buffer_store_dwordx4 {v(ACC+16*t2,4)}, {v(self.vHA)}, {srd(SWS)}, {T4 if t2 == 2 else 0} offen offset:{t2*1024} sc1')
        self.stamp('hhpub')
        e.label(f'L_g_done{sfx}')
        e.flush_hist()
        e.vm = []; e.lg = []

        def skip():
            e.label(f'L_g_skip{sfx}')
            self.stats_publish()
            if not late:
                lab = e.newlabel('skb')
                e('v_and_b32 v14, 7, v0')
                e('v_lshlrev_b32 v14, 12, v14')
                top = e.newlabel('ypoll')
                e.label(top)
                e('s_sleep 4')
                e(f'buffer_load_dword v40, v14, {srd(SWS)}, {T6} offen sc1')
                e(f's_sub_u32 {s_budget}, {s_budget}, 1')
                e(f's_max_i32 {s_budget}, {s_budget}, 0')
                e('s_waitcnt vmcnt(0)')
                e(f's_cmp_eq_u32 {s_budget}, 0')
                e(f's_cbranch_scc1 {lab}')
                e('v_cmp_eq_u32 vcc, -1, v40')
                e(f's_cbranch_vccnz {top}')
                e.label(lab)
            e('s_barrier')
            if late:
                e('s_barrier')
            for st in range(4):
                self.tr64(128 + 8 * st, st * 8192, 120)
            e('s_waitcnt lgkmcnt(0)')
            if late:
                e('s_barrier')
            e(f's_branch L_g_done{sfx}')
        self.stubs.append(('code', skip))

    def phase_d(self, late):
        e = self.e; o = self.o
        ACC, RECV = 40, 72
        X1, GB = self.X1, self.GB
        def home(st):
            if st < 6:
                return None, L_WD1, st * 8192
            if st < 18:
                g = (st - 6) // 3
                return (s_h0, s_h0, s_h1, s_h1)[g], (0, 49152)[g % 2], ((st - 6) % 3) * 8192
            return None, L_WD1, (st - 18) * 8192
        cur = {}

        def areg(st, spill=False):
            sb, cb, off = home(st)
            key = 's' if spill else 'r'
            if cur.get(key) != (sb, cb):
                cur[key] = (sb, cb)
                cur[key + 'n'] = cur.get(key + 'n', 0) + 1
                r = (2 + cur['sn'] % 2) if spill else (32 + 2 * (cur['rn'] % 2))
                src = 'v36' if spill else v(self.vTR)
                if sb is None:
                    e(f'v_add_u32 {v(r)}, {cb}, {src}')
                elif cb == 0:
                    e(f'v_add_u32 {v(r)}, {sb}, {src}')
                else:
                    e(f's_add_u32 {T0}, {sb}, {cb}')
                    e(f'v_add_u32 {v(r)}, {T0}, {src}')
                if not spill:
                    e(f'v_xor_b32 {v(r+1)}, 64, {v(r)}')
                cur[key + 'reg'] = r
            return cur[key + 'reg'], off
        e(f's_lshl_b32 {T1}, {s_m}, 10')
        e(f'v_add_u32 v36, {T1}, v1')
        e(f's_mul_i32 {s_act}, {s_tbk}, 88064')
        e(f's_add_u32 {s_act}, {s_act}, {WS_HH}')
        e(f's_ashr_i32 {T0}, {s_wb}, 4')
        e(f's_add_u32 {s_hb2}, {s_act}, {T0}')
        e(f's_lshr_b32 {T0}, {s_wa}, 4')
        e(f's_add_u32 {s_act}, {s_act}, {T0}')

        def hreg(k):
            return (72 + 4 * k) if k < 14 else (160 + 4 * (k - 14))

        def hlines(k):
            return self.rot_lines(k, s_act, s_hb2, 1024) + [f'buffer_load_dwordx4 {v(hreg(k),4)}, v1, {srd(SWS)}, {T7} offen sc1']

        def spill(i):
            r, off = areg(6 + 8 * late + i // 2, True)
            e(f'ds_write_b128 {v(r)}, {v(self.STASH+4*i,4)} offset:{off+(i%2)*4096}')

        def light_poll():
            lab = e.newlabel('nopoll'); top = e.newlabel('poll')
            e(f's_cmp_lt_u32 {s_c}, 29')
            e(f's_cbranch_scc1 {lab}')
            e.label(top)
            e('s_sleep 4')
            e(f'buffer_load_dword v40, off, {srd(SWS)}, {s_act} sc1', count=False)
            e(f's_sub_u32 {s_budget}, {s_budget}, 1')
            e(f's_max_i32 {s_budget}, {s_budget}, 0')
            e('s_waitcnt vmcnt(0)')
            e(f's_cmp_eq_u32 {s_budget}, 0')
            e(f's_cbranch_scc1 {lab}')
            e('v_cmp_eq_u32 vcc, -1, v40')
            e(f's_cbranch_vccnz {top}')
            e('s_sleep 4')
            e.label(lab)

        def stream(late):
            issued = [0]

            def hload():
                k = issued[0]
                if k < 22:
                    for l in hlines(k):
                        e(l, tag=f'h{k}')
                    issued[0] += 1

            def wreg(ks):
                if late:
                    return (128 + 8 * (ks % 6)) if ks % 6 < 4 else (192 + 8 * (ks % 6 - 4))
                return 128 + 8 * (ks % 4)

            def wread(ks, js=range(2)):
                r, off = areg(ks)
                self.tr64(wreg(ks), off, r, js)

            def hchk(k0, post):
                regs = [hreg(k0), hreg(k0 + 1)]
                assert issued[0] > k0 + 1
                if not post:
                    e.wait_vm(f'h{k0+1}')
                    self.chk_pre(regs, 14)
                else:
                    rl = []
                    for k in range(k0, min(issued[0], k0 + 6)):
                        rl += hlines(k)
                    self.chk_post(regs, 14, rl, 'h')
            if not late:
                NE1, NE2 = o['ne1'], o['ne2']
                e('s_barrier')
                for i in range(NE1):
                    spill(i)
                light_poll()
                e('s_waitcnt vmcnt(0)')
                e('s_barrier')
                self.stamp('hreq')
                for k in (4, 5):
                    for h in range(2):
                        self.wd_dma(k, h, 0)
                for k in range(o['npre']):
                    hload()
                for i in range(NE1, NE2):
                    spill(i)
                e(f's_waitcnt vmcnt({o["npre"]})')
                self.stamp('wdis')
                e(f's_setprio {o["eprio"]}')
                e('s_barrier')
                self.stamp('BG1')
                esched = {}
                n2, n1 = o['n2'], o['n1']
                for ks in range(n2):
                    esched[(ks, 1)] = esched[(ks, 0)] = 1
                for ks in range(n2, n2 + n1):
                    esched[(ks, 0)] = 1
                for ks in range(12, 18):
                    esched[(ks, 1)] = esched[(ks, 0)] = 1
                LEAD = 2
            else:
                e(f'v_add_u32 v12, {s_h0}, v36')
                NS1 = o['ns1']
                for i in range(NS1):
                    spill(i)
                if o['bg2first']:
                    for i in range(NS1, 16):
                        spill(i)
                    wread(4); wread(5)
                    e('s_waitcnt lgkmcnt(0)')
                    e('s_barrier')
                light_poll()
                e('s_waitcnt vmcnt(0)')
                self.sleep(o['dly_hh'])
                self.stamp('hreq')
                for k in range(o['la_h']):
                    hload()
                if not o['bg2first']:
                    for i in range(NS1, 16):
                        spill(i)
                    wread(4); wread(5)
                    e('s_waitcnt lgkmcnt(0)')
                    e('s_barrier')
                self.stamp('BG2')
                LEAD = 4
            hchk(0, 0)
            self.stamp('hin')
            hchk(0, 1)
            for ks in range(22):
                nx = ks + LEAD
                if not late and nx == 14:
                    e('s_waitcnt lgkmcnt(0)')
                    e('s_barrier')
                    self.stamp('BG2')
                if late and ks == o['bd1']:
                    e('s_barrier')
                W = wreg(ks)
                for j in (1, 0):
                    if j == 1:
                        e.wait_lg(f'w{W}')
                    e(f'v_mfma_f32_32x32x16_bf16 {v(ACC+16*j,16)}, {v(W+4*j,4)}, {v(hreg(ks),4)}, ' + ('0' if ks == 0 else v(ACC + 16 * j, 16)))
                    if (6 if late else 4) <= nx < 22:
                        wread(nx, [j])
                    if not late and NE2 + 2 * ks + 1 - j < 16:
                        spill(NE2 + 2 * ks + 1 - j)
                    if (j == 0) if late else ((ks, j) in esched):
                        hload()
                    if j == 1 and ks % 2 == 1 and ks < 21:
                        hchk(ks + 1, 0)
                if ks % 2 == 1 and ks < 21:
                    hchk(ks + 1, 1)
            assert issued[0] == 22
            self.stamp('Dmma')
            e('s_setprio 2')
            self.ex_send(ACC)
            e('s_waitcnt lgkmcnt(0)')
            e('s_barrier')
            e.nopk = not late
            self.ex_recv(ACC, RECV)
            for j in range(0, 8, 2):
                e(f'v_pk_fma_f32 {v(X1+j,2)}, {v(ACC+j,2)}, {v(GB+j,2)}, {v(X1+j,2)}')
            for j in range(4):
                e(f'v_cvt_pk_bf16_f32 {v(X1+j)}, {v(X1+2*j)}, {v(X1+2*j+1)}')
            e.nopk = True
            e(f'v_permlane32_swap_b32 {v(X1)}, {v(X1+2)}')
            e(f'v_permlane32_swap_b32 {v(X1+1)}, {v(X1+3)}')
            if not late and o['defer']:
                e('s_barrier')
            e(f'buffer_store_dwordx4 {v(X1,4)}, v4, {srd(SOUT)}, 0 offen {o["out_flags"]}'.rstrip())
        stream(late)

    def finish(self):
        e = self.e
        if self.o['prof']:
            e('s_waitcnt vmcnt(0)')
            self.stamp('end')
            e('s_memrealtime s[100:101]')
            e('s_waitcnt lgkmcnt(0)')
            e(f's_lshl_b32 {T0}, s2, 3')
            e(f's_add_u32 {T0}, {T0}, {s_w}')
            e(f's_lshl_b32 {T0}, {T0}, 7')
            e(f's_add_u32 {T0}, {T0}, {WS_PROF}')
            e('v_mov_b32 v1, 0')
            vals = [f's{S_STAMP+i}' for i in range(16)] + ['s3', 's100', s_budget]
            for i, r in enumerate(vals):
                e(f'v_writelane_b32 v1, {r}, {i}')
            e('v_lshlrev_b32 v2, 2, v0')
            e('s_mov_b64 exec, 0xffffffff')
            e(f'buffer_store_dword v1, v2, {srd(SWS)}, {T0} offen')
            if self.o['enc'] >= 0:
                if self.o['enc'] == 0:
                    e('s_add_u32 s3, s3, 6000')
                else:
                    e(f's_add_u32 s3, s{S_STAMP+self.o["enc"]-1}, 6000')
                e.label('L_spin')
                e('s_sleep 1')
                e('s_memrealtime s[100:101]')
                e('s_waitcnt lgkmcnt(0)')
                e('s_sub_u32 s100, s100, s3')
                e('s_cmp_lt_i32 s100, 0')
                e('s_cbranch_scc1 L_spin')
            if self.o['prof'] >= 2:
                e(f's_cmp_lg_u32 s2, {self.o["prof"]-2}')
                e('s_cbranch_scc1 L_end')
                e(f's_cmp_lg_u32 {s_w}, 0')
                e('s_cbranch_scc1 L_end')
                e(f's_load_dwordx2 {s(SC,2)}, s[0:1], 96')
                e(f's_sub_u32 s100, s100, s3')
                e(f'v_subrev_u32 v1, s{S_STAMP}, v1')
                e(f'v_writelane_b32 v1, s100, 15')
                e(f's_sub_u32 s100, {self.o["budget"]}, {s_budget}')
                e(f'v_writelane_b32 v1, s100, 0')
                e(f's_mov_b32 s{SC+2}, 64')
                e('s_waitcnt lgkmcnt(0)')
                e(f'buffer_store_dword v1, v2, {srd(SC)}, 0 offen')
        e.label('L_end')
        e('s_endpgm')

    def build(self):
        e = self.e
        self.prologue()
        self.front()
        self.attention()
        self.att_epilogue()
        self.phase_o()
        self.finish()
        self.emit_stubs()
        e.label('L_code_end')
        head = open('adaLN_cond__grouped_kv_mqa__glu_gated_reglu__prompt.s.ref').read().split('; Override launch')[0]
        txt = head + '; @launch grid=(256,1,1) block=(512,1,1) lds=163840\n'
        txt += f'''.amdgcn_target "amdgcn-amd-amdhsa--gfx950"
.text
.globl {NAME}
.p2align 8
.type {NAME},@function
{NAME}:
'''
        txt += e.text()
        txt += f'''    s_endpgm
.section .rodata,"a"
.p2align 6
.amdhsa_kernel {NAME}
  .amdhsa_next_free_vgpr 256
  .amdhsa_next_free_sgpr 102
  .amdhsa_accum_offset 256
  .amdhsa_group_segment_fixed_size 0
  .amdhsa_kernarg_size 112
  .amdhsa_user_sgpr_count 2
  .amdhsa_user_sgpr_kernarg_segment_ptr 1
  .amdhsa_system_sgpr_workgroup_id_x 1
.end_amdhsa_kernel
'''
        return txt


if __name__ == '__main__':
    kw = {}
    out = sys.argv[1]
    for a in sys.argv[2:]:
        k, val = a.split('=')
        try:
            val = int(val)
        except ValueError:
            pass
        kw[k] = val
    g = Gen(**kw)
    txt = g.build()
    open(out, 'w').write(txt)
    print('nops inserted', g.e.nops, 'lines', txt.count('\n'), getattr(g, 'stamp_names', ''))
    for n, l in g.e.nop_log:
        if n >= 4:
            print('  nop', n, l)
```
